```python
import torch

def _softmax(x, axis=-1):
    return torch.softmax(x, dim=axis)

def _gelu(x):
    return torch.nn.functional.gelu(x, approximate='tanh')

def _silu(x):
    return torch.nn.functional.silu(x)

def _sigmoid(x):
    return torch.sigmoid(x)

def _layernorm(x, axis=-1, eps=1e-05):
    m = x.mean(dim=axis, keepdim=True)
    v = x.var(dim=axis, keepdim=True, unbiased=False)
    return (x - m) / torch.sqrt(v + eps)

def _scatter_add(tgt, idx, src, axis=0):
    return tgt.clone().index_add_(axis, idx, src)

def _segment_sum(src, seg, n):
    out = torch.zeros((n,) + src.shape[1:], dtype=src.dtype)
    return out.index_add_(0, seg, src)

def _pad(x, pw):
    flat = tuple((v for pair in reversed(pw) for v in pair))
    return torch.nn.functional.pad(x, flat)
kernel_name = 'adaLN_cond__gqa_block_cached__glu_gated_reglu__prompt'

def setup_inputs():

    _w = lambda a: (lambda t: t.to(torch.bfloat16) if t.is_floating_point() else t)(torch.as_tensor(a))

    def _A_setup():
        B, Sq, D = (1, 2048, 640)
        Hq, Hkv, Sk, Dh = (32, 32, 2048, 128)
        assert Hq % Hkv == 0, (Hq, Hkv)
        return {'x': _w((lambda *s: torch.randn(*s, dtype=torch.bfloat16) * 0.05)(B, Sq, D)), 'k_cache': _w((lambda *s: torch.randn(*s, dtype=torch.bfloat16) * 1.6)(B, Hkv, Sk, Dh)), 'v_cache': _w((lambda *s: torch.randn(*s, dtype=torch.bfloat16) * 0.8)(B, Hkv, Sk, Dh)), 'wq': _w((lambda *s: torch.randn(*s, dtype=torch.bfloat16) * 1.6)(D, Hq * Dh) * D ** (-0.5)), 'wo': _w((lambda *s: torch.randn(*s, dtype=torch.bfloat16) * 0.8)(Hq * Dh, D) * (Hq * Dh) ** (-0.5))}
    _A_in = _A_setup()

    def _B_setup():
        B, S, D, F = (1, 2048, 640, 1728)
        return {'x': _w((lambda *s: torch.randn(*s, dtype=torch.bfloat16) * 0.05)(B, S, D)), 'W_gate': _w((lambda *s: torch.randn(*s, dtype=torch.bfloat16) * 0.4)(D, F) * (2.0 / D) ** 0.5), 'W_up': _w((lambda *s: torch.randn(*s, dtype=torch.bfloat16) * 0.4)(D, F) * (2.0 / D) ** 0.5), 'W_down': _w((lambda *s: torch.randn(*s, dtype=torch.bfloat16) * 0.4)(F, D) * (1.0 / F) ** 0.5)}
    _B_in = _B_setup()
    return {'A_x': _A_in['x'], 'A_k_cache': _A_in['k_cache'], 'A_v_cache': _A_in['v_cache'], 'A_wq': _A_in['wq'], 'A_wo': _A_in['wo'], 'B_x': _B_in['x'], 'B_W_gate': _B_in['W_gate'], 'B_W_up': _B_in['W_up'], 'B_W_down': _B_in['W_down'], 'c': _w((lambda *s: torch.randn(*s, dtype=torch.bfloat16) * 0.2)(1, 640) * 8.0), 'w_mod': _w((lambda *s: torch.randn(*s, dtype=torch.bfloat16) * 0.2)(640, 6 * 640) * 640 ** (-0.5) * 8.0)}

def reference(A_x, A_k_cache, A_v_cache, A_wq, A_wo, B_x, B_W_gate, B_W_up, B_W_down, c, w_mod):

    def _A_ref(x, k_cache, v_cache, wq, wo):
        B, Sq, D = x.shape
        Hq, Dh = (32, 128)
        Hkv = k_cache.shape[1]
        rep = Hq // Hkv
        q = (lambda x, *d: x.permute(*d))((x @ wq).reshape(B, Sq, Hq, Dh), 0, 2, 1, 3)
        k = (lambda x, n, axis: torch.repeat_interleave(x, n, dim=axis))(k_cache, rep, axis=1)
        v = (lambda x, n, axis: torch.repeat_interleave(x, n, dim=axis))(v_cache, rep, axis=1)
        scores = torch.einsum('bhqd,bhkd->bhqk', q, k) * Dh ** (-0.5)
        p = _softmax(scores, axis=-1)
        o = torch.einsum('bhqk,bhkd->bhqd', p, v)
        return (lambda x, *d: x.permute(*d))(o, 0, 2, 1, 3).reshape(B, Sq, Hq * Dh) @ wo

    def _B_ref(x, W_gate, W_up, W_down):
        gate = torch.einsum('bsd,df->bsf', x, W_gate)
        up = torch.einsum('bsd,df->bsf', x, W_up)
        gate = gate * (lambda x, dt: x.to(dt))(gate > 0, gate.dtype)
        h = gate * up
        return torch.einsum('bsf,fd->bsd', h, W_down)
    x = A_x
    mod = (_silu(c) @ w_mod).reshape(c.shape[0], 6, 1, -1)
    sa, ca, ga, sb, cb, gb = (mod[:, 0].clone(), mod[:, 1].clone(), mod[:, 2].clone(), mod[:, 3].clone(), mod[:, 4].clone(), mod[:, 5].clone())
    h = _layernorm(x, axis=-1) * (1 + ca) + sa
    x = x + ga * _A_ref(h, A_k_cache, A_v_cache, A_wq, A_wo)
    h = _layernorm(x, axis=-1) * (1 + cb) + sb
    x = x + gb * _B_ref(h, B_W_gate, B_W_up, B_W_down)
    return x
```

```python
import re

TRANS = ("v_exp_f32", "v_log_f32", "v_rcp_f32", "v_rsq_f32", "v_sqrt_f32", "v_sin_f32", "v_cos_f32",
         "v_rcp_iflag_f32")


def vr(base, n=1, acc=False):
    p = "a" if acc else "v"
    return f"{p}{base}" if n == 1 else f"{p}[{base}:{base + n - 1}]"


def sr(base, n=1):
    return f"s{base}" if n == 1 else f"s[{base}:{base + n - 1}]"


class Reg:
    def __init__(self, base, n, acc=False):
        self.base, self.n, self.acc = base, n, acc

    def __getitem__(self, i):
        if isinstance(i, slice):
            start = i.start or 0
            stop = self.n if i.stop is None else i.stop
            assert 0 <= start < stop <= self.n, (start, stop, self.n)
            return Reg(self.base + start, stop - start, self.acc)
        assert 0 <= i < self.n, (i, self.n)
        return Reg(self.base + i, 1, self.acc)

    def sub(self, start, n):
        return self[start:start + n]

    def __str__(self):
        return vr(self.base, self.n, self.acc)

    __repr__ = __str__


class Alloc:
    def __init__(self, start=0, limit=256, acc=False):
        self.p, self.limit, self.acc = start, limit, acc

    def get(self, n, align=1):
        self.p = (self.p + align - 1) // align * align
        r = Reg(self.p, n, self.acc)
        self.p += n
        assert self.p <= self.limit, f"out of registers ({self.p} > {self.limit})"
        return r


_REG_RE = re.compile(r"^(v|a|s)(?:(\d+)|\[(\d+):(\d+)\])$")


def _regs(tok):
    tok = tok.strip()
    neg = tok.startswith("-")
    if neg:
        tok = tok[1:]
    m = re.match(r"^abs\((.*)\)$", tok) or re.match(r"^\|(.*)\|$", tok)
    if m:
        tok = m.group(1)
    if tok == "vcc":
        return {("s", "vcc")}
    if tok in ("vcc_lo", "vcc_hi"):
        return {("s", "vcc")}
    if tok == "exec":
        return {("s", "exec")}
    if tok == "m0":
        return {("s", "m0")}
    m = _REG_RE.match(tok)
    if not m:
        return set()
    k = m.group(1)
    if m.group(2) is not None:
        return {(k, int(m.group(2)))}
    return {(k, i) for i in range(int(m.group(3)), int(m.group(4)) + 1)}


class Ins:
    __slots__ = ("text", "op", "kind", "dst", "src", "srcc", "srcab", "passes", "states", "label", "target",
                 "cond", "store_data", "dpp", "lds_dma", "sgpr_src", "end")

    def __init__(self, text):
        self.text = text
        self.label = None
        self.target = None
        self.cond = False
        self.end = False
        self.dst, self.src, self.srcc, self.srcab = set(), set(), set(), set()
        self.store_data = set()
        self.passes = 0
        self.states = 1
        self.dpp = False
        self.lds_dma = False
        self.kind = "other"
        t = text.split(";")[0].strip()
        self.op = ""
        if not t:
            self.kind = "none"
            self.states = 0
            return
        if t.endswith(":"):
            self.label = t[:-1]
            self.kind = "none"
            self.states = 0
            return
        if t.startswith("."):
            self.kind = "none"
            self.states = 0
            return
        parts = t.split(None, 1)
        op = parts[0]
        self.op = op
        rest = parts[1] if len(parts) > 1 else ""
        ops, depth, cur = [], 0, ""
        for ch in rest:
            if ch in "[(":
                depth += 1
            if ch in "])":
                depth -= 1
            if ch == "," and depth == 0:
                ops.append(cur.strip())
                cur = ""
            else:
                cur += ch
        if cur.strip():
            ops.append(cur.strip())
        mods = ""
        if ops:
            lp = ops[-1].split(None, 1)
            ops[-1] = lp[0]
            mods = lp[1] if len(lp) > 1 else ""
        R = [_regs(o) for o in ops]
        if op == "s_nop":
            self.kind = "salu"
            self.states = int(ops[0], 0) + 1
        elif op == "s_endpgm":
            self.kind = "salu"
            self.end = True
        elif op == "s_branch":
            self.kind = "salu"
            self.target = ops[0]
        elif op.startswith("s_cbranch"):
            self.kind = "salu"
            self.target = ops[0]
            self.cond = True
        elif op.startswith("s_load") or op.startswith("s_buffer_load") or op in ("s_memtime", "s_memrealtime"):
            self.kind = "smem"
            self.dst = R[0]
            for r in R[1:]:
                self.src |= r
        elif op.startswith("s_atomic"):
            self.kind = "smem"
            self.dst = R[0]
            for r in R:
                self.src |= r
        elif op.startswith("s_"):
            self.kind = "salu"
            if op.startswith("s_cmp") or op in ("s_waitcnt", "s_barrier", "s_setprio", "s_sleep"):
                for r in R:
                    self.src |= r
            elif R:
                self.dst = set(R[0])
                for r in R[1:]:
                    self.src |= r
                if "saveexec" in op:
                    self.dst |= {("s", "exec")}
        elif op.startswith("v_mfma"):
            self.kind = "mfma"
            self.dst = R[0]
            self.srcab = R[1] | R[2]
            self.srcc = R[3]
            self.src = self.srcab | self.srcc
            self.passes = 8 if "32x32x16" in op else 4
            assert "32x32x16" in op or "16x16x32" in op, op
        elif op.startswith("v_"):
            self.kind = "valu"
            self.dpp = op.endswith("_dpp") or "row_" in mods or "quad_perm" in mods
            if op.startswith("v_cmp"):
                self.dst = set(R[0])
                for r in R[1:]:
                    self.src |= r
                if op.startswith("v_cmpx"):
                    self.dst |= {("s", "exec")}
            elif op.startswith("v_permlane") and "swap" in op:
                self.dst = R[0] | R[1]
                self.src = R[0] | R[1]
            elif op.startswith(("v_add_co", "v_sub_co", "v_addc_co", "v_subb_co", "v_subrev_co")):
                self.dst = R[0] | R[1]
                for r in R[2:]:
                    self.src |= r
            else:
                self.dst = set(R[0])
                for r in R[1:]:
                    self.src |= r
                if op.startswith(("v_fmac", "v_dot2c", "v_pk_fmac")) or self.dpp or "sdwa" in op or \
                        op.startswith("v_writelane"):
                    self.src |= R[0]
                if op.startswith("v_cndmask") and len(ops) == 3:
                    self.src |= {("s", "vcc")}
        elif op.startswith("ds_"):
            self.kind = "ds"
            if op.startswith(("ds_read", "ds_bpermute", "ds_permute", "ds_swizzle")):
                self.dst = R[0]
                for r in R[1:]:
                    self.src |= r
            else:
                for r in R:
                    self.src |= r
        elif op.startswith(("buffer_", "global_")):
            self.kind = "vmem"
            is_lds = re.search(r"\blds\b", mods) is not None or "_lds_" in op
            if is_lds:
                self.lds_dma = True
                for r in R:
                    self.src |= r
                self.src |= {("s", "m0")}
            elif "_load" in op:
                self.dst = R[0]
                for r in R[1:]:
                    self.src |= r
            elif "_store" in op or "_atomic" in op:
                for r in R:
                    self.src |= r
                data = R[0] if op.startswith("buffer_") else R[1]
                if "dwordx4" in op or "dwordx3" in op:
                    self.store_data = data
                if "_atomic" in op and re.search(r"\bsc0\b", mods):
                    self.dst = R[0]
            else:
                pass
        else:
            raise ValueError("unknown instruction: " + text)
        self.sgpr_src = {r for r in self.src if r[0] == "s"}


def _vec(rs):
    return {r for r in rs if r[0] in "va"}


def _need(p, c):
    n = 0
    pk, ck = p.kind, c.kind
    if pk == "valu":
        pv = _vec(p.dst)
        ps = {r for r in p.dst if r[0] == "s"}
        if ck == "mfma" and pv & c.src:
            n = max(n, 2)
        if ck == "valu":
            if p.op.startswith(TRANS) and not c.op.startswith(TRANS) and pv & c.src:
                n = max(n, 1)
            if p.op.startswith(TRANS) and c.op.startswith(TRANS) and pv & c.src:
                n = max(n, 1)
            if c.op.startswith(("v_readfirstlane", "v_readlane")) and pv & c.src:
                n = max(n, 1)
            if c.op.startswith("v_permlane") and pv & c.src:
                n = max(n, 2)
            if c.dpp and pv & c.src:
                n = max(n, 2)
            if ("sdwa" in p.op or "op_sel" in p.text) and pv & (c.src | c.dst):
                n = max(n, 1)
            if ps & c.sgpr_src:
                n = max(n, 4 if c.op.startswith(("v_readlane", "v_writelane")) else 2)
            if ("s", "exec") in ps:
                n = max(n, 5 if c.dpp else 4 if c.op.startswith(("v_read", "v_write", "v_permlane")) else 0)
        if ck == "mfma" and ("s", "exec") in ps:
            n = max(n, 4)
        if ck == "vmem" and ps & c.sgpr_src:
            n = max(n, 5)
    if pk == "mfma":
        big = 12 if p.passes == 8 else 8
        if ck == "mfma":
            if p.dst & c.srcab:
                n = max(n, big)
            if p.dst & c.srcc:
                if not (p.dst == c.srcc and p.passes == c.passes):
                    n = max(n, big - 2)
            elif p.dst & c.dst:
                n = max(n, big - 2)
        elif ck in ("valu", "vmem", "ds"):
            if p.dst & (c.src | c.dst):
                n = max(n, big)
            if ck == "valu" and (p.srcc & c.dst):
                n = max(n, 7 if p.passes == 8 else 3)
    if pk == "salu" and ("s", "m0") in p.dst and c.lds_dma:
        n = max(n, 1)
    if pk == "vmem" and p.store_data:
        if p.store_data & c.dst:
            n = max(n, 2 if ck == "valu" else 1)
    return n


MAXW = 12


def hazard_fix(lines, verbose=False):
    total_added = 0
    while True:
        ins = [Ins(l) for l in lines]
        labels = {x.label: i for i, x in enumerate(ins) if x.label}
        n = len(ins)

        def succ(i):
            x = ins[i]
            if x.end:
                return []
            if x.target is not None:
                t = labels[x.target]
                return [t, i + 1] if x.cond else [t]
            return [i + 1] if i + 1 < n else []

        pad = {}
        for i, p in enumerate(ins):
            if p.kind not in ("valu", "mfma", "salu", "vmem"):
                continue
            if p.kind == "salu" and ("s", "m0") not in p.dst:
                continue
            if p.kind == "vmem" and not p.store_data:
                continue
            win = 12 if p.kind == "mfma" else 5
            stack = [(j, 0) for j in succ(i)]
            seen = {}
            while stack:
                j, d = stack.pop()
                if d >= win or seen.get(j, 99) <= d:
                    continue
                seen[j] = d
                c = ins[j]
                if c.kind != "none":
                    need = _need(p, c)
                    if need > d:
                        pad[j] = max(pad.get(j, 0), need - d)
                        if verbose:
                            print(f"pad {need - d}: [{p.text.strip()}] -> [{c.text.strip()}]")
                for k in succ(j):
                    stack.append((k, d + c.states))
        if not pad:
            return lines, total_added
        out, last = [], -100
        for j, l in enumerate(lines):
            if j in pad and j - last > 14:
                k = pad[j]
                out.append(f"  s_nop {k - 1}")
                total_added += 1
                last = j
            out.append(l)
        lines = out


class Asm:
    def __init__(self):
        self.lines = []

    def __call__(self, s):
        for l in s.split("\n"):
            l = l.strip()
            if not l:
                continue
            self.lines.append(l if l.endswith(":") or l.startswith((".", ";")) else "  " + l)

    def label(self, name):
        self.lines.append(name + ":")

    def extend(self, lines):
        self.lines.extend(lines)


class VmTracker:
    def __init__(self):
        self.ops = []

    def issue(self, tag):
        self.ops.append(tag)

    def count_after(self, pred):
        for i in range(len(self.ops) - 1, -1, -1):
            if pred(self.ops[i]):
                return len(self.ops) - 1 - i
        return None


def kernel_text(name, body_lines, vgpr, sgpr, accum_offset, verbose=False):
    body, added = hazard_fix(body_lines, verbose)
    out = [".text", f".globl {name}", ".p2align 8", f".type {name},@function", f"{name}:"]
    out += body
    desc = [
        '.section .rodata,"a"',
        ".p2align 6",
        f".amdhsa_kernel {name}",
        f"  .amdhsa_next_free_vgpr {vgpr}",
        f"  .amdhsa_next_free_sgpr {sgpr}",
        f"  .amdhsa_accum_offset {accum_offset}",
        "  .amdhsa_group_segment_fixed_size 0",
        "  .amdhsa_kernarg_size 112",
        "  .amdhsa_user_sgpr_count 2",
        "  .amdhsa_user_sgpr_kernarg_segment_ptr 1",
        "  .amdhsa_system_sgpr_workgroup_id_x 1",
        ".end_amdhsa_kernel",
    ]
    return "\n".join(out) + "\n", "\n".join(desc) + "\n", added
```

```python
import struct
from asmlib import Asm, Alloc, Reg, VmTracker, sr
from layout import *

MFMA = "v_mfma_f32_32x32x16_bf16"
SLOT = 16384


def f32hex(x):
    return "0x%08x" % struct.unpack("<I", struct.pack("<f", x))[0]


class Frag:
    def __init__(self, reads, guard=None):
        self.reads = reads
        self.guard = guard
        self.buf = None
        self.last_ds = None
        self.waited = False


class Item:
    def __init__(self, fmt, frag=None, phantom=False):
        self.fmt = fmt
        self.frag = frag
        self.phantom = phantom
        self.fixed = []
        self.flex = []
        self.mark = []


def cost_of(t):
    op = t.split()[0]
    if op.startswith("v_exp"):
        return 8
    if op.endswith(":"):
        return 0
    if op.startswith("buffer_load"):
        return 12
    return 4


def pack(items, g0, g1, ops, cap, fixed_cost):
    gaps = [g for g in range(g0, g1 + 1) if not items[g].phantom]
    avail = [max(cap - fixed_cost[g], 2) for g in gaps]
    tot_av = sum(avail)
    tot = sum(cost_of(o) for o in ops)
    cum_av, cum, k = 0, 0, 0
    for gi, g in enumerate(gaps):
        cum_av += avail[gi]
        target = tot * cum_av / tot_av
        while k < len(ops) and (cum + cost_of(ops[k]) / 2 <= target or gi == len(gaps) - 1
                                or ops[k].endswith(":")):
            items[g].flex.append(ops[k])
            cum += cost_of(ops[k])
            k += 1
    assert k == len(ops)


def gen_attn(name, NQ=1, D_LA=None, cap=None, thr_log2=40, timing=False, prio=None, abl=()):
    NW = 8 // NQ
    D_LA = D_LA or (5 if NQ == 1 else 8)
    cap = cap or (40 if NQ == 1 else 24)
    acc = NQ == 2
    a = Asm()
    va = Alloc(1, 256)
    aa = Alloc(0, 256, acc=True)
    tmp = va.get(7)
    vKa = va.get(4)
    vVa = va.get(2)
    vWlo = va.get(2)
    vWhi = va.get(2)
    vKd, vVd, vWd = va.get(1), va.get(1), va.get(1)
    vHo = va.get(1)
    E = va.get(4)
    ts = va.get(NQ)
    lsum = va.get(NQ)
    ACCQ = va.get(64 * NQ, 4)
    Q = va.get(32 * NQ, 4)
    O = (aa if acc else va).get(64 * NQ, 4)
    NFR = 8
    FR = (aa if acc else va).get(4 * NFR, 4)
    Sb = lambda par, qb: ACCQ.sub((par * NQ + qb) * 16, 16)
    negm = lambda qb: ACCQ.sub((2 * NQ + qb) * 16, 16)
    Pb = lambda par, qb, t: ACCQ.sub(3 * NQ * 16 + ((par * NQ + qb) * 2 + t) * 4, 4)
    qacc = lambda qb, b: ACCQ.sub((qb * 4 + b) * 16, 16)
    Qf = lambda qb, s: Q.sub((qb * 8 + s) * 4, 4)
    Ob = lambda qb, b: O.sub((qb * 4 + b) * 16, 16)
    Hf = lambda stage, ks, qb: O.sub((((stage % 4) * 4 + ks) * NQ + qb) * 4, 4)
    sK, sV, sW, sH, sO = 8, 12, 16, 20, 24
    s_wave, s_wb, s_head, s_qb, s_koff, s_voff, s_koff2, s_voff2, s_cnt, s_thr, s_t0, s_t1 = range(28, 40)
    s_tm = 40

    a(f"""
    s_cmp_ge_u32 s2, 256
    s_cbranch_scc1 {name}_end
    s_load_dwordx4 s[4:7], s[0:1], {KA_K}
    s_load_dwordx2 s[16:17], s[0:1], {KA_WQ}
    s_load_dwordx2 s[20:21], s[0:1], {KA_WS}
    """)
    if timing:
        a(f"s_memtime s[{s_tm}:{s_tm+1}]")
        a(f"s_memrealtime s[{s_tm+2}:{s_tm+3}]")
    t0, t1, t2, t3, t4, t5, t6 = [tmp[i] for i in range(7)]
    a(f"""
    v_lshrrev_b32 {t0}, 6, v0
    v_and_b32 v0, 63, v0
    v_readfirstlane_b32 s{s_wave}, {t0}
    s_and_b32 s{s_head}, s2, 7
    s_lshl_b32 s{s_head}, s{s_head}, 2
    s_lshr_b32 s{s_t0}, s2, 3
    s_and_b32 s{s_t0}, s{s_t0}, 3
    s_add_u32 s{s_head}, s{s_head}, s{s_t0}
    s_lshr_b32 s{s_qb}, s2, 5
    s_lshl_b32 s{s_wb}, s{s_wave}, 10
    """)
    a(f"""
    v_lshrrev_b32 {t0}, 5, v0
    v_and_b32 {t1}, 31, v0
    v_lshrrev_b32 {t2}, 1, {t1}
    v_and_b32 {t2}, 7, {t2}
    v_lshlrev_b32 {t1}, 7, {t1}
    """)
    for s4 in range(4):
        a(f"""
        v_or_b32 {t3}, {2 * s4}, {t0}
        v_xor_b32 {t3}, {t3}, {t2}
        v_lshl_add_u32 {vKa[s4]}, {t3}, 4, {t1}
        """)
    a(f"""
    v_bfe_u32 {t1}, v0, 2, 2
    v_lshl_add_u32 {t2}, {t0}, 2, {t1}
    v_lshlrev_b32 {t2}, 7, {t2}
    v_lshrrev_b32 {t1}, 1, {t1}
    v_bfe_u32 {t3}, v0, 4, 1
    v_lshlrev_b32 {t3}, 2, {t3}
    v_and_b32 {t4}, 1, v0
    v_lshl_add_u32 {t3}, {t4}, 1, {t3}
    v_bfe_u32 {t4}, v0, 1, 1
    v_add_u32 {t3}, {t3}, {t4}
    v_lshl_add_u32 {t2}, {t3}, 3, {t2}
    v_lshl_add_u32 {vWlo[0]}, {t1}, 6, {t2}
    v_xor_b32 {vWlo[1]}, 64, {vWlo[0]}
    v_add_u32 {vVa[0]}, 0x10000, {vWlo[0]}
    v_add_u32 {vVa[1]}, 0x10000, {vWlo[1]}
    v_add_u32 {vWhi[0]}, 0x20000, {vWlo[0]}
    v_add_u32 {vWhi[1]}, 0x20000, {vWlo[1]}
    """)
    a(f"""
    v_lshrrev_b32 {t0}, 3, v0
    s_lshl_b32 s{s_t0}, s{s_wave}, 3
    v_add_u32 {t0}, s{s_t0}, {t0}
    v_and_b32 {t1}, 7, v0
    v_lshrrev_b32 {t2}, 4, v0
    s_and_b32 s{s_t0}, s{s_wave}, 1
    s_lshl_b32 s{s_t0}, s{s_t0}, 2
    v_add_u32 {t3}, s{s_t0}, {t2}
    v_xor_b32 {t3}, {t3}, {t1}
    v_lshlrev_b32 {t3}, 4, {t3}
    v_lshl_add_u32 {vKd}, {t0}, 8, {t3}
    v_lshrrev_b32 {t3}, 2, {t1}
    v_and_b32 {t2}, 1, {t2}
    v_xor_b32 {t3}, {t3}, {t2}
    v_lshlrev_b32 {t3}, 6, {t3}
    v_and_b32 {t4}, 3, v0
    v_lshl_add_u32 {t3}, {t4}, 4, {t3}
    v_lshl_add_u32 {vVd}, {t0}, 8, {t3}
    v_lshl_add_u32 {vWd}, {t0}, 13, {t3}
    v_lshlrev_b32 {vHo}, 4, v0
    s_waitcnt lgkmcnt(0)
    """)
    a(f"""
    s_lshl_b32 s{s_t0}, s{s_head}, 19
    s_add_u32 s{sK}, s4, s{s_t0}
    s_addc_u32 s{sK+1}, s5, 0
    s_mov_b32 s{sK+2}, 0x80000
    s_mov_b32 s{sK+3}, 0x20000
    s_add_u32 s{sV}, s6, s{s_t0}
    s_addc_u32 s{sV+1}, s7, 0
    s_mov_b32 s{sV+2}, 0x80000
    s_mov_b32 s{sV+3}, 0x20000
    s_lshl_b32 s{s_t0}, s{s_head}, 8
    s_add_u32 s{sW}, s{sW}, s{s_t0}
    s_addc_u32 s{sW+1}, s{sW+1}, 0
    s_sub_u32 s{sW+2}, {D * H * DH * 2}, s{s_t0}
    s_mov_b32 s{sW+3}, 0x20000
    s_add_u32 s{sO}, s{sH}, {WS_O}
    s_addc_u32 s{sO+1}, s{sH+1}, 0
    s_mov_b32 s{sO+2}, {S * H * DH * 2}
    s_mov_b32 s{sO+3}, 0x20000
    s_lshl_b32 s{s_t0}, s{s_qb}, 3
    s_mul_i32 s{s_t1}, s{s_wave}, {NQ}
    s_add_u32 s{s_t0}, s{s_t0}, s{s_t1}
    s_mul_i32 s{s_t0}, s{s_t0}, {40 * 1024}
    s_add_u32 s{s_t0}, s{s_t0}, {WS_H}
    s_add_u32 s{sH}, s{sH}, s{s_t0}
    s_addc_u32 s{sH+1}, s{sH+1}, 0
    s_mov_b32 s{sH+2}, {NQ * 40 * 1024}
    s_mov_b32 s{sH+3}, 0x20000
    s_mov_b32 s{s_thr}, {f32hex(2.0 ** thr_log2)}
    """)
    if timing == "series":
        a(f"""
        s_load_dwordx2 s[48:49], s[0:1], {KA_WS}
        s_waitcnt lgkmcnt(0)
        s_add_u32 s48, s48, 0x8000000
        s_addc_u32 s49, s49, 0
        s_mov_b32 s50, 0x8000
        s_mov_b32 s51, 0x20000
        """)
    if prio == "young":
        a(f"""
        s_cmp_ge_u32 s{s_wave}, {NW // 2}
        s_cbranch_scc0 {name}_noprio
        s_setprio 1
        {name}_noprio:
        """)

    vm = VmTracker()

    def dma_tile(kind, slot, soff_imm=None, rowstride=256):
        srd, vo = {"K": (sK, vKd), "V": (sV, vVd), "W": (sW, vWd)}[kind]
        groups = []
        for rg in range(8 // NW):
            for half in range(2):
                n = rg * NW + half * 8
                g = []
                if soff_imm is not None:
                    g.append(f"s_mov_b32 s{s_t0}, {soff_imm + rg * 32 * rowstride}")
                    so = s_t0
                else:
                    so = {("K", 0): s_koff, ("K", 1): s_koff2, ("V", 0): s_voff, ("V", 1): s_voff2}[(kind, rg)]
                g.append(f"s_add_u32 m0, s{s_wb}, {slot * SLOT + n * 1024 - half * 128}")
                off = f" offset:128" if half else ""
                g.append(f"buffer_load_dwordx4 {vo}, {sr(srd, 4)}, s{so} offen{off} lds")
                groups.append(g)
        return groups

    def h_load(stage, ks):
        out = []
        for qb in range(NQ):
            off = (qb * 40 + stage * 4 + ks) * 1024
            out.append(f"s_mov_b32 s{s_t1}, {off}")
            out.append(f"buffer_load_dwordx4 {Hf(stage, ks, qb)}, {vHo}, {sr(sH, 4)}, s{s_t1} offen")
        return out

    class VmOp:
        def __init__(self, lines, tag):
            self.lines, self.tag = lines, tag

    def emit_vm(op):
        for l in op.lines:
            a(l)
            if l.startswith("buffer_"):
                vm.issue(op.tag)

    WSLOT = [0, 1, 4, 2, 5, 3, 6, 7, 8, 9]
    KVFILL = [("K", 0), ("K", 1), ("V", 0), ("K", 2), ("V", 1), ("K", 3)]
    PW = 10 if NW == 8 else 5
    for st in range(PW):
        for g in dma_tile("W", WSLOT[st], st * 64 * 8192, 8192):
            emit_vm(VmOp(g, ("W", st)))
        if st < 4:
            for ks in range(4):
                emit_vm(VmOp(h_load(st, ks), ("h", st)))

    def guard_wait(tags, extra=""):
        def f():
            n = min(vm.count_after(lambda t, tag=tag: t == tag) for tag in tags)
            return [f"s_waitcnt vmcnt({min(n, 63)}){extra}", "s_barrier"]
        return f

    def tr_frag(slot, t, b, guard=None):
        base = slot * SLOT
        if base < 0x10000:
            ar, rel = vWlo, base
        elif base < 0x20000:
            ar, rel = vVa, base - 0x10000
        else:
            ar, rel = vWhi, base - 0x20000
        reads = []
        for e4 in range(2):
            off = rel + (b // 2) * 8192 + (16 * t + 8 * e4) * 128
            reads.append(("ds_read_b64_tr_b16", 2 * e4, 2, ar[b % 2], off))
        return Frag(reads, guard)

    def k_frag(slot, u, s, guard=None):
        off = slot * SLOT + (s // 4) * 8192 + u * 4096
        return Frag([("ds_read_b128", 0, 4, vKa[s % 4], off)], guard)

    rare_blocks = []
    site = [0]

    def sm_compute(par):
        n = 16 * NQ
        ex = lambda i: f"v_exp_f32 {E[i % 4]}, {Sb(par, i // 16)[i % 16]}"
        ops = [ex(0), ex(1)]
        for p in range(n // 2):
            qb, first = (2 * p) // 16, (2 * p) % 16 == 0
            e0, e1 = E[(2 * p) % 4], E[(2 * p + 1) % 4]
            if p + 1 < n // 2:
                ops.append(ex(2 * p + 2))
            ops.append(f"v_add_f32 {ts[qb]}, {e0}, {e1}" if first else f"v_add_f32 {ts[qb]}, {ts[qb]}, {e0}")
            if p + 1 < n // 2:
                ops.append(ex(2 * p + 3))
            if not first:
                ops.append(f"v_add_f32 {ts[qb]}, {ts[qb]}, {e1}")
            pp = p % 8
            ops.append(f"v_cvt_pk_bf16_f32 {Pb(par, qb, pp // 4)[pp % 4]}, {e0}, {e1}")
        return ops

    def rowmax(dst, tmp2, src):
        out = [f"v_max3_f32 {dst}, {src[0]}, {src[1]}, {src[2]}"]
        for i in range(3, 15, 2):
            out.append(f"v_max3_f32 {dst}, {dst}, {src[i]}, {src[i + 1]}")
        out.append(f"v_max_f32 {dst}, {dst}, {src[15]}")
        out.append(f"v_mov_b32 {tmp2}, {dst}")
        out.append(f"v_permlane32_swap_b32 {dst}, {tmp2}")
        out.append(f"v_max_f32 {dst}, {dst}, {tmp2}")
        return out

    def sm_ops(par, tag):
        comp = sm_compute(par)
        ops = []
        lab = f"{name}_rare{tag}"
        ret = f"{name}_ret{tag}"
        if NQ == 2:
            ops.append(f"v_max_f32 {t0}, {ts[0]}, {ts[1]}")
            ops.append(f"v_cmp_nle_f32 vcc, {t0}, {t6}")
        else:
            ops.append(f"v_cmp_nle_f32 vcc, {ts[0]}, {t6}")
        ops.append(f"s_cbranch_vccnz {lab}")
        ops.append(f"{ret}:")
        for qb in range(NQ):
            ops.append(f"v_add_f32 {lsum[qb]}, {lsum[qb]}, {ts[qb]}")
        r = [f"{lab}:", "s_nop 15"]
        for qb in range(NQ):
            r += rowmax(t0, t1, Sb(par, qb))
            r.append(f"v_max_f32 {t0}, 0, {t0}")
            r.append(f"v_exp_f32 {t1}, -{t0}")
            r.append("s_nop 0")
            r.append(f"v_mul_f32 {lsum[qb]}, {lsum[qb]}, {t1}")
            for i in range(64):
                o = O[qb * 64 + i]
                if acc:
                    tt = tmp[2 + i % 4]
                    r += [f"v_accvgpr_read_b32 {tt}, {o}", f"v_mul_f32 {tt}, {tt}, {t1}",
                          f"v_accvgpr_write_b32 {o}, {tt}"]
                else:
                    r.append(f"v_mul_f32 {o}, {o}, {t1}")
            for blk in (negm(qb), Sb(par, qb), Sb(par ^ 1, qb)):
                for i in range(16):
                    r.append(f"v_sub_f32 {blk[i]}, {blk[i]}, {t0}")
        r += sm_compute(par)
        r.append("s_nop 1")
        r.append(f"s_branch {ret}")
        rare_blocks.append((tag, r))
        return comp, ops

    def build(nbodies, last_special):
        items = []
        groups = []
        for st in range(10):
            first = len(items)
            for ks in range(4):
                for b in range(4):
                    g = guard_wait([("W", st), ("h", st)]) if (ks == 0 and b == 0) else None
                    fr = tr_frag(WSLOT[st], ks, b, g)
                    for qb in range(NQ):
                        c = "0" if (st == 0 and ks == 0) else str(qacc(qb, b))
                        items.append(Item(f"{MFMA} {qacc(qb, b)}, {{A}}, {Hf(st, ks, qb)}, {c}", fr))
                if st + 4 < 10:
                    items[-1].fixed.append(VmOp(h_load(st + 4, ks), ("h", st + 4)))
            pos = first + 1
            if st + PW < 10:
                for g in dma_tile("W", WSLOT[st + PW], (st + PW) * 64 * 8192, 8192):
                    items[pos].fixed.append(VmOp(g, ("W", st + PW)))
                    pos += 2
            if 2 <= st < 8:
                kind, tile = KVFILL[st - 2]
                for g in dma_tile(kind, WSLOT[st - 2], tile * SLOT):
                    items[pos].fixed.append(VmOp(g, (kind, tile)))
                    pos += 2
        conv = []
        cs = f32hex(1.4426950408889634 * DH ** -0.5)
        for qb in range(NQ):
            for b in range(4):
                for i in range(16):
                    conv.append(f"v_mul_f32 {qacc(qb, b)[i]}, {cs}, {qacc(qb, b)[i]}")
                for tt in range(2):
                    for j in range(4):
                        conv.append(f"v_cvt_pk_bf16_f32 {Qf(qb, 2 * b + tt)[j]}, {qacc(qb, b)[8 * tt + 2 * j]}, "
                                    f"{qacc(qb, b)[8 * tt + 2 * j + 1]}")
        conv.append(f"v_mov_b32 {t6}, s{s_thr}")
        conv.append(f"s_mov_b32 s{s_koff}, {4 * SLOT}")
        conv.append(f"s_mov_b32 s{s_voff}, {2 * SLOT}")
        if NW == 4:
            conv.append(f"s_mov_b32 s{s_koff2}, {4 * SLOT + 8192}")
            conv.append(f"s_mov_b32 s{s_voff2}, {2 * SLOT + 8192}")
        conv.append(f"s_mov_b32 s{s_cnt}, 8")
        items[-1].flex += conv

        def qk(unit, kslot, guard=None, first=False, phantom=False):
            par = unit % 2
            for s in range(8):
                fr = k_frag(kslot, unit % 2, s, guard if s == 0 else None)
                for qb in range(NQ):
                    c = ("0" if first else str(negm(qb))) if s == 0 else str(Sb(par, qb))
                    items.append(Item(f"{MFMA} {Sb(par, qb)}, {{A}}, {Qf(qb, s)}, {c}", fr, phantom))

        def pv(unit, vslot):
            par = unit % 2
            for t in range(2):
                for b in range(4):
                    fr = tr_frag(vslot, (unit % 2) * 2 + t, b)
                    for qb in range(NQ):
                        items.append(Item(f"{MFMA} {Ob(qb, b)}, {{A}}, {Pb(par, qb, t)}, {Ob(qb, b)}", fr))

        g0 = len(items)
        qk(0, 0, guard_wait([("K", 0)]), first=True)
        zero = []
        for i in range(64 * NQ):
            zero.append(f"v_accvgpr_write_b32 {O[i]}, 0" if acc else f"v_mov_b32 {O[i]}, 0")
        for qb in range(NQ):
            zero.append(f"v_mov_b32 {lsum[qb]}, 0")
        groups.append((g0, len(items) - 2, (zero, [])))
        init = []
        for qb in range(NQ):
            init += rowmax(t0, t1, Sb(0, qb))
            for i in range(16):
                init.append(f"v_sub_f32 {negm(qb)[i]}, 0, {t0}")
            for i in range(16):
                init.append(f"v_sub_f32 {Sb(0, qb)[i]}, {Sb(0, qb)[i]}, {t0}")
        groups.append((len(items) - 1, len(items) - 1, (init, [])))
        g0 = len(items)
        qk(1, 0)
        groups.append((g0, len(items) - 1, sm_ops(0, "p")))
        marks = []
        nper = 32 * NQ
        for T in range(nbodies):
            last = last_special and T == nbodies - 1
            marks.append(len(items))
            b0 = len(items)
            if T == 0:
                guard = guard_wait([("K", 1), ("V", 0)], " lgkmcnt(0)")
            else:
                guard = lambda: [f"s_waitcnt vmcnt({2 * 16 // NW})", "s_barrier"]
            ks_, vs_ = (T + 1) % 4, 4 + T % 4
            tag = ("t" if last else "b") + str(T % 4)
            g0 = len(items)
            qk(2 * T + 2, ks_, guard, phantom=last)
            pv(2 * T, vs_)
            groups.append((g0, len(items) - 1, sm_ops(1, tag + "a")))
            g0 = len(items)
            qk(2 * T + 3, ks_, phantom=last)
            last_k_use = len(items) - 1
            pv(2 * T + 1, vs_)
            if not last:
                groups.append((g0, len(items) - 1, sm_ops(0, tag + "b")))
                assert last_k_use < b0 + nper - D_LA - 1
                dm = dma_tile("K", T % 4) + dma_tile("V", 4 + (T + 2) % 4)
                span = nper - D_LA - 3
                for i, g in enumerate(dm):
                    items[b0 + 1 + i * span // len(dm)].fixed.append(VmOp(g, ("x", T)))
                upd = [f"s_add_u32 s{s_koff}, s{s_koff}, {SLOT}", f"s_add_u32 s{s_voff}, s{s_voff}, {SLOT}"]
                if NW == 4:
                    upd += [f"s_add_u32 s{s_koff2}, s{s_koff2}, {SLOT}", f"s_add_u32 s{s_voff2}, s{s_voff2}, {SLOT}"]
                items[b0 + span + 1].fixed.append(VmOp(upd, None))
        marks.append(len(items))
        return items, groups, marks

    def emit(items, groups, marks, stop_reads_at=None):
        n = len(items)
        firstuse = {}
        lastuse = {}
        for i, it in enumerate(items):
            firstuse.setdefault(id(it.frag), i)
            lastuse[id(it.frag)] = i
        reads_at = {}
        for i, it in enumerate(items):
            if firstuse[id(it.frag)] == i:
                pos = i - D_LA
                if it.phantom and pos >= stop_reads_at:
                    continue
                reads_at.setdefault(max(pos, -1), []).append(it.frag)
        fixed_cost = []
        for i, it in enumerate(items):
            c = sum(4 * len(fr.reads) + (8 if fr.guard else 0) for fr in reads_at.get(i, []))
            c += sum(sum(cost_of(l) for l in op.lines) for op in it.fixed)
            if i + 1 < n and firstuse[id(items[i + 1].frag)] == i + 1:
                c += 4
            fixed_cost.append(c)
        for g0, g1, (ops, lastops) in groups:
            fixed_cost[g1] += sum(cost_of(o) for o in lastops)
            pack(items, g0, g1, ops, cap, fixed_cost)
            items[g1].flex += lastops
        segs = []
        nds = [0]
        nfr = [0]
        bufowner = [None] * NFR

        def issue_reads(i):
            for fr in reads_at.get(i, []):
                if fr.guard:
                    for l in fr.guard():
                        a(l)
                k = nfr[0] % NFR
                nfr[0] += 1
                prev = bufowner[k]
                assert prev is None or lastuse[id(prev)] <= i, "fragment ring too small"
                bufowner[k] = fr
                fr.buf = FR.sub(4 * k, 4)
                for op, sub, nr, ar, off in fr.reads:
                    assert 0 <= off < 65536
                    a(f"{op} {fr.buf.sub(sub, nr)}, {ar} offset:{off}")
                    fr.last_ds = nds[0]
                    nds[0] += 1

        issue_reads(-1)
        for i, it in enumerate(items):
            if i in marks:
                segs.append(len(a.lines))
            if not it.phantom:
                if firstuse[id(it.frag)] == i:
                    w = nds[0] - 1 - it.frag.last_ds
                    assert w <= 15
                    a(f"s_waitcnt lgkmcnt({w})")
                a(it.fmt.replace("{A}", str(it.frag.buf)))
            issue_reads(i)
            for op in it.fixed:
                emit_vm(op)
            for l in it.flex:
                a(l)
        segs.append(len(a.lines))
        return segs

    head_lines = list(a.lines)
    vm_ops0 = list(vm.ops)
    items, groups, marks = build(9, False)
    segs = emit(items, groups, marks)
    L = a.lines
    pre = L[:segs[0]]
    body = [L[segs[i]:segs[i + 1]] for i in range(8)]
    for i in range(4):
        assert body[i] == body[i + 4], f"loop body {i} is not periodic"
    rare_main = {}
    for tag, r in rare_blocks:
        rare_main.setdefault(tag, r)
    a.lines = list(head_lines)
    vm.ops = list(vm_ops0)
    rare_blocks.clear()
    items, groups, marks = build(4, True)
    segs2 = emit(items, groups, marks, stop_reads_at=marks[3])
    L2 = a.lines
    assert L2[:segs2[3]] == L[:segs[3]]
    tail = L2[segs2[3]:segs2[4]]
    for tag, r in rare_blocks:
        rare_main.setdefault(tag, r)

    def stamp(idx_expr_lines):
        if timing != "series":
            return
        a(f"""
        s_memtime s[{s_tm+4}:{s_tm+5}]
        s_memrealtime s[{s_tm+6}:{s_tm+7}]
        s_waitcnt lgkmcnt(0)
        s_sub_u32 s{s_tm+4}, s{s_tm+4}, s{s_tm}
        s_sub_u32 s{s_tm+6}, s{s_tm+6}, s{s_tm+2}
        v_mov_b32 {t2}, s{s_tm+4}
        v_mov_b32 {t3}, s{s_tm+6}
        s_lshl_b32 s{s_t0}, s2, 7
        s_lshl_b32 s{s_t1}, s{s_cnt}, 3
        s_add_u32 s{s_t0}, s{s_t0}, s{s_t1}
        v_mov_b32 {t4}, s{s_t0}
        buffer_store_dword {t2}, {t4}, s[48:51], 0 offen
        buffer_store_dword {t3}, {t4}, s[48:51], 0 offen offset:4
        """)
    if "nosm" in abl:
        body = [[l for l in b if not l.strip().startswith(("v_exp", "v_add_f32", "v_cvt_pk", "v_max", "v_cmp", "s_cbranch_vcc"))] for b in body]
    if "noexp" in abl:
        body = [[l.replace("v_exp_f32", "v_mov_b32") for l in b if not l.strip().startswith(("s_cbranch_vcc",))] for b in body]
    if "nods" in abl:
        body = [[l for l in b if not l.strip().startswith(("ds_read",)) and "lgkmcnt" not in l] for b in body]
    if "nodma" in abl:
        body = [[l for l in b if not l.strip().startswith(("buffer_load", "s_add_u32 m0"))] for b in body]
    if "nomfma" in abl:
        body = [[l for l in b if not l.strip().startswith(("v_mfma", "s_cbranch_vcc"))] for b in body]
    if "m16" in abl:
        import re
        def conv16(b):
            out = []
            cnt = 0
            for l in b:
                m = re.match(r"\s*v_mfma_f32_32x32x16_bf16 ([av])\[(\d+):\d+\], (\S+), v\[(\d+):\d+\], ([av])\[(\d+):\d+\]", l)
                if not m:
                    if not l.strip().startswith("s_cbranch_vcc"):
                        out.append(l)
                    continue
                dk, d, A, bb, ck, c = m.group(1), int(m.group(2)), m.group(3), int(m.group(4)), m.group(5), int(m.group(6))
                o = 8 * ((cnt // 2) % 2)
                cnt += 1
                b2 = bb ^ 4
                out.append(f"  v_mfma_f32_16x16x32_bf16 {dk}[{d+o}:{d+o+3}], {A}, v[{bb}:{bb+3}], {ck}[{c+o}:{c+o+3}]")
                out.append(f"  v_mfma_f32_16x16x32_bf16 {dk}[{d+o+4}:{d+o+7}], {A}, v[{b2}:{b2+3}], {ck}[{c+o+4}:{c+o+7}]")
            return out
        body = [conv16(b) for b in body]
    a.lines = list(pre)
    a.label(f"{name}_loop")
    stamp(None)
    a.extend(body[0] + body[1] + body[2])
    a(f"""
    s_sub_u32 s{s_cnt}, s{s_cnt}, 1
    s_cmp_eq_u32 s{s_cnt}, 0
    s_cbranch_scc1 {name}_tail
    """)
    a.extend(body[3])
    a(f"s_branch {name}_loop")
    a.label(f"{name}_tail")
    stamp(None)
    a.extend(tail)
    a(f"""
    v_and_b32 {t2}, 15, v0
    v_lshlrev_b32 {t2}, 4, {t2}
    v_bfe_u32 {t3}, v0, 4, 1
    v_lshl_add_u32 {t2}, {t3}, 10, {t2}
    v_lshrrev_b32 {t3}, 5, v0
    v_lshl_add_u32 {t2}, {t3}, 8, {t2}
    s_lshl_b32 s{s_t0}, s{s_qb}, 3
    s_mul_i32 s{s_t1}, s{s_wave}, {NQ}
    s_add_u32 s{s_t0}, s{s_t0}, s{s_t1}
    s_lshr_b32 s{s_t1}, s{s_t0}, 1
    s_lshl_b32 s{s_t1}, s{s_t1}, 19
    s_and_b32 s{s_t0}, s{s_t0}, 1
    s_lshl_b32 s{s_t0}, s{s_t0}, 11
    s_add_u32 s{s_t1}, s{s_t1}, s{s_t0}
    s_lshl_b32 s{s_t0}, s{s_head}, 14
    s_add_u32 s{s_t1}, s{s_t1}, s{s_t0}
    """)
    stg = Q
    k = 0
    for qb in range(NQ):
        a(f"""
        v_mov_b32 {t1}, {lsum[qb]}
        v_permlane32_swap_b32 {lsum[qb]}, {t1}
        v_add_f32 {t1}, {lsum[qb]}, {t1}
        v_rcp_f32 {t1}, {t1}
        """)
        for b in range(4):
            a(f"s_add_u32 s{s_t0}, s{s_t1}, {qb * 2048 + b * 4096}")
            for tt in range(2):
                dst = stg.sub(4 * (k % 8), 4)
                k += 1
                for j in range(4):
                    x0, x1 = Ob(qb, b)[8 * tt + 2 * j], Ob(qb, b)[8 * tt + 2 * j + 1]
                    e0, e1 = E[(2 * j) % 4], E[(2 * j + 1) % 4]
                    if acc:
                        a(f"v_accvgpr_read_b32 {e0}, {x0}")
                        a(f"v_accvgpr_read_b32 {e1}, {x1}")
                        x0, x1 = e0, e1
                    a(f"v_mul_f32 {e0}, {x0}, {t1}")
                    a(f"v_mul_f32 {e1}, {x1}, {t1}")
                    a(f"v_cvt_pk_bf16_f32 {dst[j]}, {e0}, {e1}")
                a(f"buffer_store_dwordx4 {dst}, {t2}, {sr(sO, 4)}, s{s_t0} offen offset:{tt * 512}")
    if timing:
        a(f"""
        s_memtime s[{s_tm+4}:{s_tm+5}]
        s_memrealtime s[{s_tm+6}:{s_tm+7}]
        s_load_dwordx2 s[4:5], s[0:1], {KA_WS}
        s_waitcnt lgkmcnt(0)
        s_sub_u32 s{s_tm}, s{s_tm+4}, s{s_tm}
        s_sub_u32 s{s_tm+2}, s{s_tm+6}, s{s_tm+2}
        s_add_u32 s4, s4, 0x8000
        s_addc_u32 s5, s5, 0
        s_mov_b32 s6, 0x8000
        s_mov_b32 s7, 0x20000
        v_mov_b32 {E[0]}, s{s_tm}
        v_mov_b32 {E[1]}, s{s_tm+2}
        s_lshl_b32 s{s_t0}, s2, 6
        s_lshl_b32 s{s_t1}, s{s_wave}, 3
        s_add_u32 s{s_t0}, s{s_t0}, s{s_t1}
        v_mov_b32 {t2}, s{s_t0}
        buffer_store_dwordx2 {E.sub(0, 2)}, {t2}, s[4:7], 0 offen
        """)
    a.label(f"{name}_end")
    a("s_endpgm")
    for tag, r in rare_main.items():
        for l in r:
            a(l)
    nv = va.p
    if acc:
        return a.lines, 256 + aa.p, 256, 64 * NW
    return a.lines, nv, (nv + 3) // 4 * 4, 64 * NW
```

```python
from asmlib import Asm, Alloc, Reg, sr
from stream import *
from layout import *

SLOT = 16384


def timing_head(a, s_tm):
    a(f"s_memtime s[{s_tm}:{s_tm+1}]")
    a(f"s_memrealtime s[{s_tm+2}:{s_tm+3}]")


def timing_tail(a, s_tm, s_wave, v2, v1):
    a(f"""
    s_memtime s[{s_tm+4}:{s_tm+5}]
    s_memrealtime s[{s_tm+6}:{s_tm+7}]
    s_load_dwordx2 s[4:5], s[0:1], {KA_WS}
    s_waitcnt lgkmcnt(0)
    s_sub_u32 s{s_tm}, s{s_tm+4}, s{s_tm}
    s_sub_u32 s{s_tm+2}, s{s_tm+6}, s{s_tm+2}
    s_add_u32 s4, s4, 0x8000
    s_addc_u32 s5, s5, 0
    s_mov_b32 s6, 0x8000
    s_mov_b32 s7, 0x20000
    v_mov_b32 {v2[0]}, s{s_tm}
    v_mov_b32 {v2[1]}, s{s_tm+2}
    s_lshl_b32 s{s_tm+4}, s2, 6
    s_lshl_b32 s{s_tm+5}, s{s_wave}, 3
    s_add_u32 s{s_tm+4}, s{s_tm+4}, s{s_tm+5}
    v_mov_b32 {v1}, s{s_tm+4}
    buffer_store_dwordx2 {v2}, {v1}, s[4:7], 0 offen
    """)


def tr_addr_setup(a, dst4, t):
    a(f"""
    v_lshrrev_b32 {t[0]}, 2, v0
    v_lshlrev_b32 {t[1]}, 7, {t[0]}
    v_and_b32 {t[2]}, 3, v0
    v_lshl_add_u32 {t[1]}, {t[2]}, 3, {t[1]}
    v_bfe_u32 {t[0]}, v0, 3, 2
    v_lshl_add_u32 {dst4[0]}, {t[0]}, 5, {t[1]}
    v_xor_b32 {dst4[1]}, 32, {dst4[0]}
    v_xor_b32 {dst4[2]}, 64, {dst4[0]}
    v_xor_b32 {dst4[3]}, 0x60, {dst4[0]}
    """)


def tr_dma_col(a, dst, t):
    a(f"""
    v_bfe_u32 {t[0]}, v0, 1, 2
    v_lshrrev_b32 {t[1]}, 4, v0
    v_xor_b32 {t[0]}, {t[0]}, {t[1]}
    v_lshlrev_b32 {t[0]}, 5, {t[0]}
    v_and_b32 {t[1]}, 1, v0
    v_lshl_add_u32 {dst}, {t[1]}, 4, {t[0]}
    """)


def gen_attn16(name, NQB=4, la_frags=5, wait_group=2, thr_log2=40, timing=False, prio=None, abl=(), cap2=16):
    NW = 16 // NQB
    LA = la_frags * NQB
    acc = NQB == 4
    a = Asm()
    va = Alloc(1, 256)
    aa = Alloc(0, 256, acc=True)
    tmp = va.get(7)
    vKa = va.get(2)
    vVa = va.get(4)
    vWlo = va.get(4)
    vWhi = va.get(4)
    vKd, vVd, vWd, vHo = va.get(1), va.get(1), va.get(1), va.get(1)
    EQ = va.get(16, 4)
    E = [EQ[4 * (i // 3) + i % 3] for i in range(12)]
    NE = 12
    ts = [EQ[4 * q + 3] for q in range(NQB)]
    lq = va.get(6, 4)
    lsum = [lq[0], lq[1], lq[2], lq[4]][:NQB]
    ACCQ = va.get(32 * NQB, 4)
    Q = va.get(16 * NQB, 4)
    O = (aa if acc else va).get(32 * NQB, 4)
    NFR = 8
    FR = (aa if acc else va).get(4 * NFR, 4)
    Sq = lambda par, qb: ACCQ.sub((par * NQB + qb) * 8, 8)
    Sb = lambda par, qb, kb: Sq(par, qb).sub(4 * kb, 4)
    negm = lambda qb: ACCQ.sub(16 * NQB + qb * 4, 4)
    Pb = lambda par, qb: ACCQ.sub(20 * NQB + (par * NQB + qb) * 4, 4)
    qacc = lambda qb, db: ACCQ.sub((qb * 8 + db) * 4, 4)
    Qf = lambda qb, s: Q.sub((qb * 4 + s) * 4, 4)
    Ob = lambda qb, db: O.sub((qb * 8 + db) * 4, 4)
    Hf = lambda stage, ks, qb: O.sub((((stage % 4) * 2 + ks) * NQB + qb) * 4, 4)
    sK, sV, sW, sH, sO = 8, 12, 16, 20, 24
    s_wave, s_wb, s_head, s_qb, s_koff, s_voff, s_koff2, s_voff2, s_cnt, s_thr, s_t0, s_t1, s_tb = range(28, 41)
    s_tm = 44
    st = Stream(a, FR, NFR, LA, wait_group, cap=8 if NQB == 4 else cap2)

    a(f"""
    s_cmp_ge_u32 s2, 256
    s_cbranch_scc1 {name}_end
    s_load_dwordx4 s[4:7], s[0:1], {KA_K}
    s_load_dwordx2 s[16:17], s[0:1], {KA_WQ}
    s_load_dwordx2 s[20:21], s[0:1], {KA_WS}
    """)
    if timing:
        timing_head(a, s_tm)
    t0, t1, t2, t3, t4, t5, t6 = [tmp[i] for i in range(7)]
    a(f"""
    v_lshrrev_b32 {t0}, 6, v0
    v_and_b32 v0, 63, v0
    v_readfirstlane_b32 s{s_wave}, {t0}
    s_and_b32 s{s_head}, s2, 7
    s_lshl_b32 s{s_head}, s{s_head}, 2
    s_lshr_b32 s{s_t0}, s2, 3
    s_and_b32 s{s_t0}, s{s_t0}, 3
    s_add_u32 s{s_head}, s{s_head}, s{s_t0}
    s_lshr_b32 s{s_qb}, s2, 5
    s_lshl_b32 s{s_wb}, s{s_wave}, 10
    """)
    tr_dma_col(a, t3, [t1, t2])
    a(f"""
    v_lshrrev_b32 {t0}, 3, v0
    s_lshl_b32 s{s_t0}, s{s_wave}, 3
    v_add_u32 {t0}, s{s_t0}, {t0}
    v_lshl_add_u32 {vVd}, {t0}, 8, {t3}
    v_lshl_add_u32 {vWd}, {t0}, 13, {t3}
    v_lshlrev_b32 {vHo}, 4, v0
    """)
    a(f"""
    s_lshl_b32 s{s_tb}, s{s_qb}, 4
    s_mul_i32 s{s_t1}, s{s_wave}, {NQB}
    s_add_u32 s{s_tb}, s{s_tb}, s{s_t1}
    s_waitcnt lgkmcnt(0)
    s_lshl_b32 s{s_t0}, s{s_head}, 8
    s_add_u32 s{sW}, s{sW}, s{s_t0}
    s_addc_u32 s{sW+1}, s{sW+1}, 0
    s_sub_u32 s{sW+2}, {D * H * DH * 2}, s{s_t0}
    s_mov_b32 s{sW+3}, 0x20000
    s_add_u32 s{sO}, s{sH}, {WS_O}
    s_addc_u32 s{sO+1}, s{sH+1}, 0
    s_lshr_b32 s{s_t0}, s{s_tb}, 2
    s_mul_i32 s{s_t0}, s{s_t0}, {20 * 4096}
    s_and_b32 s{s_t1}, s{s_tb}, 3
    s_lshl_b32 s{s_t1}, s{s_t1}, 10
    s_add_u32 s{s_t0}, s{s_t0}, s{s_t1}
    s_add_u32 s{s_t0}, s{s_t0}, {WS_H}
    s_add_u32 s{sH}, s{sH}, s{s_t0}
    s_addc_u32 s{sH+1}, s{sH+1}, 0
    s_sub_u32 s{sH+2}, {20 * 4096}, s{s_t1}
    s_mov_b32 s{sH+3}, 0x20000
    """)

    def dma_tile(kind, slot, tag, soff_imm=None, rowstride=256):
        srd, vo = {"K": (sK, vKd), "V": (sV, vVd), "W": (sW, vWd)}[kind]
        ops = []
        for rg in range(8 // NW):
            for half in range(2):
                n = rg * NW + half * 8
                pre = []
                if soff_imm is not None:
                    pre.append(f"s_mov_b32 s{s_t0}, {soff_imm + rg * 32 * rowstride}")
                    so = s_t0
                else:
                    so = {("K", 0): s_koff, ("K", 1): s_koff2, ("V", 0): s_voff, ("V", 1): s_voff2}[(kind, rg)]
                pre.insert(0, f"s_add_u32 m0, s{s_wb}, {slot * SLOT + n * 1024 - half * 128}")
                off = " offset:128" if half else ""
                ops.append(VmOp(f"buffer_load_dwordx4 {vo}, {sr(srd, 4)}, s{so} offen{off} lds", tag, pre))
        return ops

    def h_loads(stage):
        ops = []
        for ks in range(2):
            for qb in range(NQB):
                pre = [f"s_mov_b32 s{s_t1}, {(stage * 2 + ks) * 4096}"] if qb == 0 else []
                ops.append(VmOp(f"buffer_load_dwordx4 {Hf(stage, ks, qb)}, {vHo}, {sr(sH, 4)}, s{s_t1} offen offset:{qb * 1024}",
                                ("h", stage), pre))
        return ops

    WSLOT = [0, 1, 4, 2, 5, 3, 6, 7, 8, 9]
    w_tile = lambda s: dma_tile("W", WSLOT[s], ("W", s), s * 64 * 8192, 8192)
    for s in range(2):
        for op in w_tile(s) + h_loads(s):
            st.emit_vm(op)

    a(f"""
    s_lshl_b32 s{s_t0}, s{s_head}, 19
    s_add_u32 s{sK}, s4, s{s_t0}
    s_addc_u32 s{sK+1}, s5, 0
    s_mov_b32 s{sK+2}, 0x80000
    s_mov_b32 s{sK+3}, 0x20000
    s_add_u32 s{sV}, s6, s{s_t0}
    s_addc_u32 s{sV+1}, s7, 0
    s_mov_b32 s{sV+2}, 0x80000
    s_mov_b32 s{sV+3}, 0x20000
    s_mov_b32 s{sO+2}, {S * H * DH * 2}
    s_mov_b32 s{sO+3}, 0x20000
    """)
    a(f"""
    v_lshrrev_b32 {t1}, 4, v0
    s_and_b32 s{s_t0}, s{s_wave}, 1
    s_mul_i32 s{s_t0}, s{s_t0}, 6
    v_and_b32 {t2}, 1, {t1}
    v_lshrrev_b32 {t1}, 1, {t1}
    v_lshl_add_u32 {t2}, {t1}, 2, {t2}
    v_xor_b32 {t2}, s{s_t0}, {t2}
    v_and_b32 {t1}, 7, v0
    v_xor_b32 {t2}, {t2}, {t1}
    v_lshlrev_b32 {t2}, 4, {t2}
    v_lshl_add_u32 {vKd}, {t0}, 8, {t2}
    """)
    a(f"""
    v_bfe_u32 {t0}, v0, 1, 1
    v_bfe_u32 {t1}, v0, 2, 1
    v_bfe_u32 {t2}, v0, 3, 1
    v_xor_b32 {t1}, {t1}, {t2}
    v_lshl_add_u32 {t0}, {t2}, 1, {t0}
    v_lshl_add_u32 {t0}, {t1}, 2, {t0}
    v_bfe_u32 {t1}, v0, 4, 1
    v_bfe_u32 {t2}, v0, 5, 1
    v_lshl_add_u32 {t1}, {t1}, 1, {t2}
    v_xor_b32 {t0}, {t0}, {t1}
    v_and_b32 {t1}, 15, v0
    v_lshlrev_b32 {t1}, 7, {t1}
    v_lshl_add_u32 {vKa[0]}, {t0}, 4, {t1}
    v_xor_b32 {vKa[1]}, 64, {vKa[0]}
    """)
    tr_addr_setup(a, vWlo, [t0, t1, t2])
    for i in range(4):
        a(f"v_add_u32 {vVa[i]}, 0x10000, {vWlo[i]}")
        a(f"v_add_u32 {vWhi[i]}, 0x20000, {vWlo[i]}")
    a(f"v_mov_b32 {t6}, {f32hex(2.0 ** thr_log2)}")
    if timing == "series":
        a(f"""
        s_load_dwordx2 s[52:53], s[0:1], {KA_WS}
        s_waitcnt lgkmcnt(0)
        s_add_u32 s52, s52, 0x8000000
        s_addc_u32 s53, s53, 0
        s_mov_b32 s54, 0x8000
        s_mov_b32 s55, 0x20000
        """)
    if prio == "young":
        a(f"""
        s_cmp_ge_u32 s{s_wave}, {NW // 2}
        s_cbranch_scc0 {name}_noprio
        s_setprio 1
        {name}_noprio:
        """)

    def tr_frag(slot, u, db, guard=None):
        base = slot * SLOT
        ar, rel = (vWlo, base) if base < 0x10000 else (vVa, base - 0x10000) if base < 0x20000 else (vWhi, base - 0x20000)
        reads = []
        for e4 in range(2):
            off = rel + (db // 4) * 8192 + (32 * u + 16 * e4) * 128
            reads.append(("ds_read_b64_tr_b16", 2 * e4, 2, ar[db % 4], off))
        return Frag(reads, guard)

    def k_frag(slot, u, kb, s, guard=None):
        off = slot * SLOT + (s // 2) * 8192 + (32 * u + 16 * kb) * 128
        return Frag([("ds_read_b128", 0, 4, vKa[s % 2], off)], guard)

    rare_blocks = {}

    def sm_compute(par):
        n = 8 * NQB
        ex = lambda i: f"v_exp_f32 {E[i % NE]}, {Sq(par, i // 8)[i % 8]}"
        ops = [ex(0), ex(1)]
        for p in range(n // 2):
            qb, first = (2 * p) // 8, (2 * p) % 8 == 0
            e0, e1 = E[(2 * p) % NE], E[(2 * p + 1) % NE]
            if p + 1 < n // 2:
                ops.append(ex(2 * p + 2))
            ops.append(f"v_add_f32 {ts[qb]}, {e0}, {e1}" if first else f"v_add_f32 {ts[qb]}, {ts[qb]}, {e0}")
            if p + 1 < n // 2:
                ops.append(ex(2 * p + 3))
            if not first:
                ops.append(f"v_add_f32 {ts[qb]}, {ts[qb]}, {e1}")
            ops.append(f"v_cvt_pk_bf16_f32 {Pb(par, qb)[p % 4]}, {e0}, {e1}")
        return ops

    def xlane(op, dst, tmp2):
        return [f"v_mov_b32 {tmp2}, {dst}", f"v_permlane16_swap_b32 {dst}, {tmp2}", f"{op} {dst}, {dst}, {tmp2}",
                f"v_mov_b32 {tmp2}, {dst}", f"v_permlane32_swap_b32 {dst}, {tmp2}", f"{op} {dst}, {dst}, {tmp2}"]

    def rowmax(dst, tmp2, src):
        out = [f"v_max3_f32 {dst}, {src[0]}, {src[1]}, {src[2]}",
               f"v_max3_f32 {dst}, {dst}, {src[3]}, {src[4]}",
               f"v_max3_f32 {dst}, {dst}, {src[5]}, {src[6]}",
               f"v_max_f32 {dst}, {dst}, {src[7]}"]
        return out + xlane("v_max_f32", dst, tmp2)

    def sm_ops(par, tag):
        comp = sm_compute(par)
        lab, ret = f"{name}_rare{tag}", f"{name}_ret{tag}"
        cvts = [o for o in comp if o.startswith("v_cvt")][-3:]
        comp = [o for o in comp if o not in cvts]
        if NQB == 4:
            comp.insert(len(comp) - 6, f"v_max3_f32 {t0}, {ts[0]}, {ts[1]}, {ts[2]}")
            comp.append(f"v_max_f32 {t0}, {t0}, {ts[3]}")
        else:
            comp.append(f"v_max_f32 {t0}, {ts[0]}, {ts[1]}")
        comp.append(f"v_cmp_nle_f32 vcc, {t0}, {t6}")
        ops = (cvts, [f"s_cbranch_vccnz {lab}", f"{ret}:"])
        post = [f"v_add_f32 {lsum[qb]}, {lsum[qb]}, {ts[qb]}" for qb in range(NQB)]
        r = [f"{lab}:", "s_nop 15"]
        for qb in range(NQB):
            r += rowmax(t0, t1, Sq(par, qb))
            r += [f"v_max_f32 {t0}, 0, {t0}", f"v_exp_f32 {t1}, -{t0}", "s_nop 0",
                  f"v_mul_f32 {lsum[qb]}, {lsum[qb]}, {t1}"]
            for i in range(32):
                o = O[qb * 32 + i]
                if acc:
                    tt = tmp[2 + i % 4]
                    r += [f"v_accvgpr_read_b32 {tt}, {o}", f"v_mul_f32 {tt}, {tt}, {t1}",
                          f"v_accvgpr_write_b32 {o}, {tt}"]
                else:
                    r.append(f"v_mul_f32 {o}, {o}, {t1}")
            for blk in (negm(qb), Sq(par, qb), Sq(par ^ 1, qb)):
                for i in range(blk.n):
                    r.append(f"v_sub_f32 {blk[i]}, {blk[i]}, {t0}")
        r += sm_compute(par) + ["s_nop 1", f"s_branch {ret}"]
        rare_blocks.setdefault(tag, r)
        return comp, ops, post

    def build(nbodies, last_special):
        items, groups, vms, scal = [], [], [], []
        nst = 16 * NQB
        for s in range(10):
            first = len(items)
            for ks in range(2):
                for db in range(8):
                    g = st.guard_wait([("W", s), ("h", s)]) if (ks == 0 and db == 0) else None
                    fr = tr_frag(WSLOT[s], ks, db, g)
                    for qb in range(NQB):
                        c = "0" if (s == 0 and ks == 0) else str(qacc(qb, db))
                        items.append(Item(f"{MFMA16} {qacc(qb, db)}, {{A}}, {Hf(s, ks, qb)}, {c}", fr))
            ops = []
            if s == 0:
                ops += w_tile(2) + h_loads(2)
            if s + 3 < 10:
                ops += w_tile(s + 3) + h_loads(s + 3)
            else:
                kind, tile = [("K", 0), ("K", 1), ("V", 0)][s - 7]
                ops += dma_tile(kind, {"K": tile, "V": 4 + tile}[kind], (kind, tile), tile * SLOT)
                kind, tile = [("K", 2), ("V", 1), ("K", 3)][s - 7]
                ops += dma_tile(kind, {"K": tile, "V": 4 + tile}[kind], (kind, tile), tile * SLOT)
            vms.append((first + 1, first + nst - 1, ops))
        conv = []
        cs = f32hex(1.4426950408889634 * DH ** -0.5)
        for s in range(4):
            for qb in range(NQB):
                for hf in range(2):
                    src = qacc(qb, 2 * s + hf)
                    for i in range(4):
                        conv.append(f"v_mul_f32 {src[i]}, {cs}, {src[i]}")
                    for j in range(2):
                        conv.append(f"v_cvt_pk_bf16_f32 {Qf(qb, s)[2 * hf + j]}, {src[2 * j]}, {src[2 * j + 1]}")
            for qb in range(NQB):
                for j in range(2):
                    conv.append(f"v_permlane16_swap_b32 {Qf(qb, s)[j]}, {Qf(qb, s)[2 + j]}")
        conv += [f"s_mov_b32 s{s_koff}, {4 * SLOT}", f"s_mov_b32 s{s_voff}, {2 * SLOT}",
                 f"s_mov_b32 s{s_koff2}, {4 * SLOT + 8192}", f"s_mov_b32 s{s_voff2}, {2 * SLOT + 8192}",
                 f"s_mov_b32 s{s_cnt}, 8"]
        items[-1].block += conv

        def qk(unit, kslot, guard=None, first=False, phantom=False):
            par = unit % 2
            for kb in range(2):
                for s in range(4):
                    fr = k_frag(kslot, unit % 2, kb, s, guard if (s == 0 and kb == 0) else None)
                    for qb in range(NQB):
                        c = ("0" if first else str(negm(qb))) if s == 0 else str(Sb(par, qb, kb))
                        items.append(Item(f"{MFMA16} {Sb(par, qb, kb)}, {{A}}, {Qf(qb, s)}, {c}", fr, phantom))

        def pv(unit, vslot):
            par = unit % 2
            for db in range(8):
                fr = tr_frag(vslot, unit % 2, db)
                for qb in range(NQB):
                    items.append(Item(f"{MFMA16} {Ob(qb, db)}, {{A}}, {Pb(par, qb)}, {Ob(qb, db)}", fr))

        def add_sm(g0, par, tag, post):
            comp, (cvts, br), post2 = sm_ops(par, tag)
            g1 = len(items) - 1
            groups.append((g0, g1 - 2, post + comp))
            items[g1 - 1].valu += cvts[:2]
            items[g1].sc += br
            items[g1].valu += cvts[2:]
            return post2

        g0 = len(items)
        qk(0, 0, st.guard_wait([("K", 0)]), first=True)
        zero = [f"v_accvgpr_write_b32 {O[i]}, 0" if acc else f"v_mov_b32 {O[i]}, 0" for i in range(32 * NQB)]
        zero += [f"v_mov_b32 {lsum[qb]}, 0" for qb in range(NQB)]
        groups.append((g0, len(items) - 1, zero))
        init = []
        for qb in range(NQB):
            init += rowmax(tmp[qb], t4, Sq(0, qb))
        for qb in range(NQB):
            init += [f"v_sub_f32 {negm(qb)[i]}, 0, {tmp[qb]}" for i in range(4)]
        for qb in range(NQB):
            init += [f"v_sub_f32 {Sq(0, qb)[i]}, {Sq(0, qb)[i]}, {tmp[qb]}" for i in range(8)]
        items[-1].block += init
        g0 = len(items)
        qk(1, 0)
        post = add_sm(g0, 0, "p", [])
        marks = []
        nper = 32 * NQB
        for T in range(nbodies):
            last = last_special and T == nbodies - 1
            marks.append(len(items))
            b0 = len(items)
            if T == 0:
                guard = st.guard_wait([("K", 1), ("V", 0)])
            else:
                guard = lambda: f"s_waitcnt vmcnt({2 * 16 // NW})"
            ks_, vs_ = (T + 1) % 4, 4 + T % 4
            tag = ("t" if last else "b") + str(T % 4)
            g0 = len(items)
            qk(2 * T + 2, ks_, guard, phantom=last)
            pv(2 * T, vs_)
            post = add_sm(g0, 1, tag + "a", post)
            g0 = len(items)
            qk(2 * T + 3, ks_, phantom=last)
            last_k_use = len(items) - 1
            pv(2 * T + 1, vs_)
            if last:
                groups.append((g0, len(items) - 1, post))
            else:
                post = add_sm(g0, 0, tag + "b", post)
                assert last_k_use < b0 + nper - LA - 2
                dm = dma_tile("K", T % 4, ("x", T)) + dma_tile("V", 4 + (T + 2) % 4, ("x", T))
                upd = [f"s_add_u32 s{s_koff}, s{s_koff}, {SLOT}", f"s_add_u32 s{s_voff}, s{s_voff}, {SLOT}"]
                if NW == 4:
                    upd += [f"s_add_u32 s{s_koff2}, s{s_koff2}, {SLOT}", f"s_add_u32 s{s_voff2}, s{s_voff2}, {SLOT}"]
                vms.append((b0 + 2, b0 + nper - LA - 3, dm))
                scal += [(u, b0 + nper - LA + 1, b0 + nper - 2) for u in upd]
        marks.append(len(items))
        st.layout(items, marks[-2] if last_special else None)
        gb = marks[0] - LA
        assert "s_barrier" in items[gb].sc
        items[gb].sc.insert(items[gb].sc.index("s_barrier"), "s_waitcnt lgkmcnt(0)")
        for g0, g1, ops in vms:
            st.place_vm(items, g0, g1, ops)
        for l, lo, hi in scal:
            st.place_scalar(items, l, lo, hi)
        return items, groups, marks

    head_lines = list(a.lines)
    vm0 = list(st.vm.ops)
    items, groups, marks = build(9, False)
    segs = st.emit(items, groups, marks)
    print("estimated cycles: prologue", sum(st.est[:marks[0]]), "body", sum(st.est[marks[1]:marks[2]]))
    L = a.lines
    pre = L[:segs[0]]
    body = [L[segs[i]:segs[i + 1]] for i in range(8)]
    for i in range(4):
        assert body[i] == body[i + 4], f"loop body {i} is not periodic"
    a.lines = list(head_lines)
    st.vm.ops = list(vm0)
    items, groups, marks = build(4, True)
    segs2 = st.emit(items, groups, marks)
    L2 = a.lines
    assert L2[:segs2[3]] == L[:segs[3]]
    tail = L2[segs2[3]:segs2[4]]

    def stamp():
        if timing != "series":
            return
        a(f"""
        s_memtime s[{s_tm+4}:{s_tm+5}]
        s_memrealtime s[{s_tm+6}:{s_tm+7}]
        s_waitcnt lgkmcnt(0)
        s_sub_u32 s{s_tm+4}, s{s_tm+4}, s{s_tm}
        s_sub_u32 s{s_tm+6}, s{s_tm+6}, s{s_tm+2}
        v_mov_b32 {t2}, s{s_tm+4}
        v_mov_b32 {t3}, s{s_tm+6}
        s_lshl_b32 s{s_t0}, s2, 7
        s_lshl_b32 s{s_t1}, s{s_cnt}, 3
        s_add_u32 s{s_t0}, s{s_t0}, s{s_t1}
        v_mov_b32 {t4}, s{s_t0}
        buffer_store_dword {t2}, {t4}, s[52:55], 0 offen
        buffer_store_dword {t3}, {t4}, s[52:55], 0 offen offset:4
        """)

    def drop(pref):
        return [[l for l in b if not l.strip().startswith(pref)] for b in body]
    if "nosm" in abl:
        body = drop(("v_exp", "v_add_f32", "v_cvt_pk", "v_max", "v_cmp", "s_cbranch_vcc"))
    if "nods" in abl:
        body = drop(("ds_read", "s_waitcnt lgkm"))
    if "nodma" in abl:
        body = drop(("buffer_load", "s_add_u32 m0"))
    if "nomfma" in abl:
        body = drop(("v_mfma", "s_cbranch_vcc"))

    a.lines = list(pre)
    a.label(f"{name}_loop")
    stamp()
    a.extend(body[0] + body[1] + body[2])
    a(f"""
    s_sub_u32 s{s_cnt}, s{s_cnt}, 1
    s_cmp_eq_u32 s{s_cnt}, 0
    s_cbranch_scc1 {name}_tail
    """)
    a.extend(body[3])
    a(f"s_branch {name}_loop")
    a.label(f"{name}_tail")
    stamp()
    a.extend(tail)
    a(f"""
    s_lshr_b32 s{s_t1}, s{s_tb}, 2
    s_lshl_b32 s{s_t1}, s{s_t1}, 19
    s_and_b32 s{s_t0}, s{s_tb}, 3
    s_lshl_b32 s{s_t0}, s{s_t0}, 10
    s_add_u32 s{s_t1}, s{s_t1}, s{s_t0}
    s_lshl_b32 s{s_t0}, s{s_head}, 14
    s_add_u32 s{s_t1}, s{s_t1}, s{s_t0}
    """)
    for qb in range(NQB):
        for l in xlane("v_add_f32", lsum[qb], tmp[qb]):
            a(l)
    for qb in range(NQB):
        a(f"v_rcp_f32 {lsum[qb]}, {lsum[qb]}")
    k = 0
    for i in range(4):
        a(f"s_add_u32 s{s_t0}, s{s_t1}, {i * 4096}")
        for qb in range(NQB):
            dst = Q.sub(4 * (k % 8), 4)
            k += 1
            for j in range(4):
                src = Ob(qb, 2 * i + j // 2)
                x0, x1 = src[2 * (j % 2)], src[2 * (j % 2) + 1]
                e0, e1 = E[(2 * j) % NE], E[(2 * j + 1) % NE]
                if acc:
                    a(f"v_accvgpr_read_b32 {e0}, {x0}")
                    a(f"v_accvgpr_read_b32 {e1}, {x1}")
                    x0, x1 = e0, e1
                a(f"v_mul_f32 {e0}, {x0}, {lsum[qb]}")
                a(f"v_mul_f32 {e1}, {x1}, {lsum[qb]}")
                a(f"v_cvt_pk_bf16_f32 {dst[j]}, {e0}, {e1}")
            a(f"buffer_store_dwordx4 {dst}, {vHo}, {sr(sO, 4)}, s{s_t0} offen offset:{qb * 1024}")
    if timing:
        timing_tail(a, s_tm, s_wave, EQ.sub(0, 2), t2)
    a.label(f"{name}_end")
    a("s_endpgm")
    for tag, r in rare_blocks.items():
        for l in r:
            a(l)
    if acc:
        return a.lines, 256 + aa.p, 256, 64 * NW
    return a.lines, va.p, (va.p + 3) // 4 * 4, 64 * NW
```

```python
import sys, os
sys.path.insert(0, os.path.dirname(__file__))
from asmlib import kernel_text
from attn import gen_attn

HEADER = open(os.path.join(os.path.dirname(__file__), "..", "cdna_kernels",
              "adaLN_cond__gqa_block_cached__glu_gated_reglu__prompt.s.ref")).read().split("; Override launch")[0]


def build(kernels, path, verbose=False, text_last=None):
    head = HEADER
    for name, lines, vgpr, accum, block, grid, lds in kernels:
        head += f"; @launch kernel={name} grid=({grid},1,1) block=({block},1,1) lds={lds}\n"
    head += '.amdgcn_target "amdgcn-amd-amdhsa--gfx950"\n'
    texts, descs, seen = [], [], set()
    for name, lines, vgpr, accum, block, grid, lds in sorted(kernels, key=lambda k: k[0] == text_last):
        if name in seen:
            continue
        seen.add(name)
        t, d, added = kernel_text(name, lines, vgpr, 96, accum, verbose)
        print(f"{name}: {len(lines)} lines, vgpr {vgpr}, accum {accum}, {added} nops added", file=sys.stderr)
        texts.append(t)
        descs.append(d)
    open(path, "w").write(head + "".join(texts) + "".join(descs))


if __name__ == "__main__":
    for nq in (1, 2):
        lines, vgpr, accum, block = gen_attn("attn_kernel", NQ=nq, timing=True)
        build([("attn_kernel", lines, vgpr, accum, block, 256, 163840)], f"attn_nq{nq}.s", verbose=len(sys.argv) > 1)
```

```python
from asmlib import Asm, Alloc, Reg, sr, VmTracker
from stream import *
from layout import *
from small import srd
from attn16 import timing_head, timing_tail, tr_addr_setup, tr_dma_col


def gen_gemmn(name, NKS, x_off, w_off, res_ka, res_off, out_ka, out_off, gate_idx, PD=6, timing=False):
    a = Asm()
    steps = (NKS + 3) // 4
    va = Alloc(1, 256)
    t = va.get(7)
    vX = va.get(4)
    vW = va.get(2)
    vR = va.get(1)
    vG = va.get(1)
    vL = va.get(4)
    RES = va.get(10, 2)
    ring = va.get(36 * PD, 4)
    aa = Alloc(0, 256, acc=True)
    ACC = aa.get(80, 4)
    G = aa.get(20, 4)
    acc = lambda tl, j: ACC.sub((tl * 5 + j) * 4, 4)
    Xf = lambda i, tl: ring.sub((i % PD) * 36 + tl * 4, 4)
    Wf = lambda i, j: ring.sub((i % PD) * 36 + 16 + j * 4, 4)
    sX, sW, sR, sG, sO = 8, 12, 16, 20, 24
    s_wave, s_tb, s_nb, s_t0, s_t1, s_xo, s_wo = range(28, 35)
    a(f"""
    s_cmp_ge_u32 s2, 256
    s_cbranch_scc1 {name}_end
    s_load_dwordx2 s[4:5], s[0:1], {KA_WS}
    s_load_dwordx2 s[6:7], s[0:1], {res_ka}
    s_load_dwordx2 s[36:37], s[0:1], {out_ka}
    """)
    if timing:
        timing_head(a, 44)
    a(f"""
    v_lshrrev_b32 {t[0]}, 6, v0
    v_and_b32 v0, 63, v0
    v_readfirstlane_b32 s{s_wave}, {t[0]}
    s_and_b32 s{s_tb}, s2, 7
    s_lshl_b32 s{s_tb}, s{s_tb}, 2
    s_bfe_u32 s{s_t0}, s2, 0x20003
    s_add_u32 s{s_tb}, s{s_tb}, s{s_t0}
    s_lshr_b32 s{s_nb}, s2, 5
    v_lshlrev_b32 {vW[0]}, 4, v0
    v_add_u32 {vW[1]}, 4096, {vW[0]}
    """)
    for tl in range(4):
        a(f"""
        v_add_u32 {t[1]}, {tl}, {t[0]}
        v_and_b32 {t[1]}, 3, {t[1]}
        v_lshl_add_u32 {vX[tl]}, {t[1]}, 10, {vW[0]}
        v_mul_u32_u24 {t[1]}, {15 * 1024}, {t[1]}
        v_add_u32 {vL[tl]}, {t[1]}, {vW[0]}
        """)
    a(f"""
    s_mul_i32 s{s_t0}, s{s_tb}, {NKS * 4096}
    s_mul_i32 s{s_t1}, s{s_nb}, {NKS * 5120}
    s_lshl_b32 s{s_xo}, s{s_wave}, 12
    s_mul_i32 s{s_wo}, s{s_wave}, 5120
    s_waitcnt lgkmcnt(0)
    """)
    srd(a, sX, 4, off_lines_reg=s_t0, off_imm=x_off, size=NKS * 4096)
    srd(a, sW, 4, off_lines_reg=s_t1, off_imm=w_off, size=NKS * 5120)
    vm = VmTracker()

    def loads(i):
        out = []
        for j in range(5):
            out.append(f"buffer_load_dwordx4 {Wf(i, j)}, {vW[j // 4]}, {sr(sW, 4)}, s{s_wo} offen offset:{(j % 4) * 1024}")
        for tl in range(4):
            out.append(f"buffer_load_dwordx4 {Xf(i, tl)}, {vX[tl]}, {sr(sX, 4)}, s{s_xo} offen")
        return out
    adv = [f"s_add_u32 s{s_xo}, s{s_xo}, {4 * 4096}", f"s_add_u32 s{s_wo}, s{s_wo}, {4 * 5120}"]
    for i in range(min(PD - 1, steps)):
        for l in loads(i):
            a(l)
            vm.issue(i)
        for l in adv:
            a(l)
        if i == 0:
            a(f"""
            v_and_b32 {t[1]}, 15, v0
            v_lshl_add_u32 {t[1]}, {t[0]}, 4, {t[1]}
            v_mul_u32_u24 {t[1]}, {D * 2}, {t[1]}
            v_lshrrev_b32 {t[2]}, 4, v0
            v_mul_u32_u24 {t[2]}, 40, {t[2]}
            v_add_u32 {vR}, {t[1]}, {t[2]}
            v_lshlrev_b32 {vG}, 1, {t[2]}
            s_mul_i32 s{s_t0}, s{s_tb}, {64 * D * 2}
            s_mul_i32 s{s_t1}, s{s_nb}, 160
            s_add_u32 s{s_t0}, s{s_t0}, s{s_t1}
            s_sub_u32 s38, {64 * D * 2}, s{s_t1}
            """)
            srd(a, sR, 6, off_lines_reg=s_t0, off_imm=res_off, size_reg=38)
            srd(a, sO, 36, off_lines_reg=s_t0, off_imm=out_off, size_reg=38)
            a(f"s_mul_i32 s{s_t1}, s{s_nb}, 320")
            srd(a, sG, 4, off_lines_reg=s_t1, off_imm=WS_MOD + gate_idx * D * 4, size=320)
    for i in range(steps):
        n = vm.count_after(lambda tg: tg == i)
        a(f"s_waitcnt vmcnt({n})")
        pend = []
        if i + PD - 1 < steps:
            pend = [(l, i + PD - 1) for l in loads(i + PD - 1)]
        elif i + PD - 1 == steps:
            pend = [(f"buffer_load_dwordx2 {RES.sub(2 * j, 2)}, {vR}, {sr(sR, 4)}, 0 offen offset:{8 * j}", "e") for j in range(5)]
            pend += [(f"buffer_load_dwordx4 {G.sub(4 * j, 4)}, {vG}, {sr(sG, 4)}, 0 offen offset:{16 * j}", "e") for j in range(5)]
        k = 0
        for j in range(5):
            for tl in range(4):
                c = "0" if i == 0 else str(acc(tl, j))
                a(f"{MFMA16} {acc(tl, j)}, {Wf(i, j)}, {Xf(i, tl)}, {c}")
                if k % 2 == 0 and pend:
                    l, tg = pend.pop(0)
                    a(l)
                    vm.issue(tg)
                k += 1
        assert not pend
        if i + PD - 1 < steps:
            for l in adv:
                a(l)
    for tl in range(1, 4):
        for j in range(5):
            a(f"ds_write_b128 {vL[tl]}, {acc(tl, j)} offset:{((tl - 1) * 5 + j) * 1024}")
    V = ring.sub(0, 20)
    Pt = ring.sub(20, 60)
    for i in range(20):
        a(f"v_accvgpr_read_b32 {V[i]}, {ACC[i]}")
    a("s_waitcnt lgkmcnt(0)")
    a("s_barrier")
    for s in range(3):
        for j in range(5):
            a(f"ds_read_b128 {Pt.sub((s * 5 + j) * 4, 4)}, {vL[0]} offset:{(s * 5 + j) * 1024}")
    Gv = ring.sub(80, 20)
    a("s_waitcnt vmcnt(0)")
    for i in range(20):
        a(f"v_accvgpr_read_b32 {Gv[i]}, {G[i]}")
    for s in range(3):
        a(f"s_waitcnt lgkmcnt({10 - 5 * s})")
        for i in range(20):
            a(f"v_add_f32 {V[i]}, {V[i]}, {Pt[s * 20 + i]}")
    for j in range(5):
        for p in range(2):
            r = RES[2 * j + p]
            i0 = 4 * j + 2 * p
            a(f"v_lshlrev_b32 {t[1]}, 16, {r}")
            a(f"v_and_b32 {t[2]}, 0xffff0000, {r}")
            a(f"v_fmac_f32 {t[1]}, {V[i0]}, {Gv[i0]}")
            a(f"v_fmac_f32 {t[2]}, {V[i0 + 1]}, {Gv[i0 + 1]}")
            a(f"v_cvt_pk_bf16_f32 {r}, {t[1]}, {t[2]}")
        a(f"buffer_store_dwordx2 {RES.sub(2 * j, 2)}, {vR}, {sr(sO, 4)}, 0 offen offset:{8 * j}")
    if timing:
        timing_tail(a, 44, s_wave, ring.sub(0, 2), t[3])
    a.label(f"{name}_end")
    a("s_endpgm")
    return (name, a.lines, 256 + aa.p, 256, 256, 256, 61440)


def gen_gateup(name, la_frags=5, timing=False):
    NQB, NW, SLOT = 4, 4, 16384
    a = Asm()
    va = Alloc(1, 256)
    aa = Alloc(0, 256, acc=True)
    t = va.get(7)
    vA = [va.get(4) for _ in range(3)]
    vWd, vHo = va.get(1), va.get(1)
    ACC = va.get(128, 4)
    OUT = va.get(32, 4)
    Hr = aa.get(128, 4)
    FR = aa.get(32, 4)
    acc = lambda qb, db: ACC.sub((qb * 8 + db) * 4, 4)
    Hf = lambda stage, ks, qb: Hr.sub((((stage % 4) * 2 + ks) * NQB + qb) * 4, 4)
    sG, sU, sH, sO = 8, 12, 16, 20
    s_wave, s_wb, s_fb, s_tb, s_t0, s_t1 = range(28, 34)
    st = Stream(a, FR, 8, la_frags * NQB, 2)
    RS = F * 2
    a(f"""
    s_cmp_ge_u32 s2, 216
    s_cbranch_scc1 {name}_end
    s_load_dwordx4 s[4:7], s[0:1], {KA_WG}
    s_load_dwordx2 s[24:25], s[0:1], {KA_WS}
    """)
    if timing:
        timing_head(a, 44)
    a(f"""
    v_lshrrev_b32 {t[0]}, 6, v0
    v_and_b32 v0, 63, v0
    v_readfirstlane_b32 s{s_wave}, {t[0]}
    s_and_b32 s{s_tb}, s2, 7
    s_lshr_b32 s{s_fb}, s2, 3
    """)
    tr_dma_col(a, t[3], [t[1], t[2]])
    a(f"""
    s_lshl_b32 s{s_tb}, s{s_tb}, 2
    s_add_u32 s{s_tb}, s{s_tb}, s{s_wave}
    s_lshl_b32 s{s_wb}, s{s_wave}, 10
    v_lshrrev_b32 {t[1]}, 3, v0
    v_lshl_add_u32 {t[1]}, {t[0]}, 3, {t[1]}
    v_mul_u32_u24 {t[1]}, {RS}, {t[1]}
    v_add_u32 {vWd}, {t[1]}, {t[3]}
    v_lshlrev_b32 {vHo}, 4, v0
    s_lshl_b32 s{s_t0}, s{s_fb}, 7
    s_sub_u32 s34, {D * RS}, s{s_t0}
    s_mul_i32 s{s_t1}, s{s_tb}, {20 * 4096}
    s_waitcnt lgkmcnt(0)
    """)
    srd(a, sG, 4, off_lines_reg=s_t0, size_reg=34)
    srd(a, sU, 6, off_lines_reg=s_t0, size_reg=34)
    srd(a, sH, 24, off_lines_reg=s_t1, off_imm=WS_H2, size=20 * 4096)

    def w_tile(s):
        ops = []
        for rg in range(2):
            for half in range(2):
                n = rg * NW + half * 8
                pre = [f"s_add_u32 m0, s{s_wb}, {s * SLOT + n * 1024}",
                       f"s_mov_b32 s{s_t0}, {(s * 64 + rg * 32) * RS}"]
                ops.append(VmOp(f"buffer_load_dwordx4 {vWd}, {sr(sU if half else sG, 4)}, s{s_t0} offen lds", ("W", s), pre))
        return ops

    def h_loads(stage):
        ops = []
        for ks in range(2):
            for qb in range(NQB):
                pre = [f"s_mov_b32 s{s_t1}, {(stage * 2 + ks) * 4096}"] if qb == 0 else []
                ops.append(VmOp(f"buffer_load_dwordx4 {Hf(stage, ks, qb)}, {vHo}, {sr(sH, 4)}, s{s_t1} offen offset:{qb * 1024}",
                                ("h", stage), pre))
        return ops
    for s in range(2):
        for op in w_tile(s) + h_loads(s):
            st.emit_vm(op)
    tr_addr_setup(a, vA[0], [t[1], t[2], t[3]])
    for i in range(4):
        a(f"v_add_u32 {vA[1][i]}, 0x10000, {vA[0][i]}")
        a(f"v_add_u32 {vA[2][i]}, 0x20000, {vA[0][i]}")
    a(f"""
    s_mul_i32 s{s_t0}, s{s_tb}, {54 * 4096}
    s_lshl_b32 s34, s{s_fb}, 13
    s_add_u32 s{s_t0}, s{s_t0}, s34
    """)
    srd(a, sO, 24, off_lines_reg=s_t0, off_imm=WS_ACT, size=8192)

    def tr_frag(slot, u, db, guard=None):
        base = slot * SLOT
        ar, rel = vA[base >> 16], base & 0xffff
        return Frag([("ds_read_b64_tr_b16", 2 * e4, 2, ar[db % 4], rel + (db // 4) * 8192 + (32 * u + 16 * e4) * 128)
                     for e4 in range(2)], guard)
    items, vms = [], []
    for s in range(10):
        first = len(items)
        for ks in range(2):
            for db in range(8):
                g = st.guard_wait([("W", s), ("h", s)]) if (ks == 0 and db == 0) else None
                fr = tr_frag(s, ks, db, g)
                for qb in range(NQB):
                    c = "0" if (s == 0 and ks == 0) else str(acc(qb, db))
                    items.append(Item(f"{MFMA16} {acc(qb, db)}, {{A}}, {Hf(s, ks, qb)}, {c}", fr))
        ops = []
        if s == 0:
            ops += w_tile(2) + h_loads(2)
        if s + 3 < 10:
            ops += w_tile(s + 3) + h_loads(s + 3)
        if ops:
            vms.append((first + 1, first + 63, ops))
    st.layout(items)
    for g0, g1, ops in vms:
        st.place_vm(items, g0, g1, ops)
    st.emit(items, [])
    for i in range(2):
        a(f"s_mov_b32 s{s_t0}, {i * 4096}")
        for qb in range(NQB):
            dst = OUT.sub((i * 4 + qb) * 4, 4)
            for hf in range(2):
                gt, up = acc(qb, 2 * i + hf), acc(qb, 4 + 2 * i + hf)
                for r in range(4):
                    a(f"v_max_f32 {gt[r]}, 0, {gt[r]}")
                for r in range(4):
                    a(f"v_mul_f32 {gt[r]}, {gt[r]}, {up[r]}")
                for j in range(2):
                    a(f"v_cvt_pk_bf16_f32 {dst[2 * hf + j]}, {gt[2 * j]}, {gt[2 * j + 1]}")
            a(f"buffer_store_dwordx4 {dst}, {vHo}, {sr(sO, 4)}, s{s_t0} offen offset:{qb * 1024}")
    if timing:
        timing_tail(a, 44, s_wave, ACC.sub(0, 2), t[3])
    a.label(f"{name}_end")
    a("s_endpgm")
    return (name, a.lines, 256 + aa.p, 256, 256, 216, 163840)
```

```python
KA_X, KA_K, KA_V, KA_WQ, KA_WO, KA_BX, KA_WG, KA_WU, KA_WD, KA_C, KA_WMOD, KA_OUT, KA_DBG, KA_WS = [8 * i for i in range(14)]

S, D, H, DH, F = 2048, 640, 32, 128, 1728

WS_MOD = 0x0
WS_H = 0x10000
WS_O = WS_H + S * D * 2
WS_X1 = WS_O + S * H * DH * 2
WS_H2 = WS_X1 + S * D * 2
WS_ACT = WS_H2 + S * D * 2
WS_WOF = WS_ACT + S * F * 2
WS_WDF = WS_WOF + H * DH * D * 2
WS_PART = WS_WDF + F * D * 2
WS_END = WS_PART + 4 * S * D * 2
```

```python
from asmlib import Asm, Alloc, Reg, sr
from stream import f32hex
from layout import *


def srd(a, dst, base, off_lines_reg=None, off_imm=0, size=None, size_reg=None):
    if off_lines_reg is not None:
        a(f"s_add_u32 s{dst}, s{base}, s{off_lines_reg}")
        a(f"s_addc_u32 s{dst+1}, s{base+1}, 0")
        if off_imm:
            a(f"s_add_u32 s{dst}, s{dst}, {off_imm}")
            a(f"s_addc_u32 s{dst+1}, s{dst+1}, 0")
    else:
        a(f"s_add_u32 s{dst}, s{base}, {off_imm}")
        a(f"s_addc_u32 s{dst+1}, s{base+1}, 0")
    a(f"s_mov_b32 s{dst+2}, {size if size_reg is None else 's%d' % size_reg}")
    a(f"s_mov_b32 s{dst+3}, 0x20000")


def round_bf16(a, v, tmp):
    a(f"v_cvt_pk_bf16_f32 {v}, {v}, {v}")
    a(f"v_and_b32 {v}, 0xffff0000, {v}")


def mod_body(a, name, wg):
    a(f"""
    s_load_dwordx4 s[4:7], s[0:1], {KA_C}
    s_load_dwordx2 s[16:17], s[0:1], {KA_WS}
    v_and_b32 v1, 3, v0
    v_lshrrev_b32 v2, 2, v0
    v_lshlrev_b32 v3, 1, v2
    v_mul_u32_u24 v4, {6 * D * 2}, v2
    v_lshl_add_u32 v4, v1, 4, v4
    s_lshl_b32 s20, s{wg}, 6
    s_waitcnt lgkmcnt(0)
    """)
    srd(a, 8, 4, size=D * 2)
    srd(a, 12, 6, size=D * 6 * D * 2)
    W = Reg(16, 40)
    C = Reg(56, 10)
    ACC = Reg(8, 8)
    for i in range(10):
        a(f"buffer_load_ushort {C[i]}, v3, s[8:11], 0 offen offset:{128 * i}")
    for i in range(10):
        a(f"s_add_u32 s21, s20, {64 * i * 6 * D * 2}")
        a(f"buffer_load_dwordx4 {W.sub(4 * i, 4)}, v4, s[12:15], s21 offen")
    for j in range(8):
        a(f"v_mov_b32 {ACC[j]}, 0")
    a("s_waitcnt vmcnt(10)")
    for i in range(10):
        a(f"v_lshlrev_b32 {C[i]}, 16, {C[i]}")
        a(f"v_mul_f32 v5, {f32hex(-1.4426950408889634)}, {C[i]}")
        a(f"v_exp_f32 v5, v5")
        a(f"v_add_f32 v5, 1.0, v5")
        a(f"v_rcp_f32 v5, v5")
        a(f"v_mul_f32 {C[i]}, {C[i]}, v5")
        round_bf16(a, C[i], None)
    for i in range(10):
        a(f"s_waitcnt vmcnt({9 - i})")
        for j in range(4):
            w = W[4 * i + j]
            a(f"v_lshlrev_b32 v5, 16, {w}")
            a(f"v_and_b32 v6, 0xffff0000, {w}")
            a(f"v_fmac_f32 {ACC[2 * j]}, v5, {C[i]}")
            a(f"v_fmac_f32 {ACC[2 * j + 1]}, v6, {C[i]}")
    a(f"""
    v_lshlrev_b32 v5, 5, v0
    ds_write_b128 v5, {ACC.sub(0, 4)}
    ds_write_b128 v5, {ACC.sub(4, 4)} offset:16
    s_waitcnt lgkmcnt(0)
    s_barrier
    v_and_b32 v1, 31, v0
    v_lshrrev_b32 v2, 5, v0
    v_lshlrev_b32 v5, 2, v1
    v_lshl_add_u32 v5, v2, 10, v5
    """)
    for i in range(8):
        a(f"ds_read_b32 {W[i]}, v5 offset:{128 * i}")
    a("s_waitcnt lgkmcnt(0)")
    for i in range(1, 8):
        a(f"v_add_f32 {W[0]}, {W[0]}, {W[i]}")
    a(f"""
    s_barrier
    v_lshlrev_b32 v5, 2, v0
    ds_write_b32 v5, {W[0]}
    s_waitcnt lgkmcnt(0)
    s_barrier
    v_lshlrev_b32 v5, 2, v1
    """)
    for i in range(8):
        a(f"ds_read_b32 {W[i]}, v5 offset:{128 * i}")
    a("s_waitcnt lgkmcnt(0)")
    for i in range(1, 8):
        a(f"v_add_f32 {W[0]}, {W[0]}, {W[i]}")
    round_bf16(a, W[0], None)
    a(f"""
    s_sub_u32 s21, s{wg}, 20
    s_cmp_lt_u32 s21, 20
    s_cselect_b32 s22, 1.0, 0
    s_sub_u32 s21, s{wg}, 80
    s_cmp_lt_u32 s21, 20
    s_cselect_b32 s22, 1.0, s22
    v_add_f32 {W[0]}, s22, {W[0]}
    """)
    round_bf16(a, W[0], None)
    srd(a, 8, 16, off_imm=WS_MOD, size=3840 * 4)
    a(f"""
    s_lshl_b32 s20, s{wg}, 7
    v_cmp_gt_u32 vcc, 32, v0
    s_and_saveexec_b64 s[24:25], vcc
    s_cbranch_execz {name}_modend
    buffer_store_dword {W[0]}, v5, s[8:11], s20 offen
    {name}_modend:
    """)


def gen_mod(name):
    a = Asm()
    a(f"s_cmp_ge_u32 s2, 120\ns_cbranch_scc1 {name}_end")
    mod_body(a, name, 2)
    a.label(f"{name}_end")
    a("s_endpgm")
    return (name, a.lines, 72, 72, 256, 120, 8192)


def ln_body(a, wg, src_ka, src_off, dst_off, shift_idx, scale_idx):
    X = Reg(16, 20)
    Xf = Reg(40, 40)
    SC = Reg(80, 40)
    SH = Reg(120, 40)
    a(f"""
    s_load_dwordx2 s[4:5], s[0:1], {src_ka}
    s_load_dwordx2 s[6:7], s[0:1], {KA_WS}
    v_and_b32 v1, 3, v0
    v_lshrrev_b32 v2, 6, v0
    v_lshl_add_u32 v1, v2, 2, v1
    v_bfe_u32 v2, v0, 2, 2
    v_bfe_u32 v3, v0, 4, 2
    v_lshlrev_b32 v4, 2, v2
    v_lshl_add_u32 v4, v3, 5, v4
    v_mul_u32_u24 v5, {D * 2}, v1
    v_lshl_add_u32 v5, v4, 1, v5
    v_lshlrev_b32 v6, 2, v4
    v_lshlrev_b32 v7, 4, v1
    v_lshl_add_u32 v7, v2, 8, v7
    v_lshl_add_u32 v7, v3, 12, v7
    s_mul_i32 s20, s{wg}, {16 * D * 2}
    s_waitcnt lgkmcnt(0)
    """)
    srd(a, 8, 4, off_lines_reg=20, off_imm=src_off, size=16 * D * 2)
    srd(a, 12, 6, off_imm=WS_MOD, size=3840 * 4)
    for i in range(5):
        for e4 in range(2):
            a(f"buffer_load_dwordx2 {X.sub(4 * i + 2 * e4, 2)}, v5, s[8:11], 0 offen offset:{256 * i + 32 * e4}")
    a(f"s_mov_b32 s21, {scale_idx * D * 4}")
    a(f"s_mov_b32 s22, {shift_idx * D * 4}")
    for i in range(5):
        for e4 in range(2):
            a(f"buffer_load_dwordx4 {SC.sub(8 * i + 4 * e4, 4)}, v6, s[12:15], s21 offen offset:{512 * i + 64 * e4}")
            a(f"buffer_load_dwordx4 {SH.sub(8 * i + 4 * e4, 4)}, v6, s[12:15], s22 offen offset:{512 * i + 64 * e4}")
    a(f"""
    s_lshr_b32 s20, s{wg}, 2
    s_mul_i32 s20, s20, {20 * 4096}
    s_and_b32 s21, s{wg}, 3
    s_lshl_b32 s21, s21, 10
    s_add_u32 s20, s20, s21
    s_sub_u32 s23, {20 * 4096}, s21
    """)
    srd(a, 16, 6, off_lines_reg=20, off_imm=dst_off, size_reg=23)
    a("s_waitcnt vmcnt(20)")
    for i in range(20):
        a(f"v_lshlrev_b32 {Xf[2 * i]}, 16, {X[i]}")
        a(f"v_and_b32 {Xf[2 * i + 1]}, 0xffff0000, {X[i]}")

    def reduce(v, t):
        a(f"""
        v_add_f32_dpp {v}, {v}, {v} row_ror:4 row_mask:0xf bank_mask:0xf
        v_add_f32_dpp {v}, {v}, {v} row_ror:8 row_mask:0xf bank_mask:0xf
        v_mov_b32 {t}, {v}
        v_permlane16_swap_b32 {v}, {t}
        v_add_f32 {v}, {v}, {t}
        v_mov_b32 {t}, {v}
        v_permlane32_swap_b32 {v}, {t}
        v_add_f32 {v}, {v}, {t}
        """)
    a(f"v_add_f32 v8, {Xf[0]}, {Xf[1]}")
    a(f"v_add_f32 v9, {Xf[2]}, {Xf[3]}")
    for i in range(4, 40, 2):
        a(f"v_add_f32 v8, v8, {Xf[i]}")
        a(f"v_add_f32 v9, v9, {Xf[i + 1]}")
    a("v_add_f32 v8, v8, v9")
    reduce("v8", "v9")
    a(f"v_mul_f32 v8, {f32hex(1.0 / D)}, v8")
    for i in range(40):
        a(f"v_sub_f32 {Xf[i]}, {Xf[i]}, v8")
    a(f"v_mul_f32 v8, {Xf[0]}, {Xf[0]}")
    a(f"v_mul_f32 v9, {Xf[1]}, {Xf[1]}")
    for i in range(2, 40, 2):
        a(f"v_fmac_f32 v8, {Xf[i]}, {Xf[i]}")
        a(f"v_fmac_f32 v9, {Xf[i + 1]}, {Xf[i + 1]}")
    a("v_add_f32 v8, v8, v9")
    reduce("v8", "v9")
    a(f"v_mov_b32 v9, {f32hex(1e-5)}")
    a(f"v_fmac_f32 v9, {f32hex(1.0 / D)}, v8")
    a("v_rsq_f32 v8, v9")
    a("s_waitcnt vmcnt(0)")
    for i in range(5):
        for j in range(8):
            a(f"v_mul_f32 {Xf[8 * i + j]}, {Xf[8 * i + j]}, v8")
        for j in range(8):
            a(f"v_fma_f32 {Xf[8 * i + j]}, {Xf[8 * i + j]}, {SC[8 * i + j]}, {SH[8 * i + j]}")
        for j in range(4):
            a(f"v_cvt_pk_bf16_f32 {X[4 * i + j]}, {Xf[8 * i + 2 * j]}, {Xf[8 * i + 2 * j + 1]}")
        a(f"s_mov_b32 s21, {i * 4 * 4096}")
        a(f"buffer_store_dwordx4 {X.sub(4 * i, 4)}, v7, s[16:19], s21 offen")


def gen_ln(name, which):
    a = Asm()
    a(f"s_cmp_ge_u32 s2, 128\ns_cbranch_scc1 {name}_end")
    if which == 1:
        ln_body(a, 2, KA_X, 0, WS_H, 0, 1)
    else:
        ln_body(a, 2, KA_WS, WS_X1, WS_H2, 3, 4)
    a.label(f"{name}_end")
    a("s_endpgm")
    return (name, a.lines, 160, 160, 256, 128, 0)


def relayout_body(a, name, wg):
    a(f"""
    s_load_dwordx2 s[4:5], s[0:1], {KA_WO}
    s_load_dwordx2 s[6:7], s[0:1], {KA_WD}
    s_load_dwordx2 s[16:17], s[0:1], {KA_WS}
    v_lshrrev_b32 v1, 6, v0
    v_and_b32 v0, 63, v0
    v_readfirstlane_b32 s28, v1
    v_lshlrev_b32 v2, 4, v0
    v_lshrrev_b32 v3, 2, v0
    v_mul_u32_u24 v3, {D * 2}, v3
    v_and_b32 v4, 3, v0
    v_mul_u32_u24 v4, 40, v4
    v_add_u32 v3, v3, v4
    v_mul_u32_u24 v4, 320, v1
    v_add_u32 v3, v3, v4
    s_cmp_lt_u32 s{wg}, 128
    s_cselect_b32 s20, 0, 128
    s_sub_u32 s20, s{wg}, s20
    s_waitcnt lgkmcnt(0)
    s_cmp_lt_u32 s{wg}, 128
    s_cselect_b32 s4, s4, s6
    s_cselect_b32 s5, s5, s7
    s_cselect_b32 s24, 128, 54
    s_mov_b32 s25, {WS_WDF}
    s_cselect_b32 s25, {WS_WOF}, s25
    s_mul_i32 s21, s20, {32 * D * 2}
    """)
    srd(a, 8, 4, off_lines_reg=21, size=32 * D * 2)
    a(f"s_mul_i32 s22, s28, 10240")
    for i in range(10):
        a(f"s_add_u32 s23, s22, {1024 * i}")
        a(f"s_mov_b32 m0, s23")
        a(f"buffer_load_dwordx4 v2, s[8:11], s23 offen lds")
    a(f"""
    s_mul_i32 s26, s24, {8 * 5120}
    """)
    srd(a, 12, 16, off_lines_reg=25, size_reg=26)
    a(f"""
    s_mul_i32 s27, s24, 5120
    s_lshl_b32 s22, s28, 1
    s_mul_i32 s22, s22, s27
    s_mul_i32 s21, s20, 5120
    s_add_u32 s22, s22, s21
    s_waitcnt vmcnt(0)
    s_barrier
    """)
    Fq = Reg(8, 40)
    for nbl in range(2):
        for j in range(5):
            f = Fq.sub((nbl * 5 + j) * 4, 4)
            for e4 in range(2):
                a(f"ds_read_b64_tr_b16 {f.sub(2 * e4, 2)}, v3 offset:{e4 * 16 * D * 2 + (nbl * 80 + 4 * j) * 2}")
        a("s_waitcnt lgkmcnt(0)")
        for j in range(5):
            f = Fq.sub((nbl * 5 + j) * 4, 4)
            a(f"s_add_u32 s23, s22, {1024 * j}")
            a(f"buffer_store_dwordx4 {f}, v2, s[12:15], s23 offen")
        a(f"s_add_u32 s22, s22, s27")


def gen_relayout(name):
    a = Asm()
    a(f"s_cmp_ge_u32 s2, 182\ns_cbranch_scc1 {name}_end")
    relayout_body(a, name, 2)
    a.label(f"{name}_end")
    a("s_endpgm")
    return (name, a.lines, 48, 48, 256, 182, 40960)
```

```python
import struct
from asmlib import VmTracker, Ins

MFMA16 = "v_mfma_f32_16x16x32_bf16"


def f32hex(x):
    return "0x%08x" % struct.unpack("<I", struct.pack("<f", x))[0]


class Frag:
    def __init__(self, reads, guard=None):
        self.reads = reads
        self.guard = guard
        self.buf = None
        self.last_ds = None
        self.seq = None
        self.nat = None


class VmOp:
    def __init__(self, line, tag, pre=()):
        self.line, self.tag, self.pre = line, tag, list(pre)


class Item:
    def __init__(self, fmt, frag=None, phantom=False):
        self.fmt = fmt
        self.frag = frag
        self.phantom = phantom
        self.sc = []
        self.vm = []
        self.ds = []
        self.valu = []
        self.block = []


def cost_of(t):
    op = t.split()[0]
    if op.startswith(("v_exp", "v_rcp", "v_rsq")):
        return 8
    if op.endswith(":"):
        return 0
    if op.startswith("buffer_"):
        return 8
    return 4


def pack(items, g0, g1, ops, fixed, cap, window=14):
    gaps = [g for g in range(g0, g1 + 1) if not items[g].phantom]
    ins = [Ins(o) for o in ops]
    n = len(ops)
    deps = [[] for _ in range(n)]
    for j in range(n):
        for i in range(max(0, j - 64), j):
            if (ins[i].dst & (ins[j].src | ins[j].dst)) or (ins[i].src & ins[j].dst):
                deps[j].append(i)
    base = [max(cap - fixed[g], 0) for g in gaps]
    tot = sum(cost_of(o) for o in ops)
    extra = max(0, (tot - sum(base) + 3) // 4)
    issued = [None] * n
    left = list(range(n))
    given = 0
    for gi, g in enumerate(gaps):
        r = base[gi]
        want = (extra * (gi + 1) + len(gaps) - 1) // len(gaps)
        rem_cost = sum(cost_of(ops[k]) for k in left)
        rem_base = sum(base[gi:])
        need_extra = max(0, (rem_cost - rem_base + 3) // 4)
        rem_gaps = len(gaps) - gi
        add = (need_extra + rem_gaps - 1) // rem_gaps if (given < want or need_extra >= rem_gaps) else 0
        r += 4 * add
        given += add
        pos = 0
        last = gi == len(gaps) - 1
        while left and (r > 0 or last):
            cand = []
            for k in left[:window]:
                ok = all(issued[d] is not None for d in deps[k])
                if ok:
                    for d in deps[k]:
                        if cost_of(ops[d]) == 8 and (ins[d].dst & ins[k].src) and issued[d] == (gi, pos - 1):
                            ok = False
                if ok:
                    cand.append(k)
            fit = [k for k in cand if cost_of(ops[k]) <= r]
            if fit:
                k = fit[0]
                if r >= 8 and cost_of(ops[k]) == 4:
                    plains = [x for x in fit if cost_of(ops[x]) == 4]
                    trans = [x for x in fit if cost_of(ops[x]) == 8]
                    if trans and r == 8 and len(plains) < 2:
                        k = trans[0]
            elif last and cand:
                k = cand[0]
            elif last:
                k = left[0]
            elif cand and need_extra > add:
                k = cand[0]
                given += 1
            else:
                break
            issued[k] = (gi, pos)
            pos += 1
            left.remove(k)
            items[g].valu.append(ops[k])
            r -= cost_of(ops[k])
    assert not left


class Stream:
    def __init__(self, a, FR, nfr, la, wait_group=1, cap=8):
        self.a, self.FR, self.nfr, self.la, self.wait_group, self.cap = a, FR, nfr, la, wait_group, cap
        self.vm = VmTracker()

    def emit_vm(self, op, with_pre=True):
        if with_pre:
            for l in op.pre:
                self.a(l)
        self.a(op.line)
        self.vm.issue(op.tag)

    def vmwait(self, tags):
        n = min(self.vm.count_after(lambda t, tag=tag: t == tag) for tag in tags)
        return min(n, 63)

    def guard_wait(self, tags, extra=""):
        return lambda: f"s_waitcnt vmcnt({self.vmwait(tags)}){extra}"

    def layout(self, items, stop_reads_at=None):
        self.firstuse, self.lastuse, self.order = {}, {}, []
        for i, it in enumerate(items):
            if it.frag is None:
                continue
            if id(it.frag) not in self.firstuse:
                self.firstuse[id(it.frag)] = i
                it.frag.seq = len(self.order)
                self.order.append(it.frag)
            self.lastuse[id(it.frag)] = i
        self.head = Item(None, phantom=True)
        self.skipped = set()
        at = lambda p: self.head if p < 0 else items[p]
        for i, it in enumerate(items):
            fr = it.frag
            if fr is None or self.firstuse[id(fr)] != i:
                continue
            pos = (i if fr.nat is None else fr.nat) - self.la
            if it.phantom and pos >= stop_reads_at:
                self.skipped.add(id(fr))
                continue
            if fr.guard:
                at(pos - 1).sc.append(fr.guard)
                at(pos).sc.append("s_barrier")
            for k in range(len(fr.reads)):
                at(pos + k if pos >= 0 else pos).ds.append((fr, k))
        for i, it in enumerate(items):
            fr = it.frag
            if fr is None or self.firstuse[id(fr)] != i or id(fr) in self.skipped:
                continue
            if it.phantom and i - 1 >= stop_reads_at:
                continue
            if fr.seq % self.wait_group == 0 or (i > 0 and items[i - 1].phantom and not it.phantom):
                p = i - 1
                if at(p).sc and i >= 2 and not at(p - 1).sc and not at(p).phantom and not at(p - 1).phantom:
                    p -= 1
                at(p).sc.append(("lgkm", fr))

    def place_scalar(self, items, line, lo, hi):
        for g in range(hi, lo - 1, -1):
            if not items[g].sc and not items[g].phantom:
                items[g].sc.append(line)
                return g
        items[hi].sc.append(line)
        return hi

    def place_vm(self, items, g0, g1, ops):
        prev = g0 - 1
        for i, op in enumerate(ops):
            g = max(g0 + i * (g1 - g0 + 1) // len(ops), prev + 1 + len(op.pre))
            g2 = g
            while g2 <= min(g + 3, g1) and (items[g2].ds or items[g2].vm):
                g2 += 1
            if g2 <= min(g + 3, g1):
                g = g2
            g = min(g, g1)
            items[g].vm.append(op)
            lo = prev + 1 if prev >= g0 else max(g0 - 1, 0)
            hi = g - 1
            if hi < lo:
                op.inline_pre = True
            else:
                op.inline_pre = False
                for l in op.pre:
                    self.place_scalar(items, l, lo, hi)
            prev = g

    def fixed_cost(self, it):
        nsc = len([s for s in it.sc if not (isinstance(s, str) and s.endswith(":"))])
        c = 4 * len(it.ds) + 8 * len(it.vm) + 4 * max(0, nsc - 1)
        c += sum(4 * len(op.pre) for op in it.vm if op.inline_pre)
        c += sum(4 for s in it.sc if isinstance(s, str) and s.startswith(("s_barrier", "s_cbranch")))
        c += sum(cost_of(l) for l in it.valu)
        return c

    def emit(self, items, groups, marks=()):
        a = self.a
        wg = self.wait_group
        fixed = [self.fixed_cost(it) for it in items]
        for g0, g1, ops in groups:
            pack(items, g0, g1, ops, fixed, self.cap)
            for g in range(g0, g1 + 1):
                fixed[g] = self.fixed_cost(items[g])
        self.est = [max(self.cap, fixed[g]) + 8 for g in range(len(items))]
        segs = []
        nds, nfr = [0], [0]
        bufowner = [None] * self.nfr

        def gap(it, i):
            late = []
            for s in it.sc:
                if isinstance(s, tuple):
                    fr = s[1]
                    if fr.last_ds is None or any(f is fr for f, _ in it.ds):
                        late.append(fr)
                        continue
                    lgkm(fr)
                else:
                    a(s() if callable(s) else s)
            for op in it.vm:
                self.emit_vm(op, with_pre=op.inline_pre)
            for fr, k in it.ds:
                if k == 0:
                    b = nfr[0] % self.nfr
                    nfr[0] += 1
                    prev = bufowner[b]
                    assert prev is None or self.lastuse[id(prev)] <= i, "fragment ring too small"
                    bufowner[b] = fr
                    fr.buf = self.FR.sub(4 * b, 4)
                op, sub, nr, ar, off = fr.reads[k]
                assert 0 <= off < 65536, off
                a(f"{op} {fr.buf.sub(sub, nr)}, {ar} offset:{off}")
                if k == len(fr.reads) - 1:
                    fr.last_ds = nds[0]
                nds[0] += 1
            for l in it.valu + it.block:
                a(l)
            for fr in late:
                lgkm(fr)

        def lgkm(fr):
            tgt = fr.last_ds
            s = fr.seq
            for s2 in range(s + 1, min((s // wg + 1) * wg, len(self.order))):
                f2 = self.order[s2]
                if id(f2) in self.skipped:
                    continue
                assert f2.last_ds is not None, "wait group member not issued yet"
                tgt = max(tgt, f2.last_ds)
            w = nds[0] - 1 - tgt
            assert w <= 15, w
            a(f"s_waitcnt lgkmcnt({w})")

        gap(self.head, -1)
        for i, it in enumerate(items):
            if i in marks:
                segs.append(len(a.lines))
            if not it.phantom:
                a(it.fmt.replace("{A}", str(it.frag.buf)) if it.frag is not None else it.fmt)
            gap(it, i)
        segs.append(len(a.lines))
        return segs
```

```python
import sys
from build import build
from attn16 import gen_attn16
from small import *
from gemm import *

def attn(**kw):
    lines, vgpr, accum, block = gen_attn16("attn_kernel", **kw)
    return ("attn_kernel", lines, vgpr, accum, block, 256, 163840)

def pipeline(timing=False):
    return [gen_mod("mod_kernel"), gen_ln("ln1_kernel", 1), gen_relayout("relay_kernel"), attn(),
            gen_gemmn("oproj_kernel", 128, WS_O, WS_WOF, KA_X, 0, KA_WS, WS_X1, 2),
            gen_ln("ln2_kernel", 2), gen_gateup("gateup_kernel"),
            gen_gemmn("down_kernel", 54, WS_ACT, WS_WDF, KA_WS, WS_X1, KA_OUT, 0, 5)]

if __name__ == "__main__":
    out = sys.argv[1] if len(sys.argv) > 1 else "adaLN_cond__gqa_block_cached__glu_gated_reglu__prompt.s"
    build(pipeline(), out)
```

```python
from asmlib import Asm, Alloc, Reg, sr
from stream import *
from layout import *

SLOT = 16384


def timing_head(a, s_tm):
    a(f"s_memtime s[{s_tm}:{s_tm+1}]")
    a(f"s_memrealtime s[{s_tm+2}:{s_tm+3}]")


def timing_tail(a, s_tm, s_wave, v2, v1):
    a(f"""
    s_memtime s[{s_tm+4}:{s_tm+5}]
    s_memrealtime s[{s_tm+6}:{s_tm+7}]
    s_load_dwordx2 s[4:5], s[0:1], {KA_WS}
    s_waitcnt lgkmcnt(0)
    s_sub_u32 s{s_tm}, s{s_tm+4}, s{s_tm}
    s_sub_u32 s{s_tm+2}, s{s_tm+6}, s{s_tm+2}
    s_add_u32 s4, s4, 0x8000
    s_addc_u32 s5, s5, 0
    s_mov_b32 s6, 0x8000
    s_mov_b32 s7, 0x20000
    v_mov_b32 {v2[0]}, s{s_tm}
    v_mov_b32 {v2[1]}, s{s_tm+2}
    s_lshl_b32 s{s_tm+4}, s2, 6
    s_lshl_b32 s{s_tm+5}, s{s_wave}, 3
    s_add_u32 s{s_tm+4}, s{s_tm+4}, s{s_tm+5}
    v_mov_b32 {v1}, s{s_tm+4}
    buffer_store_dwordx2 {v2}, {v1}, s[4:7], 0 offen
    """)


def tr_addr_setup(a, dst4, t):
    a(f"""
    v_lshrrev_b32 {t[0]}, 2, v0
    v_lshlrev_b32 {t[1]}, 7, {t[0]}
    v_and_b32 {t[2]}, 3, v0
    v_lshl_add_u32 {t[1]}, {t[2]}, 3, {t[1]}
    v_bfe_u32 {t[0]}, v0, 3, 2
    v_lshl_add_u32 {dst4[0]}, {t[0]}, 5, {t[1]}
    v_xor_b32 {dst4[1]}, 32, {dst4[0]}
    v_xor_b32 {dst4[2]}, 64, {dst4[0]}
    v_xor_b32 {dst4[3]}, 0x60, {dst4[0]}
    """)


def tr_dma_col(a, dst, t):
    a(f"""
    v_bfe_u32 {t[0]}, v0, 1, 2
    v_lshrrev_b32 {t[1]}, 4, v0
    v_xor_b32 {t[0]}, {t[0]}, {t[1]}
    v_lshlrev_b32 {t[0]}, 5, {t[0]}
    v_and_b32 {t[1]}, 1, v0
    v_lshl_add_u32 {dst}, {t[1]}, 4, {t[0]}
    """)


def gen_attn16(name, NQB=4, la_frags=5, wait_group=2, thr_log2=40, timing=False, prio=None, abl=(), cap2=16):
    NW = 16 // NQB
    LA = la_frags * NQB
    acc = NQB == 4
    a = Asm()
    va = Alloc(1, 256)
    aa = Alloc(0, 256, acc=True)
    tmp = va.get(7)
    vKa = va.get(2)
    vVa = va.get(4)
    vWlo = va.get(4)
    vWhi = va.get(4)
    vKd, vVd, vWd, vHo = va.get(1), va.get(1), va.get(1), va.get(1)
    EQ = va.get(16, 4)
    E = [EQ[4 * (i // 3) + i % 3] for i in range(12)]
    NE = 12
    ts = [EQ[4 * q + 3] for q in range(NQB)]
    lq = va.get(6, 4)
    lsum = [lq[0], lq[1], lq[2], lq[4]][:NQB]
    ACCQ = va.get(32 * NQB, 4)
    Q = va.get(16 * NQB, 4)
    O = (aa if acc else va).get(32 * NQB, 4)
    NFR = 8
    FR = (aa if acc else va).get(4 * NFR, 4)
    Sq = lambda par, qb: ACCQ.sub((par * NQB + qb) * 8, 8)
    Sb = lambda par, qb, kb: Sq(par, qb).sub(4 * kb, 4)
    negm = lambda qb: ACCQ.sub(16 * NQB + qb * 4, 4)
    Pb = lambda par, qb: ACCQ.sub(20 * NQB + (par * NQB + qb) * 4, 4)
    qacc = lambda qb, db: ACCQ.sub((qb * 8 + db) * 4, 4)
    Qf = lambda qb, s: Q.sub((qb * 4 + s) * 4, 4)
    Ob = lambda qb, db: O.sub((qb * 8 + db) * 4, 4)
    Hf = lambda stage, ks, qb: O.sub((((stage % 4) * 2 + ks) * NQB + qb) * 4, 4)
    sK, sV, sW, sH, sO = 8, 12, 16, 20, 24
    s_wave, s_wb, s_head, s_qb, s_koff, s_voff, s_koff2, s_voff2, s_cnt, s_thr, s_t0, s_t1, s_tb = range(28, 41)
    s_tm = 44
    st = Stream(a, FR, NFR, LA, wait_group, cap=8 if NQB == 4 else cap2)

    a(f"""
    s_cmp_ge_u32 s2, 256
    s_cbranch_scc1 {name}_end
    s_load_dwordx4 s[4:7], s[0:1], {KA_K}
    s_load_dwordx2 s[16:17], s[0:1], {KA_WQ}
    s_load_dwordx2 s[20:21], s[0:1], {KA_WS}
    s_load_dwordx2 s[56:57], s[0:1], {KA_WO}
    s_load_dwordx4 s[60:63], s[0:1], {KA_WG}
    """)
    if timing:
        timing_head(a, s_tm)
    t0, t1, t2, t3, t4, t5, t6 = [tmp[i] for i in range(7)]
    a(f"""
    v_lshrrev_b32 {t0}, 6, v0
    v_and_b32 v0, 63, v0
    v_readfirstlane_b32 s{s_wave}, {t0}
    s_bfe_u32 s{s_head}, s2, 0x20001
    s_lshl_b32 s{s_head}, s{s_head}, 3
    s_bfe_u32 s{s_t0}, s2, 0x30003
    s_add_u32 s{s_head}, s{s_head}, s{s_t0}
    s_and_b32 s{s_qb}, s2, 1
    s_lshl_b32 s{s_qb}, s{s_qb}, 2
    s_lshr_b32 s{s_t0}, s2, 6
    s_add_u32 s{s_qb}, s{s_qb}, s{s_t0}
    s_lshl_b32 s{s_wb}, s{s_wave}, 10
    """)
    tr_dma_col(a, t3, [t1, t2])
    a(f"""
    v_lshrrev_b32 {t0}, 3, v0
    s_lshl_b32 s{s_t0}, s{s_wave}, 3
    v_add_u32 {t0}, s{s_t0}, {t0}
    v_lshl_add_u32 {vVd}, {t0}, 8, {t3}
    v_lshl_add_u32 {vWd}, {t0}, 13, {t3}
    v_lshlrev_b32 {vHo}, 4, v0
    """)
    a(f"""
    s_lshl_b32 s{s_tb}, s{s_qb}, 4
    s_mul_i32 s{s_t1}, s{s_wave}, {NQB}
    s_add_u32 s{s_tb}, s{s_tb}, s{s_t1}
    s_waitcnt lgkmcnt(0)
    s_lshl_b32 s{s_t0}, s{s_head}, 8
    s_add_u32 s{sW}, s{sW}, s{s_t0}
    s_addc_u32 s{sW+1}, s{sW+1}, 0
    s_sub_u32 s{sW+2}, {D * H * DH * 2}, s{s_t0}
    s_mov_b32 s{sW+3}, 0x20000
    s_add_u32 s{sO}, s{sH}, {WS_O}
    s_addc_u32 s{sO+1}, s{sH+1}, 0
    s_lshr_b32 s{s_t0}, s{s_tb}, 2
    s_mul_i32 s{s_t0}, s{s_t0}, {20 * 4096}
    s_and_b32 s{s_t1}, s{s_tb}, 3
    s_lshl_b32 s{s_t1}, s{s_t1}, 10
    s_add_u32 s{s_t0}, s{s_t0}, s{s_t1}
    s_add_u32 s{s_t0}, s{s_t0}, {WS_H}
    s_add_u32 s{sH}, s{sH}, s{s_t0}
    s_addc_u32 s{sH+1}, s{sH+1}, 0
    s_sub_u32 s{sH+2}, {20 * 4096}, s{s_t1}
    s_mov_b32 s{sH+3}, 0x20000
    """)

    def dma_tile(kind, slot, tag, soff_imm=None, rowstride=256):
        srd, vo = {"K": (sK, vKd), "V": (sV, vVd), "W": (sW, vWd)}[kind]
        ops = []
        for rg in range(8 // NW):
            for half in range(2):
                n = rg * NW + half * 8
                pre = []
                if soff_imm is not None:
                    pre.append(f"s_mov_b32 s{s_t0}, {soff_imm + rg * 32 * rowstride}")
                    so = s_t0
                else:
                    so = {("K", 0): s_koff, ("K", 1): s_koff2, ("V", 0): s_voff, ("V", 1): s_voff2}[(kind, rg)]
                pre.insert(0, f"s_add_u32 m0, s{s_wb}, {slot * SLOT + n * 1024 - half * 128}")
                off = " offset:128" if half else ""
                ops.append(VmOp(f"buffer_load_dwordx4 {vo}, {sr(srd, 4)}, s{so} offen{off} lds", tag, pre))
        return ops

    def h_loads(stage):
        ops = []
        for ks in range(2):
            for qb in range(NQB):
                pre = [f"s_mov_b32 s{s_t1}, {(stage * 2 + ks) * 4096}"] if qb == 0 else []
                ops.append(VmOp(f"buffer_load_dwordx4 {Hf(stage, ks, qb)}, {vHo}, {sr(sH, 4)}, s{s_t1} offen offset:{qb * 1024}",
                                ("h", stage), pre))
        return ops

    WSLOT = [0, 1, 4, 2, 5, 3, 6, 7, 8, 9]
    w_tile = lambda s: dma_tile("W", WSLOT[s], ("W", s), s * 64 * 8192, 8192)
    for s in range(2):
        for op in w_tile(s) + h_loads(s):
            st.emit_vm(op)

    a(f"""
    s_lshl_b32 s{s_t0}, s{s_head}, 19
    s_add_u32 s{sK}, s4, s{s_t0}
    s_addc_u32 s{sK+1}, s5, 0
    s_mov_b32 s{sK+2}, 0x80000
    s_mov_b32 s{sK+3}, 0x20000
    s_add_u32 s{sV}, s6, s{s_t0}
    s_addc_u32 s{sV+1}, s7, 0
    s_mov_b32 s{sV+2}, 0x80000
    s_mov_b32 s{sV+3}, 0x20000
    s_mov_b32 s{sO+2}, {S * H * DH * 2}
    s_mov_b32 s{sO+3}, 0x20000
    """)
    a(f"""
    v_lshrrev_b32 {t1}, 4, v0
    s_and_b32 s{s_t0}, s{s_wave}, 1
    s_mul_i32 s{s_t0}, s{s_t0}, 6
    v_and_b32 {t2}, 1, {t1}
    v_lshrrev_b32 {t1}, 1, {t1}
    v_lshl_add_u32 {t2}, {t1}, 2, {t2}
    v_xor_b32 {t2}, s{s_t0}, {t2}
    v_and_b32 {t1}, 7, v0
    v_xor_b32 {t2}, {t2}, {t1}
    v_lshlrev_b32 {t2}, 4, {t2}
    v_lshl_add_u32 {vKd}, {t0}, 8, {t2}
    """)
    a(f"""
    v_bfe_u32 {t0}, v0, 1, 1
    v_bfe_u32 {t1}, v0, 2, 1
    v_bfe_u32 {t2}, v0, 3, 1
    v_xor_b32 {t1}, {t1}, {t2}
    v_lshl_add_u32 {t0}, {t2}, 1, {t0}
    v_lshl_add_u32 {t0}, {t1}, 2, {t0}
    v_bfe_u32 {t1}, v0, 4, 1
    v_bfe_u32 {t2}, v0, 5, 1
    v_lshl_add_u32 {t1}, {t1}, 1, {t2}
    v_xor_b32 {t0}, {t0}, {t1}
    v_and_b32 {t1}, 15, v0
    v_lshlrev_b32 {t1}, 7, {t1}
    v_lshl_add_u32 {vKa[0]}, {t0}, 4, {t1}
    v_xor_b32 {vKa[1]}, 64, {vKa[0]}
    """)
    tr_addr_setup(a, vWlo, [t0, t1, t2])
    for i in range(4):
        a(f"v_add_u32 {vVa[i]}, 0x10000, {vWlo[i]}")
        a(f"v_add_u32 {vWhi[i]}, 0x20000, {vWlo[i]}")
    a(f"v_mov_b32 {t6}, {f32hex(2.0 ** thr_log2)}")
    if timing == "series":
        a(f"""
        s_load_dwordx2 s[52:53], s[0:1], {KA_WS}
        s_waitcnt lgkmcnt(0)
        s_add_u32 s52, s52, 0x8000000
        s_addc_u32 s53, s53, 0
        s_mov_b32 s54, 0x8000
        s_mov_b32 s55, 0x20000
        """)
    if prio == "young":
        a(f"""
        s_cmp_ge_u32 s{s_wave}, {NW // 2}
        s_cbranch_scc0 {name}_noprio
        s_setprio 1
        {name}_noprio:
        """)

    def tr_frag(slot, u, db, guard=None):
        base = slot * SLOT
        ar, rel = (vWlo, base) if base < 0x10000 else (vVa, base - 0x10000) if base < 0x20000 else (vWhi, base - 0x20000)
        reads = []
        for e4 in range(2):
            off = rel + (db // 4) * 8192 + (32 * u + 16 * e4) * 128
            reads.append(("ds_read_b64_tr_b16", 2 * e4, 2, ar[db % 4], off))
        return Frag(reads, guard)

    def k_frag(slot, u, kb, s, guard=None):
        off = slot * SLOT + (s // 2) * 8192 + (32 * u + 16 * kb) * 128
        return Frag([("ds_read_b128", 0, 4, vKa[s % 2], off)], guard)

    rare_blocks = {}

    def sm_compute(par):
        n = 8 * NQB
        ex = lambda i: f"v_exp_f32 {E[i % NE]}, {Sq(par, i // 8)[i % 8]}"
        ops = [ex(0), ex(1)]
        for p in range(n // 2):
            qb, first = (2 * p) // 8, (2 * p) % 8 == 0
            e0, e1 = E[(2 * p) % NE], E[(2 * p + 1) % NE]
            if p + 1 < n // 2:
                ops.append(ex(2 * p + 2))
            ops.append(f"v_add_f32 {ts[qb]}, {e0}, {e1}" if first else f"v_add_f32 {ts[qb]}, {ts[qb]}, {e0}")
            if p + 1 < n // 2:
                ops.append(ex(2 * p + 3))
            if not first:
                ops.append(f"v_add_f32 {ts[qb]}, {ts[qb]}, {e1}")
            ops.append(f"v_cvt_pk_bf16_f32 {Pb(par, qb)[p % 4]}, {e0}, {e1}")
        return ops

    def xlane(op, dst, tmp2):
        return [f"v_mov_b32 {tmp2}, {dst}", f"v_permlane16_swap_b32 {dst}, {tmp2}", f"{op} {dst}, {dst}, {tmp2}",
                f"v_mov_b32 {tmp2}, {dst}", f"v_permlane32_swap_b32 {dst}, {tmp2}", f"{op} {dst}, {dst}, {tmp2}"]

    def rowmax(dst, tmp2, src):
        out = [f"v_max3_f32 {dst}, {src[0]}, {src[1]}, {src[2]}",
               f"v_max3_f32 {dst}, {dst}, {src[3]}, {src[4]}",
               f"v_max3_f32 {dst}, {dst}, {src[5]}, {src[6]}",
               f"v_max_f32 {dst}, {dst}, {src[7]}"]
        return out + xlane("v_max_f32", dst, tmp2)

    def sm_ops(par, tag):
        comp = sm_compute(par)
        lab, ret = f"{name}_rare{tag}", f"{name}_ret{tag}"
        cvts = [o for o in comp if o.startswith("v_cvt")][-3:]
        comp = [o for o in comp if o not in cvts]
        if NQB == 4:
            comp.insert(len(comp) - 6, f"v_max3_f32 {t0}, {ts[0]}, {ts[1]}, {ts[2]}")
            comp.append(f"v_max_f32 {t0}, {t0}, {ts[3]}")
        else:
            comp.append(f"v_max_f32 {t0}, {ts[0]}, {ts[1]}")
        comp.append(f"v_cmp_nle_f32 vcc, {t0}, {t6}")
        ops = (cvts, [f"s_cbranch_vccnz {lab}", f"{ret}:"])
        post = [f"v_add_f32 {lsum[qb]}, {lsum[qb]}, {ts[qb]}" for qb in range(NQB)]
        r = [f"{lab}:", "s_nop 15"]
        for qb in range(NQB):
            r += rowmax(t0, t1, Sq(par, qb))
            r += [f"v_max_f32 {t0}, 0, {t0}", f"v_exp_f32 {t1}, -{t0}", "s_nop 0",
                  f"v_mul_f32 {lsum[qb]}, {lsum[qb]}, {t1}"]
            for i in range(32):
                o = O[qb * 32 + i]
                if acc:
                    tt = tmp[2 + i % 4]
                    r += [f"v_accvgpr_read_b32 {tt}, {o}", f"v_mul_f32 {tt}, {tt}, {t1}",
                          f"v_accvgpr_write_b32 {o}, {tt}"]
                else:
                    r.append(f"v_mul_f32 {o}, {o}, {t1}")
            for blk in (negm(qb), Sq(par, qb), Sq(par ^ 1, qb)):
                for i in range(blk.n):
                    r.append(f"v_sub_f32 {blk[i]}, {blk[i]}, {t0}")
        r += sm_compute(par) + ["s_nop 1", f"s_branch {ret}"]
        rare_blocks.setdefault(tag, r)
        return comp, ops, post

    def build(nbodies, last_special):
        items, groups, vms, scal = [], [], [], []
        nst = 16 * NQB
        for s in range(10):
            first = len(items)
            for ks in range(2):
                for db in range(8):
                    g = st.guard_wait([("W", s), ("h", s)]) if (ks == 0 and db == 0) else None
                    fr = tr_frag(WSLOT[s], ks, db, g)
                    for qb in range(NQB):
                        c = "0" if (s == 0 and ks == 0) else str(qacc(qb, db))
                        items.append(Item(f"{MFMA16} {qacc(qb, db)}, {{A}}, {Hf(s, ks, qb)}, {c}", fr))
            ops = []
            if s == 0:
                ops += w_tile(2) + h_loads(2)
            if s + 3 < 10:
                ops += w_tile(s + 3) + h_loads(s + 3)
            else:
                kind, tile = [("K", 0), ("K", 1), ("V", 0)][s - 7]
                ops += dma_tile(kind, {"K": tile, "V": 4 + tile}[kind], (kind, tile), tile * SLOT)
                kind, tile = [("K", 2), ("V", 1), ("K", 3)][s - 7]
                ops += dma_tile(kind, {"K": tile, "V": 4 + tile}[kind], (kind, tile), tile * SLOT)
            vms.append((first + 1, first + nst - 1, ops))
        conv = []
        cs = f32hex(1.4426950408889634 * DH ** -0.5)
        for s in range(4):
            for qb in range(NQB):
                for hf in range(2):
                    src = qacc(qb, 2 * s + hf)
                    for i in range(4):
                        conv.append(f"v_mul_f32 {src[i]}, {cs}, {src[i]}")
                    for j in range(2):
                        conv.append(f"v_cvt_pk_bf16_f32 {Qf(qb, s)[2 * hf + j]}, {src[2 * j]}, {src[2 * j + 1]}")
            for qb in range(NQB):
                for j in range(2):
                    conv.append(f"v_permlane16_swap_b32 {Qf(qb, s)[j]}, {Qf(qb, s)[2 + j]}")
        conv += [f"s_mov_b32 s{s_koff}, {4 * SLOT}", f"s_mov_b32 s{s_voff}, {2 * SLOT}",
                 f"s_mov_b32 s{s_koff2}, {4 * SLOT + 8192}", f"s_mov_b32 s{s_voff2}, {2 * SLOT + 8192}",
                 f"s_mov_b32 s{s_cnt}, 8"]
        items[-1].block += conv

        def qk(unit, kslot, guard=None, first=False, phantom=False):
            par = unit % 2
            for kb in range(2):
                for s in range(4):
                    fr = k_frag(kslot, unit % 2, kb, s, guard if (s == 0 and kb == 0) else None)
                    for qb in range(NQB):
                        c = ("0" if first else str(negm(qb))) if s == 0 else str(Sb(par, qb, kb))
                        items.append(Item(f"{MFMA16} {Sb(par, qb, kb)}, {{A}}, {Qf(qb, s)}, {c}", fr, phantom))

        def pv(unit, vslot):
            par = unit % 2
            for db in range(8):
                fr = tr_frag(vslot, unit % 2, db)
                for qb in range(NQB):
                    items.append(Item(f"{MFMA16} {Ob(qb, db)}, {{A}}, {Pb(par, qb)}, {Ob(qb, db)}", fr))

        def add_sm(g0, par, tag, post):
            comp, (cvts, br), post2 = sm_ops(par, tag)
            g1 = len(items) - 1
            groups.append((g0, g1 - 2, post + comp))
            items[g1 - 1].valu += cvts[:2]
            items[g1].sc += br
            items[g1].valu += cvts[2:]
            return post2

        g0 = len(items)
        qk(0, 0, st.guard_wait([("K", 0)]), first=True)
        zero = [f"v_accvgpr_write_b32 {O[i]}, 0" if acc else f"v_mov_b32 {O[i]}, 0" for i in range(32 * NQB)]
        zero += [f"v_mov_b32 {lsum[qb]}, 0" for qb in range(NQB)]
        groups.append((g0, len(items) - 1, zero))
        init = []
        for qb in range(NQB):
            init += rowmax(tmp[qb], t4, Sq(0, qb))
        for qb in range(NQB):
            init += [f"v_sub_f32 {negm(qb)[i]}, 0, {tmp[qb]}" for i in range(4)]
        for qb in range(NQB):
            init += [f"v_sub_f32 {Sq(0, qb)[i]}, {Sq(0, qb)[i]}, {tmp[qb]}" for i in range(8)]
        items[-1].block += init
        g0 = len(items)
        qk(1, 0)
        post = add_sm(g0, 0, "p", [])
        marks = []
        nper = 32 * NQB
        for T in range(nbodies):
            last = last_special and T == nbodies - 1
            marks.append(len(items))
            b0 = len(items)
            if T == 0:
                guard = st.guard_wait([("K", 1), ("V", 0)])
            else:
                guard = lambda: f"s_waitcnt vmcnt({2 * 16 // NW})"
            ks_, vs_ = (T + 1) % 4, 4 + T % 4
            tag = ("t" if last else "b") + str(T % 4)
            g0 = len(items)
            qk(2 * T + 2, ks_, guard, phantom=last)
            pv(2 * T, vs_)
            post = add_sm(g0, 1, tag + "a", post)
            g0 = len(items)
            qk(2 * T + 3, ks_, phantom=last)
            last_k_use = len(items) - 1
            pv(2 * T + 1, vs_)
            if last:
                groups.append((g0, len(items) - 1, post))
                junk = Q.sub(Q.n - 4, 4)
                pf = []
                for i in range(10):
                    pf.append(VmOp(f"buffer_load_dwordx4 {junk}, {vHo}, {sr(sK, 4)}, s{s_t0} offen", "pf",
                                   [f"s_add_u32 s{s_t0}, s{s_koff}, {i * 1024}"]))
                for i in range(5):
                    pf.append(VmOp(f"buffer_load_dwordx4 {junk}, {vHo}, {sr(sW, 4)}, s{s_t0} offen", "pf",
                                   [f"s_add_u32 s{s_t0}, s{s_voff}, {i * 1024}"]))
                p0 = b0 + 8 * NQB
                vms.append((p0 + 1, p0 + 8 * NQB - 4, pf[:10]))
                vms.append((p0 + 16 * NQB + 1, p0 + 24 * NQB - 2, pf[10:]))
            else:
                post = add_sm(g0, 0, tag + "b", post)
                assert last_k_use < b0 + nper - LA - 2
                dm = dma_tile("K", T % 4, ("x", T)) + dma_tile("V", 4 + (T + 2) % 4, ("x", T))
                upd = [f"s_add_u32 s{s_koff}, s{s_koff}, {SLOT}", f"s_add_u32 s{s_voff}, s{s_voff}, {SLOT}"]
                if NW == 4:
                    upd += [f"s_add_u32 s{s_koff2}, s{s_koff2}, {SLOT}", f"s_add_u32 s{s_voff2}, s{s_voff2}, {SLOT}"]
                vms.append((b0 + 2, b0 + nper - LA - 3, dm))
                scal += [(u, b0 + nper - LA + 1, b0 + nper - 2) for u in upd]
        marks.append(len(items))
        for g in (0, 3 * nst, 7 * nst, 10 * nst - 2, marks[0] - 1):
            items[g].block.append("; STAMP")
        st.layout(items, marks[-2] if last_special else None)
        gb = marks[0] - LA
        assert "s_barrier" in items[gb].sc
        items[gb].sc.insert(items[gb].sc.index("s_barrier"), "s_waitcnt lgkmcnt(0)")
        for g0, g1, ops in vms:
            st.place_vm(items, g0, g1, ops)
        for l, lo, hi in scal:
            st.place_scalar(items, l, lo, hi)
        return items, groups, marks

    head_lines = list(a.lines)
    vm0 = list(st.vm.ops)
    items, groups, marks = build(9, False)
    segs = st.emit(items, groups, marks)
    print("estimated cycles: prologue", sum(st.est[:marks[0]]), "body", sum(st.est[marks[1]:marks[2]]))
    L = a.lines
    pre = L[:segs[0]]
    body = [L[segs[i]:segs[i + 1]] for i in range(8)]
    for i in range(4):
        assert body[i] == body[i + 4], f"loop body {i} is not periodic"
    a.lines = list(head_lines)
    st.vm.ops = list(vm0)
    items, groups, marks = build(4, True)
    segs2 = st.emit(items, groups, marks)
    L2 = a.lines
    assert L2[:segs2[3]] == L[:segs[3]]
    tail = L2[segs2[3]:segs2[4]]

    def stamp():
        if timing != "series":
            return
        a(f"""
        s_memtime s[{s_tm+4}:{s_tm+5}]
        s_memrealtime s[{s_tm+6}:{s_tm+7}]
        s_waitcnt lgkmcnt(0)
        s_sub_u32 s{s_tm+4}, s{s_tm+4}, s{s_tm}
        s_sub_u32 s{s_tm+6}, s{s_tm+6}, s{s_tm+2}
        v_mov_b32 {t2}, s{s_tm+4}
        v_mov_b32 {t3}, s{s_tm+6}
        s_lshl_b32 s{s_t0}, s2, 7
        s_lshl_b32 s{s_t1}, s{s_cnt}, 3
        s_add_u32 s{s_t0}, s{s_t0}, s{s_t1}
        v_mov_b32 {t4}, s{s_t0}
        buffer_store_dword {t2}, {t4}, s[52:55], 0 offen
        buffer_store_dword {t3}, {t4}, s[52:55], 0 offen offset:4
        """)

    def drop(pref):
        return [[l for l in b if not l.strip().startswith(pref)] for b in body]
    if "nosm" in abl:
        body = drop(("v_exp", "v_add_f32", "v_cvt_pk", "v_max", "v_cmp", "s_cbranch_vcc"))
    if "nods" in abl:
        body = drop(("ds_read", "s_waitcnt lgkm"))
    if "nodma" in abl:
        body = drop(("buffer_load", "s_add_u32 m0"))
    if "nomfma" in abl:
        body = drop(("v_mfma", "s_cbranch_vcc"))

    a.lines = list(pre)
    a.label(f"{name}_loop")
    stamp()
    a.extend(body[0] + body[1] + body[2])
    a(f"""
    s_sub_u32 s{s_cnt}, s{s_cnt}, 1
    s_cmp_eq_u32 s{s_cnt}, 0
    s_cbranch_scc1 {name}_tail
    """)
    a.extend(body[3])
    a(f"s_branch {name}_loop")
    a.label(f"{name}_tail")
    stamp()
    a(f"""
    s_mov_b32 s{sK}, s56
    s_mov_b32 s{sK+1}, s57
    s_mov_b32 s{sK+2}, {H * DH * D * 2}
    s_lshr_b32 s{s_koff}, s{s_head}, 3
    s_lshl_b32 s{s_koff}, s{s_koff}, 5
    s_lshr_b32 s{s_t0}, s2, 3
    s_add_u32 s{s_koff}, s{s_koff}, s{s_t0}
    s_lshl_b32 s{s_koff}, s{s_koff}, 2
    s_add_u32 s{s_koff}, s{s_koff}, s{s_wave}
    s_mul_i32 s{s_koff}, s{s_koff}, 10240
    s_and_b32 s{s_t0}, s2, 1
    s_cmp_eq_u32 s{s_t0}, 0
    s_cselect_b32 s{sW}, s60, s62
    s_cselect_b32 s{sW+1}, s61, s63
    s_mov_b32 s{sW+2}, {D * F * 2}
    s_lshr_b32 s{s_voff}, s2, 1
    s_lshl_b32 s{s_voff}, s{s_voff}, 2
    s_add_u32 s{s_voff}, s{s_voff}, s{s_wave}
    s_mul_i32 s{s_voff}, s{s_voff}, 5120
    """)
    a.extend(tail)
    a.lines.append("; STAMP")
    a(f"""
    s_lshr_b32 s{s_t1}, s{s_tb}, 2
    s_lshl_b32 s{s_t1}, s{s_t1}, 19
    s_and_b32 s{s_t0}, s{s_tb}, 3
    s_lshl_b32 s{s_t0}, s{s_t0}, 10
    s_add_u32 s{s_t1}, s{s_t1}, s{s_t0}
    s_lshl_b32 s{s_t0}, s{s_head}, 14
    s_add_u32 s{s_t1}, s{s_t1}, s{s_t0}
    """)
    for qb in range(NQB):
        for l in xlane("v_add_f32", lsum[qb], tmp[qb]):
            a(l)
    for qb in range(NQB):
        a(f"v_rcp_f32 {lsum[qb]}, {lsum[qb]}")
    k = 0
    for i in range(4):
        a(f"s_add_u32 s{s_t0}, s{s_t1}, {i * 4096}")
        for qb in range(NQB):
            dst = Q.sub(4 * (k % 8), 4)
            k += 1
            for j in range(4):
                src = Ob(qb, 2 * i + j // 2)
                x0, x1 = src[2 * (j % 2)], src[2 * (j % 2) + 1]
                e0, e1 = E[(2 * j) % NE], E[(2 * j + 1) % NE]
                if acc:
                    a(f"v_accvgpr_read_b32 {e0}, {x0}")
                    a(f"v_accvgpr_read_b32 {e1}, {x1}")
                    x0, x1 = e0, e1
                a(f"v_mul_f32 {e0}, {x0}, {lsum[qb]}")
                a(f"v_mul_f32 {e1}, {x1}, {lsum[qb]}")
                a(f"v_cvt_pk_bf16_f32 {dst[j]}, {e0}, {e1}")
            a(f"buffer_store_dwordx4 {dst}, {vHo}, {sr(sO, 4)}, s{s_t0} offen offset:{qb * 1024}")
    if timing:
        timing_tail(a, s_tm, s_wave, EQ.sub(0, 2), t2)
    a.label(f"{name}_end")
    a("s_endpgm")
    for tag, r in rare_blocks.items():
        for l in r:
            a(l)
    if acc:
        return a.lines, 256 + aa.p, 256, 64 * NW
    return a.lines, va.p, (va.p + 3) // 4 * 4, 64 * NW
```

```python
from asmlib import Asm, Alloc, Reg, sr, VmTracker
from stream import *
from layout import *
from small import srd
from attn16 import timing_head, timing_tail, tr_addr_setup, tr_dma_col


def gen_gemmn(name, NKS, x_off, w_off, res_ka, res_off, out_ka, out_off, gate_idx, PD=6, timing=False):
    a = Asm()
    steps = (NKS + 3) // 4
    va = Alloc(1, 256)
    t = va.get(7)
    vX = va.get(4)
    vW = va.get(2)
    vR = va.get(1)
    vG = va.get(1)
    vL = va.get(4)
    RES = va.get(10, 2)
    ring = va.get(36 * PD, 4)
    aa = Alloc(0, 256, acc=True)
    ACC = aa.get(80, 4)
    G = aa.get(20, 4)
    acc = lambda tl, j: ACC.sub((tl * 5 + j) * 4, 4)
    Xf = lambda i, tl: ring.sub((i % PD) * 36 + tl * 4, 4)
    Wf = lambda i, j: ring.sub((i % PD) * 36 + 16 + j * 4, 4)
    sX, sW, sR, sG, sO = 8, 12, 16, 20, 24
    s_wave, s_tb, s_nb, s_t0, s_t1, s_xo, s_wo = range(28, 35)
    a(f"""
    s_cmp_ge_u32 s2, 256
    s_cbranch_scc1 {name}_end
    s_load_dwordx2 s[4:5], s[0:1], {KA_WS}
    s_load_dwordx2 s[6:7], s[0:1], {res_ka}
    s_load_dwordx2 s[36:37], s[0:1], {out_ka}
    """)
    if timing:
        timing_head(a, 44)
    a(f"""
    v_lshrrev_b32 {t[0]}, 6, v0
    v_and_b32 v0, 63, v0
    v_readfirstlane_b32 s{s_wave}, {t[0]}
    s_and_b32 s{s_tb}, s2, 1
    s_lshl_b32 s{s_tb}, s{s_tb}, 4
    s_bfe_u32 s{s_t0}, s2, 0x10001
    s_lshl_b32 s{s_t0}, s{s_t0}, 3
    s_add_u32 s{s_tb}, s{s_tb}, s{s_t0}
    s_bfe_u32 s{s_t0}, s2, 0x30003
    s_add_u32 s{s_tb}, s{s_tb}, s{s_t0}
    s_bfe_u32 s{s_nb}, s2, 0x10002
    s_lshl_b32 s{s_nb}, s{s_nb}, 2
    s_lshr_b32 s{s_t0}, s2, 6
    s_add_u32 s{s_nb}, s{s_nb}, s{s_t0}
    v_lshlrev_b32 {vW[0]}, 4, v0
    v_add_u32 {vW[1]}, 4096, {vW[0]}
    """)
    for tl in range(4):
        a(f"""
        v_add_u32 {t[1]}, {tl}, {t[0]}
        v_and_b32 {t[1]}, 3, {t[1]}
        v_lshl_add_u32 {vX[tl]}, {t[1]}, 10, {vW[0]}
        v_mul_u32_u24 {t[1]}, {15 * 1024}, {t[1]}
        v_add_u32 {vL[tl]}, {t[1]}, {vW[0]}
        """)
    a(f"""
    s_mul_i32 s{s_t0}, s{s_tb}, {NKS * 4096}
    s_mul_i32 s{s_t1}, s{s_nb}, {NKS * 5120}
    s_lshl_b32 s{s_xo}, s{s_wave}, 12
    s_mul_i32 s{s_wo}, s{s_wave}, 5120
    s_waitcnt lgkmcnt(0)
    """)
    srd(a, sX, 4, off_lines_reg=s_t0, off_imm=x_off, size=NKS * 4096)
    srd(a, sW, 4, off_lines_reg=s_t1, off_imm=w_off, size=NKS * 5120)
    vm = VmTracker()

    def loads(i):
        out = []
        for j in range(5):
            out.append(f"buffer_load_dwordx4 {Wf(i, j)}, {vW[j // 4]}, {sr(sW, 4)}, s{s_wo} offen offset:{(j % 4) * 1024}")
        for tl in range(4):
            out.append(f"buffer_load_dwordx4 {Xf(i, tl)}, {vX[tl]}, {sr(sX, 4)}, s{s_xo} offen")
        return out
    adv = [f"s_add_u32 s{s_xo}, s{s_xo}, {4 * 4096}", f"s_add_u32 s{s_wo}, s{s_wo}, {4 * 5120}"]
    for i in range(min(PD - 1, steps)):
        for l in loads(i):
            a(l)
            vm.issue(i)
        for l in adv:
            a(l)
        if i == 0:
            a(f"""
            v_and_b32 {t[1]}, 15, v0
            v_lshl_add_u32 {t[1]}, {t[0]}, 4, {t[1]}
            v_mul_u32_u24 {t[1]}, {D * 2}, {t[1]}
            v_lshrrev_b32 {t[2]}, 4, v0
            v_mul_u32_u24 {t[2]}, 40, {t[2]}
            v_add_u32 {vR}, {t[1]}, {t[2]}
            v_lshlrev_b32 {vG}, 1, {t[2]}
            s_mul_i32 s{s_t0}, s{s_tb}, {64 * D * 2}
            s_mul_i32 s{s_t1}, s{s_nb}, 160
            s_add_u32 s{s_t0}, s{s_t0}, s{s_t1}
            s_sub_u32 s38, {64 * D * 2}, s{s_t1}
            """)
            srd(a, sR, 6, off_lines_reg=s_t0, off_imm=res_off, size_reg=38)
            srd(a, sO, 36, off_lines_reg=s_t0, off_imm=out_off, size_reg=38)
            a(f"s_mul_i32 s{s_t1}, s{s_nb}, 320")
            srd(a, sG, 4, off_lines_reg=s_t1, off_imm=WS_MOD + gate_idx * D * 4, size=320)
    for i in range(steps):
        n = vm.count_after(lambda tg: tg == i)
        if i == 0:
            a.lines.append("; STAMP issued")
        a(f"s_waitcnt vmcnt({n})")
        if i == 0 or i == steps // 2:
            a.lines.append("; STAMP data")
        pend = []
        if i + PD - 1 < steps:
            pend = [(l, i + PD - 1) for l in loads(i + PD - 1)]
        elif i + PD - 1 == steps:
            pend = [(f"buffer_load_dwordx2 {RES.sub(2 * j, 2)}, {vR}, {sr(sR, 4)}, 0 offen offset:{8 * j}", "e") for j in range(5)]
            pend += [(f"buffer_load_dwordx4 {G.sub(4 * j, 4)}, {vG}, {sr(sG, 4)}, 0 offen offset:{16 * j}", "e") for j in range(5)]
        k = 0
        for j in range(5):
            for tl in range(4):
                c = "0" if i == 0 else str(acc(tl, j))
                a(f"{MFMA16} {acc(tl, j)}, {Wf(i, j)}, {Xf(i, tl)}, {c}")
                if k % 2 == 0 and pend:
                    l, tg = pend.pop(0)
                    a(l)
                    vm.issue(tg)
                k += 1
        assert not pend
        if i + PD - 1 < steps:
            for l in adv:
                a(l)
    for tl in range(1, 4):
        for j in range(5):
            a(f"ds_write_b128 {vL[tl]}, {acc(tl, j)} offset:{((tl - 1) * 5 + j) * 1024}")
    V = ring.sub(0, 20)
    Pt = ring.sub(20, 60)
    for i in range(20):
        a(f"v_accvgpr_read_b32 {V[i]}, {ACC[i]}")
    a("s_waitcnt lgkmcnt(0)")
    a("s_barrier")
    for s in range(3):
        for j in range(5):
            a(f"ds_read_b128 {Pt.sub((s * 5 + j) * 4, 4)}, {vL[0]} offset:{(s * 5 + j) * 1024}")
    Gv = ring.sub(80, 20)
    a("s_waitcnt vmcnt(0)")
    for i in range(20):
        a(f"v_accvgpr_read_b32 {Gv[i]}, {G[i]}")
    for s in range(3):
        a(f"s_waitcnt lgkmcnt({10 - 5 * s})")
        for i in range(20):
            a(f"v_add_f32 {V[i]}, {V[i]}, {Pt[s * 20 + i]}")
    for j in range(5):
        for p in range(2):
            r = RES[2 * j + p]
            i0 = 4 * j + 2 * p
            a(f"v_lshlrev_b32 {t[1]}, 16, {r}")
            a(f"v_and_b32 {t[2]}, 0xffff0000, {r}")
            a(f"v_fmac_f32 {t[1]}, {V[i0]}, {Gv[i0]}")
            a(f"v_fmac_f32 {t[2]}, {V[i0 + 1]}, {Gv[i0 + 1]}")
            a(f"v_cvt_pk_bf16_f32 {r}, {t[1]}, {t[2]}")
        a(f"buffer_store_dwordx2 {RES.sub(2 * j, 2)}, {vR}, {sr(sO, 4)}, 0 offen offset:{8 * j}")
    if timing:
        timing_tail(a, 44, s_wave, ring.sub(0, 2), t[3])
    a.label(f"{name}_end")
    a("s_endpgm")
    return (name, a.lines, 256 + aa.p, 256, 256, 256, 61440)


def gen_gateup(name, la_frags=5, timing=False):
    NQB, NW, SLOT = 4, 4, 16384
    a = Asm()
    va = Alloc(1, 256)
    aa = Alloc(0, 256, acc=True)
    t = va.get(7)
    vA = [va.get(4) for _ in range(3)]
    vWd, vHo = va.get(1), va.get(1)
    ACC = va.get(128, 4)
    OUT = va.get(32, 4)
    Hr = aa.get(128, 4)
    FR = aa.get(32, 4)
    acc = lambda qb, db: ACC.sub((qb * 8 + db) * 4, 4)
    Hf = lambda stage, ks, qb: Hr.sub((((stage % 4) * 2 + ks) * NQB + qb) * 4, 4)
    sG, sU, sH, sO = 8, 12, 16, 20
    s_wave, s_wb, s_fb, s_tb, s_t0, s_t1 = range(28, 34)
    st = Stream(a, FR, 8, la_frags * NQB, 2)
    RS = F * 2
    a(f"""
    s_cmp_ge_u32 s2, 256
    s_cbranch_scc1 {name}_end
    s_load_dwordx4 s[4:7], s[0:1], {KA_WG}
    s_load_dwordx2 s[24:25], s[0:1], {KA_WS}
    """)
    if timing:
        timing_head(a, 44)
    a(f"""
    v_lshrrev_b32 {t[0]}, 6, v0
    v_and_b32 v0, 63, v0
    v_readfirstlane_b32 s{s_wave}, {t[0]}
    s_and_b32 s{s_tb}, s2, 1
    s_lshl_b32 s{s_tb}, s{s_tb}, 2
    s_bfe_u32 s{s_t0}, s2, 0x20003
    s_add_u32 s{s_tb}, s{s_tb}, s{s_t0}
    s_bfe_u32 s{s_fb}, s2, 0x20001
    s_mul_i32 s{s_fb}, s{s_fb}, 7
    s_lshr_b32 s{s_t0}, s2, 5
    s_add_u32 s{s_fb}, s{s_fb}, s{s_t0}
    s_cmp_eq_u32 s{s_t0}, 7
    s_cbranch_scc1 {name}_pf
    s_cmp_ge_u32 s{s_fb}, 27
    s_cbranch_scc1 {name}_fin
    """)
    tr_dma_col(a, t[3], [t[1], t[2]])
    a(f"""
    s_lshl_b32 s{s_tb}, s{s_tb}, 2
    s_add_u32 s{s_tb}, s{s_tb}, s{s_wave}
    s_lshl_b32 s{s_wb}, s{s_wave}, 10
    v_lshrrev_b32 {t[1]}, 3, v0
    v_lshl_add_u32 {t[1]}, {t[0]}, 3, {t[1]}
    v_mul_u32_u24 {t[1]}, {RS}, {t[1]}
    v_add_u32 {vWd}, {t[1]}, {t[3]}
    v_lshlrev_b32 {vHo}, 4, v0
    s_lshl_b32 s{s_t0}, s{s_fb}, 7
    s_sub_u32 s34, {D * RS}, s{s_t0}
    s_mul_i32 s{s_t1}, s{s_tb}, {20 * 4096}
    s_waitcnt lgkmcnt(0)
    """)
    srd(a, sG, 4, off_lines_reg=s_t0, size_reg=34)
    srd(a, sU, 6, off_lines_reg=s_t0, size_reg=34)
    srd(a, sH, 24, off_lines_reg=s_t1, off_imm=WS_H2, size=20 * 4096)

    def w_tile(s):
        ops = []
        for rg in range(2):
            for half in range(2):
                n = rg * NW + half * 8
                pre = [f"s_add_u32 m0, s{s_wb}, {s * SLOT + n * 1024}",
                       f"s_mov_b32 s{s_t0}, {(s * 64 + rg * 32) * RS}"]
                ops.append(VmOp(f"buffer_load_dwordx4 {vWd}, {sr(sU if half else sG, 4)}, s{s_t0} offen lds", ("W", s), pre))
        return ops

    def h_loads(stage):
        ops = []
        for ks in range(2):
            for qb in range(NQB):
                pre = [f"s_mov_b32 s{s_t1}, {(stage * 2 + ks) * 4096}"] if qb == 0 else []
                ops.append(VmOp(f"buffer_load_dwordx4 {Hf(stage, ks, qb)}, {vHo}, {sr(sH, 4)}, s{s_t1} offen offset:{qb * 1024}",
                                ("h", stage), pre))
        return ops
    for s in range(2):
        for op in w_tile(s) + h_loads(s):
            st.emit_vm(op)
    tr_addr_setup(a, vA[0], [t[1], t[2], t[3]])
    for i in range(4):
        a(f"v_add_u32 {vA[1][i]}, 0x10000, {vA[0][i]}")
        a(f"v_add_u32 {vA[2][i]}, 0x20000, {vA[0][i]}")
    a(f"""
    s_mul_i32 s{s_t0}, s{s_tb}, {54 * 4096}
    s_lshl_b32 s34, s{s_fb}, 13
    s_add_u32 s{s_t0}, s{s_t0}, s34
    """)
    srd(a, sO, 24, off_lines_reg=s_t0, off_imm=WS_ACT, size=8192)

    def tr_frag(slot, u, db, guard=None):
        base = slot * SLOT
        ar, rel = vA[base >> 16], base & 0xffff
        return Frag([("ds_read_b64_tr_b16", 2 * e4, 2, ar[db % 4], rel + (db // 4) * 8192 + (32 * u + 16 * e4) * 128)
                     for e4 in range(2)], guard)
    items, vms = [], []
    for s in range(10):
        first = len(items)
        for ks in range(2):
            for db in range(8):
                g = st.guard_wait([("W", s), ("h", s)]) if (ks == 0 and db == 0) else None
                fr = tr_frag(s, ks, db, g)
                for qb in range(NQB):
                    c = "0" if (s == 0 and ks == 0) else str(acc(qb, db))
                    items.append(Item(f"{MFMA16} {acc(qb, db)}, {{A}}, {Hf(s, ks, qb)}, {c}", fr))
        ops = []
        if s == 0:
            ops += w_tile(2) + h_loads(2)
        if s + 3 < 10:
            ops += w_tile(s + 3) + h_loads(s + 3)
        if ops:
            vms.append((first + 1, first + 63, ops))
    st.layout(items)
    for g0, g1, ops in vms:
        st.place_vm(items, g0, g1, ops)
    for g in (0, 64, 192, 320, 639):
        items[g].block.append("; STAMP")
    a.lines.append("; STAMP")
    st.emit(items, [])
    for i in range(2):
        a(f"s_mov_b32 s{s_t0}, {i * 4096}")
        for qb in range(NQB):
            dst = OUT.sub((i * 4 + qb) * 4, 4)
            for hf in range(2):
                gt, up = acc(qb, 2 * i + hf), acc(qb, 4 + 2 * i + hf)
                for r in range(4):
                    a(f"v_max_f32 {gt[r]}, 0, {gt[r]}")
                for r in range(4):
                    a(f"v_mul_f32 {gt[r]}, {gt[r]}, {up[r]}")
                for j in range(2):
                    a(f"v_cvt_pk_bf16_f32 {dst[2 * hf + j]}, {gt[2 * j]}, {gt[2 * j + 1]}")
            a(f"buffer_store_dwordx4 {dst}, {vHo}, {sr(sO, 4)}, s{s_t0} offen offset:{qb * 1024}")
    a(f"s_branch {name}_fin")
    a.label(f"{name}_pf")
    a(f"""
    s_bfe_u32 s{s_t0}, s2, 0x10002
    s_lshl_b32 s{s_t0}, s{s_t0}, 2
    s_bfe_u32 s{s_t1}, s2, 0x20003
    s_add_u32 s{s_t0}, s{s_t0}, s{s_t1}
    s_mul_i32 s{s_t0}, s{s_t0}, {54 * 5120}
    v_lshlrev_b32 {vHo}, 4, v0
    s_lshl_b32 s{s_t1}, s{s_wave}, 10
    s_waitcnt lgkmcnt(0)
    """)
    srd(a, sG, 24, off_lines_reg=s_t0, off_imm=WS_WDF, size=54 * 5120)
    for i in range(68):
        a(f"buffer_load_dwordx4 {ACC.sub(4 * (i % 16), 4)}, {vHo}, {sr(sG, 4)}, s{s_t1} offen")
        a(f"s_add_u32 s{s_t1}, s{s_t1}, 4096")
        if i >= 40:
            a("s_waitcnt vmcnt(40)")
    a.label(f"{name}_fin")
    a.label(f"{name}_end")
    a("s_endpgm")
    return (name, a.lines, 256 + aa.p, 256, 256, 256, 163840)


def gen_oproj(name, la_frags=8, NRING=6, XD=4, timing=False):
    NT, NB, NST = 2, 10, 16
    SL = 64 * 320
    a = Asm()
    va = Alloc(1, 256)
    t = va.get(7)
    vA = [va.get(2) for _ in range(2)]
    vWd = va.get(5)
    vHo = va.get(1)
    ACC = va.get(80, 4)
    Xr = va.get(XD * 16, 4)
    NFR = 12
    FR = va.get(4 * NFR, 4)
    acc = lambda tb, j: ACC.sub((tb * NB + j) * 4, 4)
    Xf = lambda stage, ks, tb: Xr.sub((((stage % XD) * 2 + ks) * NT + tb) * 4, 4)
    sW, sX, sO = 8, 12, 16
    s_wave, s_wb, s_hg, s_tb, s_nb, s_t0, s_t1 = range(28, 35)
    st = Stream(a, FR, NFR, la_frags * NT, 2)
    a(f"""
    s_cmp_ge_u32 s2, 256
    s_cbranch_scc1 {name}_end
    s_load_dwordx2 s[4:5], s[0:1], {KA_WO}
    s_load_dwordx2 s[6:7], s[0:1], {KA_WS}
    v_lshrrev_b32 {t[0]}, 6, v0
    v_readfirstlane_b32 s{s_wave}, {t[0]}
    s_bfe_u32 s{s_hg}, s2, 0x20001
    s_and_b32 s{s_tb}, s2, 1
    s_lshl_b32 s{s_tb}, s{s_tb}, 3
    s_bfe_u32 s{s_t0}, s2, 0x30003
    s_add_u32 s{s_tb}, s{s_tb}, s{s_t0}
    s_lshr_b32 s{s_nb}, s2, 6
    """)
    for i in range(5):
        a(f"""
        v_add_u32 {t[1]}, {256 * i}, v0
        v_mul_u32_u24 {t[2]}, 3277, {t[1]}
        v_lshrrev_b32 {t[2]}, 16, {t[2]}
        v_mul_u32_u24 {t[3]}, 20, {t[2]}
        v_sub_u32 {t[3]}, {t[1]}, {t[3]}
        v_bfe_u32 {t[4]}, {t[2]}, 2, 1
        v_lshlrev_b32 {t[4]}, 1, {t[4]}
        v_xor_b32 {t[3]}, {t[3]}, {t[4]}
        v_mul_u32_u24 {t[2]}, {D * 2}, {t[2]}
        v_lshl_add_u32 {vWd[i]}, {t[3]}, 4, {t[2]}
        """)
    assert all((p * 3277) >> 16 == p // 20 for p in range(1280))
    a(f"""
    v_and_b32 v0, 63, v0
    v_lshlrev_b32 {vHo}, 4, v0
    s_lshl_b32 s{s_wb}, s{s_wave}, 10
    s_mul_i32 s{s_t0}, s{s_hg}, {1024 * D * 2}
    s_mul_i32 s{s_t1}, s{s_nb}, 320
    s_add_u32 s{s_t0}, s{s_t0}, s{s_t1}
    s_sub_u32 s36, {1024 * D * 2}, s{s_t1}
    s_lshl_b32 s37, s{s_tb}, 1
    s_lshr_b32 s38, s{s_wave}, 1
    s_add_u32 s37, s37, s38
    s_and_b32 s38, s{s_wave}, 1
    s_lshl_b32 s38, s38, 11
    s_lshl_b32 s39, s37, 19
    s_lshl_b32 s40, s{s_hg}, 17
    s_add_u32 s39, s39, s40
    s_add_u32 s39, s39, s38
    s_sub_u32 s40, {32 * 4096}, s38
    s_waitcnt lgkmcnt(0)
    """)
    srd(a, sW, 4, off_lines_reg=s_t0, size_reg=36)
    srd(a, sX, 6, off_lines_reg=39, off_imm=WS_O, size_reg=40)

    def w_tile(s):
        ops = []
        for i in range(5):
            pre = [f"s_add_u32 m0, s{s_wb}, {(s % NRING) * SL + i * 4096}"]
            if i == 0:
                pre.append(f"s_mov_b32 s{s_t0}, {s * 64 * D * 2}")
            ops.append(VmOp(f"buffer_load_dwordx4 {vWd[i]}, {sr(sW, 4)}, s{s_t0} offen lds", ("W", s), pre))
        return ops

    def x_loads(s):
        ops = []
        for ks in range(2):
            for tb in range(NT):
                pre = [f"s_mov_b32 s{s_t1}, {(s * 2 + ks) * 4096}"] if tb == 0 else []
                ops.append(VmOp(f"buffer_load_dwordx4 {Xf(s, ks, tb)}, {vHo}, {sr(sX, 4)}, s{s_t1} offen offset:{tb * 1024}",
                                ("x", s), pre))
        return ops
    PF = XD - 1
    for s in range(PF):
        for op in w_tile(s) + x_loads(s):
            st.emit_vm(op)
    a(f"""
    v_lshrrev_b32 {t[1]}, 2, v0
    v_mul_u32_u24 {t[1]}, 320, {t[1]}
    v_and_b32 {t[2]}, 3, v0
    v_lshl_add_u32 {t[1]}, {t[2]}, 3, {t[1]}
    v_bfe_u32 {t[2]}, v0, 4, 1
    v_lshlrev_b32 {t[2]}, 5, {t[2]}
    v_add_u32 {vA[0][0]}, {t[1]}, {t[2]}
    v_xor_b32 {t[2]}, 32, {t[2]}
    v_add_u32 {vA[0][1]}, {t[1]}, {t[2]}
    v_add_u32 {vA[1][0]}, {3 * SL}, {vA[0][0]}
    v_add_u32 {vA[1][1]}, {3 * SL}, {vA[0][1]}
    s_mul_i32 s39, s37, {20 * 4096}
    s_mul_i32 s40, s{s_hg}, {S * D * 2}
    s_add_u32 s39, s39, s40
    s_mul_i32 s40, s{s_nb}, {5 * 4096}
    s_add_u32 s39, s39, s40
    s_add_u32 s39, s39, s38
    s_sub_u32 s40, {5 * 4096}, s38
    """)
    srd(a, sO, 6, off_lines_reg=39, off_imm=WS_PART, size_reg=40)

    def tr_frag(s, ks, j, guard=None):
        slot = s % NRING
        ar, rel = vA[slot // 3], (slot % 3) * SL
        return Frag([("ds_read_b64_tr_b16", 2 * e4, 2, ar[j % 2], rel + (32 * ks + 16 * e4) * 320 + (j // 2) * 64)
                     for e4 in range(2)], guard)
    items, vms = [], []
    nst = 2 * NB * NT
    for s in range(NST):
        first = len(items)
        for ks in range(2):
            for j in range(NB):
                g = st.guard_wait([("W", s), ("x", s)]) if (ks == 0 and j == 0) else None
                fr = tr_frag(s, ks, j, g)
                for tb in range(NT):
                    c = "0" if (s == 0 and ks == 0) else str(acc(tb, j))
                    items.append(Item(f"{MFMA16} {acc(tb, j)}, {{A}}, {Xf(s, ks, tb)}, {c}", fr))
        if s + PF < NST:
            assert NRING >= PF + 2
            vms.append((first + 1, first + nst - 1, w_tile(s + PF) + x_loads(s + PF)))
    st.layout(items)
    for g0, g1, ops in vms:
        st.place_vm(items, g0, g1, ops)
    for g in (0, nst * 4, nst * 8, len(items) - 1):
        items[g].block.append("; STAMP")
    a.lines.append("; STAMP")
    st.emit(items, [])
    print(name, "estimated cycles", sum(st.est))
    k = 0
    for i in range(5):
        a(f"s_mov_b32 s{s_t0}, {i * 4096}")
        for tb in range(NT):
            dst = Xr.sub(4 * k, 4)
            k += 1
            for hf in range(2):
                src = acc(tb, 2 * i + hf)
                for j in range(2):
                    a(f"v_cvt_pk_bf16_f32 {dst[2 * hf + j]}, {src[2 * j]}, {src[2 * j + 1]}")
            a(f"buffer_store_dwordx4 {dst}, {vHo}, {sr(sO, 4)}, s{s_t0} offen offset:{tb * 1024}")
    a.label(f"{name}_end")
    a("s_endpgm")
    return (name, a.lines, va.p, (va.p + 3) // 4 * 4, 256, 256, NRING * SL)
```

```python
from asmlib import Asm, Alloc, Reg, sr
from stream import f32hex
from layout import *


def srd(a, dst, base, off_lines_reg=None, off_imm=0, size=None, size_reg=None):
    if off_lines_reg is not None:
        a(f"s_add_u32 s{dst}, s{base}, s{off_lines_reg}")
        a(f"s_addc_u32 s{dst+1}, s{base+1}, 0")
        if off_imm:
            a(f"s_add_u32 s{dst}, s{dst}, {off_imm}")
            a(f"s_addc_u32 s{dst+1}, s{dst+1}, 0")
    else:
        a(f"s_add_u32 s{dst}, s{base}, {off_imm}")
        a(f"s_addc_u32 s{dst+1}, s{base+1}, 0")
    a(f"s_mov_b32 s{dst+2}, {size if size_reg is None else 's%d' % size_reg}")
    a(f"s_mov_b32 s{dst+3}, 0x20000")


def round_bf16(a, v, tmp):
    a(f"v_cvt_pk_bf16_f32 {v}, {v}, {v}")
    a(f"v_and_b32 {v}, 0xffff0000, {v}")


def mod_body(a, name, wg, pf=None):
    a(f"""
    s_load_dwordx4 s[4:7], s[0:1], {KA_C}
    s_load_dwordx2 s[16:17], s[0:1], {KA_WS}
    v_and_b32 v1, 3, v0
    v_lshrrev_b32 v2, 2, v0
    v_lshlrev_b32 v3, 1, v2
    v_mul_u32_u24 v4, {6 * D * 2}, v2
    v_lshl_add_u32 v4, v1, 4, v4
    s_lshl_b32 s20, s{wg}, 6
    s_waitcnt lgkmcnt(0)
    """)
    srd(a, 8, 4, size=D * 2)
    srd(a, 12, 6, size=D * 6 * D * 2)
    W = Reg(16, 40)
    C = Reg(56, 10)
    ACC = Reg(8, 8)
    for i in range(10):
        a(f"buffer_load_ushort {C[i]}, v3, s[8:11], 0 offen offset:{128 * i}")
    for i in range(10):
        a(f"s_add_u32 s21, s20, {64 * i * 6 * D * 2}")
        a(f"buffer_load_dwordx4 {W.sub(4 * i, 4)}, v4, s[12:15], s21 offen")
    npf = pf(a) if pf else 0
    for j in range(8):
        a(f"v_mov_b32 {ACC[j]}, 0")
    a(f"s_waitcnt vmcnt({10 + npf})")
    for i in range(10):
        a(f"v_lshlrev_b32 {C[i]}, 16, {C[i]}")
        a(f"v_mul_f32 v5, {f32hex(-1.4426950408889634)}, {C[i]}")
        a(f"v_exp_f32 v5, v5")
        a(f"v_add_f32 v5, 1.0, v5")
        a(f"v_rcp_f32 v5, v5")
        a(f"v_mul_f32 {C[i]}, {C[i]}, v5")
        round_bf16(a, C[i], None)
    for i in range(10):
        a(f"s_waitcnt vmcnt({9 - i + npf})")
        for j in range(4):
            w = W[4 * i + j]
            a(f"v_lshlrev_b32 v5, 16, {w}")
            a(f"v_and_b32 v6, 0xffff0000, {w}")
            a(f"v_fmac_f32 {ACC[2 * j]}, v5, {C[i]}")
            a(f"v_fmac_f32 {ACC[2 * j + 1]}, v6, {C[i]}")
    a(f"""
    v_lshlrev_b32 v5, 5, v0
    ds_write_b128 v5, {ACC.sub(0, 4)}
    ds_write_b128 v5, {ACC.sub(4, 4)} offset:16
    s_waitcnt lgkmcnt(0)
    s_barrier
    v_and_b32 v1, 31, v0
    v_lshrrev_b32 v2, 5, v0
    v_lshlrev_b32 v5, 2, v1
    v_lshl_add_u32 v5, v2, 10, v5
    """)
    for i in range(8):
        a(f"ds_read_b32 {W[i]}, v5 offset:{128 * i}")
    a("s_waitcnt lgkmcnt(0)")
    for i in range(1, 8):
        a(f"v_add_f32 {W[0]}, {W[0]}, {W[i]}")
    a(f"""
    s_barrier
    v_lshlrev_b32 v5, 2, v0
    ds_write_b32 v5, {W[0]}
    s_waitcnt lgkmcnt(0)
    s_barrier
    v_lshlrev_b32 v5, 2, v1
    """)
    for i in range(8):
        a(f"ds_read_b32 {W[i]}, v5 offset:{128 * i}")
    a("s_waitcnt lgkmcnt(0)")
    for i in range(1, 8):
        a(f"v_add_f32 {W[0]}, {W[0]}, {W[i]}")
    round_bf16(a, W[0], None)
    a(f"""
    s_sub_u32 s21, s{wg}, 20
    s_cmp_lt_u32 s21, 20
    s_cselect_b32 s22, 1.0, 0
    s_sub_u32 s21, s{wg}, 80
    s_cmp_lt_u32 s21, 20
    s_cselect_b32 s22, 1.0, s22
    v_add_f32 {W[0]}, s22, {W[0]}
    """)
    round_bf16(a, W[0], None)
    srd(a, 8, 16, off_imm=WS_MOD, size=3840 * 4)
    a(f"""
    s_lshl_b32 s20, s{wg}, 7
    v_cmp_gt_u32 vcc, 32, v0
    s_and_saveexec_b64 s[24:25], vcc
    s_cbranch_execz {name}_modend
    buffer_store_dword {W[0]}, v5, s[8:11], s20 offen
    {name}_modend:
    """)


def gen_mod(name):
    a = Asm()
    a(f"""
    s_cmp_ge_u32 s2, 256
    s_cbranch_scc1 {name}_end
    s_load_dwordx2 s[44:45], s[0:1], {KA_X}
    s_load_dwordx2 s[46:47], s[0:1], {KA_WQ}
    v_lshlrev_b32 v66, 4, v0
    v_and_b32 v67, 127, v0
    v_lshlrev_b32 v67, 4, v67
    v_lshrrev_b32 v68, 7, v0
    v_lshl_add_u32 v67, v68, 13, v67
    s_and_b32 s40, s2, 1
    s_lshl_b32 s40, s40, 7
    s_lshr_b32 s41, s2, 1
    s_add_u32 s40, s40, s41
    s_mul_i32 s40, s40, {8 * D * 2}
    s_lshr_b32 s41, s2, 3
    s_mul_i32 s41, s41, {20 * 8192}
    s_bfe_u32 s42, s2, 0x20001
    s_lshl_b32 s42, s42, 11
    s_add_u32 s41, s41, s42
    s_waitcnt lgkmcnt(0)
    """)
    srd(a, 48, 44, off_lines_reg=40, size=8 * D * 2)
    srd(a, 52, 46, size=D * H * DH * 2)

    def pf(a):
        for i in range(3):
            a(f"s_mov_b32 s43, {4096 * i}")
            a(f"buffer_load_dwordx4 v[72:75], v66, s[48:51], s43 offen")
        for i in range(10):
            a(f"s_add_u32 s43, s41, {2 * 8192 * i}")
            a(f"buffer_load_dwordx4 v[72:75], v67, s[52:55], s43 offen")
        return 13
    a(f"""
    s_cmp_ge_u32 s2, 182
    s_cbranch_scc1 {name}_pfonly
    s_cmp_ge_u32 s2, 128
    s_cbranch_scc1 {name}_relay
    s_cmp_ge_u32 s2, 120
    s_cbranch_scc1 {name}_pfonly
    """)
    mod_body(a, name, 2, pf)
    a(f"s_branch {name}_fin")
    a.label(f"{name}_relay")
    relayout_body(a, name, 2, pf)
    a(f"s_branch {name}_fin")
    a.label(f"{name}_pfonly")
    pf(a)
    a.label(f"{name}_fin")
    a.label(f"{name}_end")
    a("s_endpgm")
    return (name, a.lines, 80, 80, 256, 256, 40960)


def ln_body(a, t8, which, prefetch=None):
    X = Reg(12, 4)
    Xf = Reg(16, 8)
    SC = Reg(24, 8)
    SH = Reg(32, 8)
    PT = Reg(40, 16)
    ST = Reg(40, 20)
    dst_off, shift_idx, scale_idx = (WS_H, 0, 1) if which == 1 else (WS_H2, 3, 4)
    a(f"""
    s_load_dwordx2 s[4:5], s[0:1], {KA_X}
    s_load_dwordx2 s[6:7], s[0:1], {KA_WS}
    v_and_b32 v1, 7, v0
    v_bfe_u32 v2, v0, 3, 2
    v_lshrrev_b32 v3, 5, v0
    v_lshlrev_b32 v4, 2, v2
    v_lshl_add_u32 v4, v3, 5, v4
    v_mul_u32_u24 v5, {D * 2}, v1
    v_lshl_add_u32 v5, v4, 1, v5
    v_lshlrev_b32 v6, 2, v4
    v_lshlrev_b32 v7, 4, v1
    v_lshl_add_u32 v7, v2, 8, v7
    v_lshl_add_u32 v7, v3, 12, v7
    s_mul_i32 s20, s{t8}, {8 * D * 2}
    s_lshr_b32 s36, s{t8}, 3
    s_mul_i32 s36, s36, {20 * 4096}
    s_bfe_u32 s21, s{t8}, 0x20001
    s_lshl_b32 s21, s21, 10
    s_and_b32 s22, s{t8}, 1
    s_lshl_b32 s22, s22, 7
    s_add_u32 s21, s21, s22
    s_add_u32 s36, s36, s21
    s_sub_u32 s23, {20 * 4096}, s21
    s_waitcnt lgkmcnt(0)
    """)
    if which == 2:
        a(f"s_add_u32 s37, s23, {3 * S * D * 2}")
        srd(a, 24, 6, off_lines_reg=36, off_imm=WS_PART, size_reg=37)
        for sp in range(4):
            a(f"s_mov_b32 s21, {sp * S * D * 2}")
            a(f"buffer_load_dwordx4 {PT.sub(sp * 4, 4)}, v7, s[24:27], s21 offen")
    srd(a, 8, 4, off_lines_reg=20, size=8 * D * 2)
    for e4 in range(2):
        a(f"buffer_load_dwordx2 {X.sub(2 * e4, 2)}, v5, s[8:11], 0 offen offset:{32 * e4}")
    srd(a, 12, 6, off_imm=WS_MOD, size=3840 * 4)
    if which == 2:
        a(f"s_mov_b32 s21, {2 * D * 4}")
        for e4 in range(2):
            a(f"buffer_load_dwordx4 {Xf.sub(4 * e4, 4)}, v6, s[12:15], s21 offen offset:{64 * e4}")
    a(f"s_mov_b32 s21, {scale_idx * D * 4}")
    a(f"s_mov_b32 s22, {shift_idx * D * 4}")
    for e4 in range(2):
        a(f"buffer_load_dwordx4 {SC.sub(4 * e4, 4)}, v6, s[12:15], s21 offen offset:{64 * e4}")
        a(f"buffer_load_dwordx4 {SH.sub(4 * e4, 4)}, v6, s[12:15], s22 offen offset:{64 * e4}")
    srd(a, 16, 6, off_lines_reg=36, off_imm=dst_off, size_reg=23)
    a(f"""
    v_lshrrev_b32 v2, 6, v0
    v_lshlrev_b32 v2, 6, v2
    v_lshl_add_u32 v2, v1, 3, v2
    v_lshlrev_b32 v3, 3, v1
    """)
    npf = prefetch(a) if prefetch else 0
    a("; STAMP")
    if which == 2:
        srd(a, 28, 6, off_lines_reg=20, off_imm=WS_X1, size=8 * D * 2)
        a(f"s_waitcnt vmcnt({8 + npf})")
        a("; STAMP")
        for i in range(4):
            a(f"v_lshlrev_b32 v8, 16, {PT[i]}")
            a(f"v_and_b32 v9, 0xffff0000, {PT[i]}")
            for sp in range(1, 4):
                a(f"v_lshlrev_b32 v10, 16, {PT[sp * 4 + i]}")
                a(f"v_and_b32 v11, 0xffff0000, {PT[sp * 4 + i]}")
                d0, d1 = (PT[i], PT[4 + i]) if sp == 3 else ("v8", "v9")
                a(f"v_add_f32 {d0}, v8, v10")
                a(f"v_add_f32 {d1}, v9, v11")
        a(f"s_waitcnt vmcnt({4 + npf})")
        for i in range(4):
            a(f"v_lshlrev_b32 v8, 16, {X[i]}")
            a(f"v_and_b32 v9, 0xffff0000, {X[i]}")
            a(f"v_fmac_f32 v8, {Xf[2 * i]}, {PT[i]}")
            a(f"v_fmac_f32 v9, {Xf[2 * i + 1]}, {PT[4 + i]}")
            a(f"v_cvt_pk_bf16_f32 {X[i]}, v8, v9")
        for e4 in range(2):
            a(f"buffer_store_dwordx2 {X.sub(2 * e4, 2)}, v5, s[28:31], 0 offen offset:{32 * e4}")
    else:
        a(f"s_waitcnt vmcnt({4 + npf})")
        a("; STAMP")
    for i in range(4):
        a(f"v_lshlrev_b32 {Xf[2 * i]}, 16, {X[i]}")
        a(f"v_and_b32 {Xf[2 * i + 1]}, 0xffff0000, {X[i]}")

    def reduce(v, t):
        a(f"""
        v_add_f32_dpp {v}, {v}, {v} row_ror:8 row_mask:0xf bank_mask:0xf
        v_mov_b32 {t}, {v}
        v_permlane16_swap_b32 {v}, {t}
        v_add_f32 {v}, {v}, {t}
        v_mov_b32 {t}, {v}
        v_permlane32_swap_b32 {v}, {t}
        v_add_f32 {v}, {v}, {t}
        """)
    a(f"v_add_f32 v8, {Xf[0]}, {Xf[1]}")
    a(f"v_add_f32 v9, {Xf[2]}, {Xf[3]}")
    a(f"v_add_f32 v10, {Xf[4]}, {Xf[5]}")
    a(f"v_add_f32 v11, {Xf[6]}, {Xf[7]}")
    a("v_add_f32 v8, v8, v9\nv_add_f32 v10, v10, v11\nv_add_f32 v8, v8, v10")
    reduce("v8", "v9")
    a(f"v_mul_f32 v8, {f32hex(1.0 / 64)}, v8")
    a(f"v_sub_f32 v10, {Xf[0]}, v8")
    a("v_mul_f32 v9, v10, v10")
    for i in range(1, 8):
        a(f"v_sub_f32 v10, {Xf[i]}, v8")
        a("v_fmac_f32 v9, v10, v10")
    reduce("v9", "v10")
    a("""
    ds_write_b64 v2, v[8:9]
    s_waitcnt lgkmcnt(0)
    s_barrier
    """)
    for w in range(10):
        a(f"ds_read_b64 {ST.sub(2 * w, 2)}, v3 offset:{64 * w}")
    a("s_waitcnt lgkmcnt(0)")
    a(f"v_add_f32 v8, {ST[0]}, {ST[2]}")
    a(f"v_add_f32 v9, {ST[1]}, {ST[3]}")
    for w in range(2, 10):
        a(f"v_add_f32 v8, v8, {ST[2 * w]}")
        a(f"v_add_f32 v9, v9, {ST[2 * w + 1]}")
    a(f"v_mul_f32 v8, {f32hex(0.1)}, v8")
    a(f"v_sub_f32 v10, {ST[0]}, v8")
    a("v_mul_f32 v11, v10, v10")
    for w in range(1, 10):
        a(f"v_sub_f32 v10, {ST[2 * w]}, v8")
        a("v_fmac_f32 v11, v10, v10")
    a(f"v_fmac_f32 v9, {f32hex(64.0)}, v11")
    a(f"v_mov_b32 v10, {f32hex(1e-5)}")
    a(f"v_fmac_f32 v10, {f32hex(1.0 / D)}, v9")
    a("v_rsq_f32 v9, v10")
    for i in range(8):
        a(f"v_sub_f32 {Xf[i]}, {Xf[i]}, v8")
    for i in range(8):
        a(f"v_mul_f32 {Xf[i]}, {Xf[i]}, v9")
    a(f"s_waitcnt vmcnt({(2 if which == 2 else 0) + npf})")
    for j in range(8):
        a(f"v_fma_f32 {Xf[j]}, {Xf[j]}, {SC[j]}, {SH[j]}")
    for j in range(4):
        a(f"v_cvt_pk_bf16_f32 {ST[j]}, {Xf[2 * j]}, {Xf[2 * j + 1]}")
    a(f"buffer_store_dwordx4 {ST.sub(0, 4)}, v7, s[16:19], 0 offen")
    a("; STAMP")


def gen_ln(name, which):
    a = Asm()
    a(f"""
    s_cmp_ge_u32 s2, 256
    s_cbranch_scc1 {name}_end
    s_and_b32 s3, s2, 1
    s_lshl_b32 s3, s3, 7
    s_lshr_b32 s40, s2, 1
    s_add_u32 s3, s3, s40
    """)
    if which == 2:
        a(f"s_load_dwordx4 s[44:47], s[0:1], {KA_WG}")
    else:
        a(f"s_load_dwordx4 s[44:47], s[0:1], {KA_K}")

    def pf2(a):
        a(f"""
        v_and_b32 v60, 63, v0
        v_lshlrev_b32 v60, 4, v60
        v_lshrrev_b32 v61, 6, v0
        v_mul_u32_u24 v61, {2 * F * 2}, v61
        v_add_u32 v60, v60, v61
        s_lshr_b32 s40, s2, 3
        s_mul_i32 s40, s40, {20 * F * 2}
        s_bfe_u32 s41, s2, 0x20001
        s_mul_i32 s41, s41, 896
        s_add_u32 s40, s40, s41
        s_add_u32 s41, s40, {F * 2}
        """)
        srd(a, 48, 44, size=D * F * 2)
        srd(a, 52, 46, size=D * F * 2)
        for sd in (48, 52):
            for so in (40, 41):
                a(f"buffer_load_dwordx4 v[64:67], v60, s[{sd}:{sd+3}], s{so} offen")
        return 4

    def pf1(a):
        a(f"""
        v_lshlrev_b32 v60, 4, v0
        s_bfe_u32 s40, s2, 0x20001
        s_lshl_b32 s40, s40, 3
        s_bfe_u32 s41, s2, 0x30003
        s_add_u32 s40, s40, s41
        s_lshl_b32 s40, s40, 19
        s_lshr_b32 s41, s2, 6
        s_mul_i32 s41, s41, 10240
        s_add_u32 s40, s40, s41
        """)
        srd(a, 48, 44, size=H * S * DH * 2)
        srd(a, 52, 46, size=H * S * DH * 2)
        for sd in (48, 52):
            a(f"buffer_load_dwordx4 v[64:67], v60, s[{sd}:{sd+3}], s40 offen")
        return 2
    ln_body(a, 3, which, pf2 if which == 2 else pf1)
    a.label(f"{name}_end")
    a("s_endpgm")
    return (name, a.lines, 72, 72, 640, 256, 1024)


def relayout_body(a, name, wg, pf=None):
    a(f"""
    s_load_dwordx2 s[4:5], s[0:1], {KA_WO}
    s_load_dwordx2 s[6:7], s[0:1], {KA_WD}
    s_load_dwordx2 s[16:17], s[0:1], {KA_WS}
    v_lshrrev_b32 v1, 6, v0
    v_and_b32 v0, 63, v0
    v_readfirstlane_b32 s28, v1
    v_lshlrev_b32 v2, 4, v0
    v_lshrrev_b32 v3, 2, v0
    v_mul_u32_u24 v3, {D * 2}, v3
    v_and_b32 v4, 3, v0
    v_mul_u32_u24 v4, 40, v4
    v_add_u32 v3, v3, v4
    v_mul_u32_u24 v4, 320, v1
    v_add_u32 v3, v3, v4
    s_cmp_lt_u32 s{wg}, 128
    s_cselect_b32 s20, 0, 128
    s_sub_u32 s20, s{wg}, s20
    s_waitcnt lgkmcnt(0)
    s_cmp_lt_u32 s{wg}, 128
    s_cselect_b32 s4, s4, s6
    s_cselect_b32 s5, s5, s7
    s_cselect_b32 s24, 128, 54
    s_mov_b32 s25, {WS_WDF}
    s_cselect_b32 s25, {WS_WOF}, s25
    s_mul_i32 s21, s20, {32 * D * 2}
    """)
    srd(a, 8, 4, off_lines_reg=21, size=32 * D * 2)
    a(f"s_mul_i32 s22, s28, 10240")
    for i in range(10):
        a(f"s_add_u32 s23, s22, {1024 * i}")
        a(f"s_mov_b32 m0, s23")
        a(f"buffer_load_dwordx4 v2, s[8:11], s23 offen lds")
    npf = pf(a) if pf else 0
    a(f"""
    s_mul_i32 s26, s24, {8 * 5120}
    """)
    srd(a, 12, 16, off_lines_reg=25, size_reg=26)
    a(f"""
    s_mul_i32 s27, s24, 5120
    s_lshl_b32 s22, s28, 1
    s_mul_i32 s22, s22, s27
    s_mul_i32 s21, s20, 5120
    s_add_u32 s22, s22, s21
    s_waitcnt vmcnt({npf})
    s_barrier
    """)
    Fq = Reg(8, 40)
    for nbl in range(2):
        for j in range(5):
            f = Fq.sub((nbl * 5 + j) * 4, 4)
            for e4 in range(2):
                a(f"ds_read_b64_tr_b16 {f.sub(2 * e4, 2)}, v3 offset:{e4 * 16 * D * 2 + (nbl * 80 + 4 * j) * 2}")
        a("s_waitcnt lgkmcnt(0)")
        for j in range(5):
            f = Fq.sub((nbl * 5 + j) * 4, 4)
            a(f"s_add_u32 s23, s22, {1024 * j}")
            a(f"buffer_store_dwordx4 {f}, v2, s[12:15], s23 offen")
        a(f"s_add_u32 s22, s22, s27")


def gen_relayout(name):
    a = Asm()
    a(f"s_cmp_ge_u32 s2, 182\ns_cbranch_scc1 {name}_end")
    relayout_body(a, name, 2)
    a.label(f"{name}_end")
    a("s_endpgm")
    return (name, a.lines, 48, 48, 256, 182, 40960)
```

```python
from layout import *
TL_OFF = 0x9000000
SB = [44, 46, 48, 50, 52, 54]

def instrument(k, idx):
    name, lines, vgpr, accum, block, grid, lds = k
    out = []
    done_head = False
    nst = 0
    for i, l in enumerate(lines):
        if l.strip().startswith("; STAMP"):
            out.append(f"  s_memrealtime s[{SB[nst]}:{SB[nst] + 1}]")
            nst += 1
            assert nst <= 6
            continue
        if l.strip() == f"{name}_end:":
            out += [f"  {x}" for x in f"""s_mov_b64 exec, -1
s_waitcnt vmcnt(0)
s_memrealtime s[92:93]
s_load_dwordx2 s[84:85], s[0:1], {KA_WS}
s_waitcnt lgkmcnt(0)
s_add_u32 s84, s84, {TL_OFF + idx * 0x40000}
s_addc_u32 s85, s85, 0
s_mov_b32 s86, 0x10000
s_mov_b32 s87, 0x20000
v_mov_b32 v2, s90
v_mov_b32 v3, s92
s_lshl_b32 s88, s95, 7
s_lshl_b32 s94, s94, 3
s_add_u32 s88, s88, s94
v_mov_b32 v1, s88
buffer_store_dwordx2 v[2:3], v1, s[84:87], 0 offen""".split("\n")]
            out += ["  s_add_u32 s84, s84, 0x1000000", "  s_addc_u32 s85, s85, 0", "  v_lshlrev_b32 v1, 2, v1", "  s_mov_b32 s86, 0x40000"]
            for q in range(nst):
                out += [f"  v_mov_b32 v2, s{SB[q]}", f"  buffer_store_dword v2, v1, s[84:87], 0 offen offset:{4 * q}"]
        out.append(l)
        if not done_head and l.strip().startswith("s_cbranch_scc1") and l.strip().endswith("_end"):
            out += ["  s_memrealtime s[90:91]", "  v_lshrrev_b32 v1, 6, v0", "  s_mov_b32 s95, s2", "  v_readfirstlane_b32 s94, v1"]
            done_head = True
    return (name, out, max(vgpr, 8), accum, block, grid, lds)
```

```python
import sys
from build import build
from attn16 import gen_attn16
from small import *
from gemm import *

def attn(**kw):
    lines, vgpr, accum, block = gen_attn16("attn_kernel", **kw)
    return ("attn_kernel", lines, vgpr, accum, block, 256, 163840)

def pipeline(timing=False):
    return [gen_mod("mod_kernel"), gen_ln("ln1_kernel", 1), attn(), gen_oproj("oproj_kernel"),
            gen_ln("ln2_kernel", 2), gen_gateup("gateup_kernel"),
            gen_gemmn("down_kernel", 54, WS_ACT, WS_WDF, KA_WS, WS_X1, KA_OUT, 0, 5)]

if __name__ == "__main__":
    out = sys.argv[1] if len(sys.argv) > 1 else "adaLN_cond__gqa_block_cached__glu_gated_reglu__prompt.s"
    p = pipeline()
    build(p, out)
    from tl import instrument
    build([instrument(k, i) for i, k in enumerate(p)], "full_tl.s")
```

```python
import re

TRANS = ("v_exp_f32", "v_log_f32", "v_rcp_f32", "v_rsq_f32", "v_sqrt_f32", "v_sin_f32", "v_cos_f32",
         "v_rcp_iflag_f32")


def vr(base, n=1, acc=False):
    p = "a" if acc else "v"
    return f"{p}{base}" if n == 1 else f"{p}[{base}:{base + n - 1}]"


def sr(base, n=1):
    return f"s{base}" if n == 1 else f"s[{base}:{base + n - 1}]"


class Reg:
    def __init__(self, base, n, acc=False):
        self.base, self.n, self.acc = base, n, acc

    def __getitem__(self, i):
        if isinstance(i, slice):
            start = i.start or 0
            stop = self.n if i.stop is None else i.stop
            assert 0 <= start < stop <= self.n, (start, stop, self.n)
            return Reg(self.base + start, stop - start, self.acc)
        assert 0 <= i < self.n, (i, self.n)
        return Reg(self.base + i, 1, self.acc)

    def sub(self, start, n):
        return self[start:start + n]

    def __str__(self):
        return vr(self.base, self.n, self.acc)

    __repr__ = __str__


class Alloc:
    def __init__(self, start=0, limit=256, acc=False):
        self.p, self.limit, self.acc = start, limit, acc

    def get(self, n, align=1):
        self.p = (self.p + align - 1) // align * align
        r = Reg(self.p, n, self.acc)
        self.p += n
        assert self.p <= self.limit, f"out of registers ({self.p} > {self.limit})"
        return r


_REG_RE = re.compile(r"^(v|a|s)(?:(\d+)|\[(\d+):(\d+)\])$")


def _regs(tok):
    tok = tok.strip()
    neg = tok.startswith("-")
    if neg:
        tok = tok[1:]
    m = re.match(r"^abs\((.*)\)$", tok) or re.match(r"^\|(.*)\|$", tok)
    if m:
        tok = m.group(1)
    if tok == "vcc":
        return {("s", "vcc")}
    if tok in ("vcc_lo", "vcc_hi"):
        return {("s", "vcc")}
    if tok == "exec":
        return {("s", "exec")}
    if tok == "m0":
        return {("s", "m0")}
    m = _REG_RE.match(tok)
    if not m:
        return set()
    k = m.group(1)
    if m.group(2) is not None:
        return {(k, int(m.group(2)))}
    return {(k, i) for i in range(int(m.group(3)), int(m.group(4)) + 1)}


class Ins:
    __slots__ = ("text", "op", "kind", "dst", "src", "srcc", "srcab", "passes", "states", "label", "target",
                 "cond", "store_data", "dpp", "lds_dma", "sgpr_src", "end")

    def __init__(self, text):
        self.text = text
        self.label = None
        self.target = None
        self.cond = False
        self.end = False
        self.dst, self.src, self.srcc, self.srcab = set(), set(), set(), set()
        self.store_data = set()
        self.passes = 0
        self.states = 1
        self.dpp = False
        self.lds_dma = False
        self.kind = "other"
        t = text.split(";")[0].strip()
        self.op = ""
        if not t:
            self.kind = "none"
            self.states = 0
            return
        if t.endswith(":"):
            self.label = t[:-1]
            self.kind = "none"
            self.states = 0
            return
        if t.startswith("."):
            self.kind = "none"
            self.states = 0
            return
        parts = t.split(None, 1)
        op = parts[0]
        self.op = op
        rest = parts[1] if len(parts) > 1 else ""
        ops, depth, cur = [], 0, ""
        for ch in rest:
            if ch in "[(":
                depth += 1
            if ch in "])":
                depth -= 1
            if ch == "," and depth == 0:
                ops.append(cur.strip())
                cur = ""
            else:
                cur += ch
        if cur.strip():
            ops.append(cur.strip())
        mods = ""
        if ops:
            lp = ops[-1].split(None, 1)
            ops[-1] = lp[0]
            mods = lp[1] if len(lp) > 1 else ""
        R = [_regs(o) for o in ops]
        if op == "s_nop":
            self.kind = "salu"
            self.states = int(ops[0], 0) + 1
        elif op == "s_endpgm":
            self.kind = "salu"
            self.end = True
        elif op == "s_branch":
            self.kind = "salu"
            self.target = ops[0]
        elif op.startswith("s_cbranch"):
            self.kind = "salu"
            self.target = ops[0]
            self.cond = True
        elif op.startswith("s_load") or op.startswith("s_buffer_load") or op in ("s_memtime", "s_memrealtime"):
            self.kind = "smem"
            self.dst = R[0]
            for r in R[1:]:
                self.src |= r
        elif op.startswith("s_atomic"):
            self.kind = "smem"
            self.dst = R[0]
            for r in R:
                self.src |= r
        elif op.startswith("s_"):
            self.kind = "salu"
            if op.startswith("s_cmp") or op in ("s_waitcnt", "s_barrier", "s_setprio", "s_sleep"):
                for r in R:
                    self.src |= r
            elif R:
                self.dst = set(R[0])
                for r in R[1:]:
                    self.src |= r
                if "saveexec" in op:
                    self.dst |= {("s", "exec")}
        elif op.startswith("v_mfma"):
            self.kind = "mfma"
            self.dst = R[0]
            self.srcab = R[1] | R[2]
            self.srcc = R[3]
            self.src = self.srcab | self.srcc
            self.passes = 8 if "32x32x16" in op else 4
            assert "32x32x16" in op or "16x16x32" in op, op
        elif op.startswith("v_"):
            self.kind = "valu"
            self.dpp = op.endswith("_dpp") or "row_" in mods or "quad_perm" in mods
            if op.startswith("v_cmp"):
                self.dst = set(R[0])
                for r in R[1:]:
                    self.src |= r
                if op.startswith("v_cmpx"):
                    self.dst |= {("s", "exec")}
            elif op.startswith("v_permlane") and "swap" in op:
                self.dst = R[0] | R[1]
                self.src = R[0] | R[1]
            elif op.startswith(("v_add_co", "v_sub_co", "v_addc_co", "v_subb_co", "v_subrev_co")):
                self.dst = R[0] | R[1]
                for r in R[2:]:
                    self.src |= r
            else:
                self.dst = set(R[0])
                for r in R[1:]:
                    self.src |= r
                if op.startswith(("v_fmac", "v_dot2c", "v_pk_fmac")) or self.dpp or "sdwa" in op or \
                        op.startswith("v_writelane"):
                    self.src |= R[0]
                if op.startswith("v_cndmask") and len(ops) == 3:
                    self.src |= {("s", "vcc")}
        elif op.startswith("ds_"):
            self.kind = "ds"
            if op.startswith(("ds_read", "ds_bpermute", "ds_permute", "ds_swizzle")):
                self.dst = R[0]
                for r in R[1:]:
                    self.src |= r
            else:
                for r in R:
                    self.src |= r
        elif op.startswith(("buffer_", "global_")):
            self.kind = "vmem"
            is_lds = re.search(r"\blds\b", mods) is not None or "_lds_" in op
            if is_lds:
                self.lds_dma = True
                for r in R:
                    self.src |= r
                self.src |= {("s", "m0")}
            elif "_load" in op:
                self.dst = R[0]
                for r in R[1:]:
                    self.src |= r
            elif "_store" in op or "_atomic" in op:
                for r in R:
                    self.src |= r
                data = R[0] if op.startswith("buffer_") else R[1]
                if "dwordx4" in op or "dwordx3" in op:
                    self.store_data = data
                if "_atomic" in op and re.search(r"\bsc0\b", mods):
                    self.dst = R[0]
            else:
                pass
        else:
            raise ValueError("unknown instruction: " + text)
        self.sgpr_src = {r for r in self.src if r[0] == "s"}


def _vec(rs):
    return {r for r in rs if r[0] in "va"}


def _need(p, c):
    n = 0
    pk, ck = p.kind, c.kind
    if pk == "valu":
        pv = _vec(p.dst)
        ps = {r for r in p.dst if r[0] == "s"}
        if ck == "mfma" and pv & c.src:
            n = max(n, 2)
        if ck == "valu":
            if p.op.startswith(TRANS) and not c.op.startswith(TRANS) and pv & c.src:
                n = max(n, 1)
            if p.op.startswith(TRANS) and c.op.startswith(TRANS) and pv & c.src:
                n = max(n, 1)
            if c.op.startswith(("v_readfirstlane", "v_readlane")) and pv & c.src:
                n = max(n, 1)
            if c.op.startswith("v_permlane") and pv & c.src:
                n = max(n, 2)
            if c.dpp and pv & c.src:
                n = max(n, 2)
            if ("sdwa" in p.op or ("op_sel" in p.text and not p.op.startswith("v_fma_mix_f32"))) and pv & (c.src | c.dst):
                n = max(n, 1)
            if ps & c.sgpr_src:
                n = max(n, 4 if c.op.startswith(("v_readlane", "v_writelane")) else 2)
            if ("s", "exec") in ps:
                n = max(n, 5 if c.dpp else 4 if c.op.startswith(("v_read", "v_write", "v_permlane")) else 0)
        if ck == "mfma" and ("s", "exec") in ps:
            n = max(n, 4)
        if ck == "vmem" and ps & c.sgpr_src:
            n = max(n, 5)
    if pk == "mfma":
        big = 12 if p.passes == 8 else 8
        if ck == "mfma":
            if p.dst & c.srcab:
                n = max(n, big)
            if p.dst & c.srcc:
                if not (p.dst == c.srcc and p.passes == c.passes):
                    n = max(n, big - 2)
            elif p.dst & c.dst:
                n = max(n, big - 2)
        elif ck in ("valu", "vmem", "ds"):
            if p.dst & (c.src | c.dst):
                n = max(n, big)
            if ck == "valu" and (p.srcc & c.dst):
                n = max(n, 7 if p.passes == 8 else 3)
    if pk == "salu" and ("s", "m0") in p.dst and c.lds_dma:
        n = max(n, 1)
    if pk == "vmem" and p.store_data:
        if p.store_data & c.dst:
            n = max(n, 2 if ck == "valu" else 1)
    return n


MAXW = 12


def hazard_fix(lines, verbose=False):
    total_added = 0
    while True:
        ins = [Ins(l) for l in lines]
        labels = {x.label: i for i, x in enumerate(ins) if x.label}
        n = len(ins)

        def succ(i):
            x = ins[i]
            if x.end:
                return []
            if x.target is not None:
                t = labels[x.target]
                return [t, i + 1] if x.cond else [t]
            return [i + 1] if i + 1 < n else []

        pad = {}
        for i, p in enumerate(ins):
            if p.kind not in ("valu", "mfma", "salu", "vmem"):
                continue
            if p.kind == "salu" and ("s", "m0") not in p.dst:
                continue
            if p.kind == "vmem" and not p.store_data:
                continue
            win = 12 if p.kind == "mfma" else 5
            stack = [(j, 0) for j in succ(i)]
            seen = {}
            while stack:
                j, d = stack.pop()
                if d >= win or seen.get(j, 99) <= d:
                    continue
                seen[j] = d
                c = ins[j]
                if c.kind != "none":
                    need = _need(p, c)
                    if need > d:
                        pad[j] = max(pad.get(j, 0), need - d)
                        if verbose:
                            print(f"pad {need - d}: [{p.text.strip()}] -> [{c.text.strip()}]")
                for k in succ(j):
                    stack.append((k, d + c.states))
        if not pad:
            return lines, total_added
        out, last = [], -100
        for j, l in enumerate(lines):
            if j in pad and j - last > 14:
                k = pad[j]
                out.append(f"  s_nop {k - 1}")
                total_added += 1
                last = j
            out.append(l)
        lines = out


def smem_check(lines):
    ins = [Ins(l) for l in lines]
    labels = {x.label: i for i, x in enumerate(ins) if x.label}
    n = len(ins)

    def succ(i):
        x = ins[i]
        if x.end:
            return []
        if x.target is not None:
            t = labels[x.target]
            return [t, i + 1] if x.cond else [t]
        return [i + 1] if i + 1 < n else []
    for i, p in enumerate(ins):
        if p.kind != "smem" or p.op.startswith("s_mem"):
            continue
        stack, seen = list(succ(i)), set()
        while stack:
            j = stack.pop()
            if j in seen:
                continue
            seen.add(j)
            c = ins[j]
            if c.op == "s_waitcnt" and "lgkmcnt(0)" in c.text:
                continue
            if p.dst & (c.src | c.dst):
                raise AssertionError(f"scalar load result touched before wait: [{p.text.strip()}] -> [{c.text.strip()}]")
            stack += succ(j)


class Asm:
    def __init__(self):
        self.lines = []

    def __call__(self, s):
        for l in s.split("\n"):
            l = l.strip()
            if not l:
                continue
            self.lines.append(l if l.endswith(":") or l.startswith((".", ";")) else "  " + l)

    def label(self, name):
        self.lines.append(name + ":")

    def extend(self, lines):
        self.lines.extend(lines)


class VmTracker:
    def __init__(self):
        self.ops = []

    def issue(self, tag):
        self.ops.append(tag)

    def count_after(self, pred):
        for i in range(len(self.ops) - 1, -1, -1):
            if pred(self.ops[i]):
                return len(self.ops) - 1 - i
        return None


def kernel_text(name, body_lines, vgpr, sgpr, accum_offset, verbose=False):
    body, added = hazard_fix(body_lines, verbose)
    smem_check(body)
    out = [".text", f".globl {name}", ".p2align 8", f".type {name},@function", f"{name}:"]
    out += body
    desc = [
        '.section .rodata,"a"',
        ".p2align 6",
        f".amdhsa_kernel {name}",
        f"  .amdhsa_next_free_vgpr {vgpr}",
        f"  .amdhsa_next_free_sgpr {sgpr}",
        f"  .amdhsa_accum_offset {accum_offset}",
        "  .amdhsa_group_segment_fixed_size 0",
        "  .amdhsa_kernarg_size 112",
        "  .amdhsa_user_sgpr_count 2",
        "  .amdhsa_user_sgpr_kernarg_segment_ptr 1",
        "  .amdhsa_system_sgpr_workgroup_id_x 1",
        ".end_amdhsa_kernel",
    ]
    return "\n".join(out) + "\n", "\n".join(desc) + "\n", added
```

```python
from asmlib import Asm, Alloc, Reg, sr
from stream import *
from layout import *

SLOT = 16384


def timing_head(a, s_tm):
    a(f"s_memtime s[{s_tm}:{s_tm+1}]")
    a(f"s_memrealtime s[{s_tm+2}:{s_tm+3}]")


def timing_tail(a, s_tm, s_wave, v2, v1):
    a(f"""
    s_memtime s[{s_tm+4}:{s_tm+5}]
    s_memrealtime s[{s_tm+6}:{s_tm+7}]
    s_load_dwordx2 s[4:5], s[0:1], {KA_WS}
    s_waitcnt lgkmcnt(0)
    s_sub_u32 s{s_tm}, s{s_tm+4}, s{s_tm}
    s_sub_u32 s{s_tm+2}, s{s_tm+6}, s{s_tm+2}
    s_add_u32 s4, s4, 0x8000
    s_addc_u32 s5, s5, 0
    s_mov_b32 s6, 0x8000
    s_mov_b32 s7, 0x20000
    v_mov_b32 {v2[0]}, s{s_tm}
    v_mov_b32 {v2[1]}, s{s_tm+2}
    s_lshl_b32 s{s_tm+4}, s2, 6
    s_lshl_b32 s{s_tm+5}, s{s_wave}, 3
    s_add_u32 s{s_tm+4}, s{s_tm+4}, s{s_tm+5}
    v_mov_b32 {v1}, s{s_tm+4}
    buffer_store_dwordx2 {v2}, {v1}, s[4:7], 0 offen
    """)


def tr_addr_setup(a, dst4, t):
    a(f"""
    v_lshrrev_b32 {t[0]}, 2, v0
    v_lshlrev_b32 {t[1]}, 7, {t[0]}
    v_and_b32 {t[2]}, 3, v0
    v_lshl_add_u32 {t[1]}, {t[2]}, 3, {t[1]}
    v_bfe_u32 {t[0]}, v0, 3, 2
    v_lshl_add_u32 {dst4[0]}, {t[0]}, 5, {t[1]}
    v_xor_b32 {dst4[1]}, 32, {dst4[0]}
    v_xor_b32 {dst4[2]}, 64, {dst4[0]}
    v_xor_b32 {dst4[3]}, 0x60, {dst4[0]}
    """)


def tr_dma_col(a, dst, t):
    a(f"""
    v_bfe_u32 {t[0]}, v0, 1, 2
    v_lshrrev_b32 {t[1]}, 4, v0
    v_xor_b32 {t[0]}, {t[0]}, {t[1]}
    v_lshlrev_b32 {t[0]}, 5, {t[0]}
    v_and_b32 {t[1]}, 1, v0
    v_lshl_add_u32 {dst}, {t[1]}, 4, {t[0]}
    """)


def gen_attn16(name, NQB=4, la_frags=7, wait_group=4, chain=True, thr_log2=40, timing=False, prio=None, abl=(), cap2=16, wpf=False):
    NW = 16 // NQB
    LA = la_frags * NQB
    acc = NQB == 4
    a = Asm()
    va = Alloc(1, 256)
    aa = Alloc(0, 256, acc=True)
    tmp = va.get(7)
    vKa = va.get(2)
    vVa = va.get(4)
    vWlo = va.get(4)
    vWhi = va.get(4)
    vKd, vVd, vWd, vHo = va.get(1), va.get(1), va.get(1), va.get(1)
    EQ = va.get(16, 4)
    E = [EQ[4 * (i // 3) + i % 3] for i in range(12)]
    NE = 12
    ts = [EQ[4 * q + 3] for q in range(NQB)]
    lq = va.get(6, 4)
    lsum = [lq[0], lq[1], lq[2], lq[4]][:NQB]
    ACCQ = va.get(32 * NQB, 4)
    Q = va.get(16 * NQB, 4)
    O = (aa if acc else va).get(32 * NQB, 4)
    NFR = 16
    FR = (aa if acc else va).get(4 * NFR, 4)
    Sq = lambda par, qb: ACCQ.sub((par * NQB + qb) * 8, 8)
    Sb = lambda par, qb, kb: Sq(par, qb).sub(4 * kb, 4)
    negm = lambda qb: ACCQ.sub(16 * NQB + qb * 4, 4)
    Pb = lambda par, qb: ACCQ.sub(20 * NQB + (par * NQB + qb) * 4, 4)
    qacc = lambda qb, db: ACCQ.sub((qb * 8 + db) * 4, 4)
    Qf = lambda qb, s: Q.sub((qb * 4 + s) * 4, 4)
    Ob = lambda qb, db: O.sub((qb * 8 + db) * 4, 4)
    Hf = lambda stage, ks, qb: O.sub((((stage % 4) * 2 + ks) * NQB + qb) * 4, 4)
    sK, sV, sW, sH, sO = 8, 12, 16, 20, 24
    s_wave, s_wb, s_head, s_qb, s_koff, s_voff, s_koff2, s_voff2, s_cnt, s_thr, s_t0, s_t1, s_tb = range(28, 41)
    s_tm = 44
    st = Stream(a, FR, NFR, LA, wait_group, cap=8 if NQB == 4 else cap2)

    a(f"""
    s_cmp_ge_u32 s2, 256
    s_cbranch_scc1 {name}_end
    s_load_dwordx4 s[4:7], s[0:1], {KA_K}
    s_load_dwordx2 s[16:17], s[0:1], {KA_WQ}
    s_load_dwordx2 s[20:21], s[0:1], {KA_WS}
    s_load_dwordx2 s[56:57], s[0:1], {KA_WO}
    s_load_dwordx4 s[60:63], s[0:1], {KA_WG}
    s_load_dwordx2 s[64:65], s[0:1], {KA_WD}
    """)
    if timing:
        timing_head(a, s_tm)
    t0, t1, t2, t3, t4, t5, t6 = [tmp[i] for i in range(7)]
    a(f"""
    v_lshrrev_b32 {t0}, 6, v0
    v_and_b32 v0, 63, v0
    v_readfirstlane_b32 s{s_wave}, {t0}
    s_bfe_u32 s{s_head}, s2, 0x20001
    s_lshl_b32 s{s_head}, s{s_head}, 3
    s_bfe_u32 s{s_t0}, s2, 0x30003
    s_add_u32 s{s_head}, s{s_head}, s{s_t0}
    s_and_b32 s{s_qb}, s2, 1
    s_lshl_b32 s{s_qb}, s{s_qb}, 2
    s_lshr_b32 s{s_t0}, s2, 6
    s_add_u32 s{s_qb}, s{s_qb}, s{s_t0}
    s_lshl_b32 s{s_wb}, s{s_wave}, 10
    """)
    tr_dma_col(a, t3, [t1, t2])
    a(f"""
    v_lshrrev_b32 {t0}, 3, v0
    s_lshl_b32 s{s_t0}, s{s_wave}, 3
    v_add_u32 {t0}, s{s_t0}, {t0}
    v_lshl_add_u32 {vVd}, {t0}, 8, {t3}
    v_lshl_add_u32 {vWd}, {t0}, 13, {t3}
    v_lshlrev_b32 {vHo}, 4, v0
    """)
    a(f"""
    s_lshl_b32 s{s_tb}, s{s_qb}, 4
    s_mul_i32 s{s_t1}, s{s_wave}, {NQB}
    s_add_u32 s{s_tb}, s{s_tb}, s{s_t1}
    s_waitcnt lgkmcnt(0)
    s_lshl_b32 s{s_t0}, s{s_head}, 8
    s_add_u32 s{sW}, s{sW}, s{s_t0}
    s_addc_u32 s{sW+1}, s{sW+1}, 0
    s_sub_u32 s{sW+2}, {D * H * DH * 2}, s{s_t0}
    s_mov_b32 s{sW+3}, 0x20000
    s_add_u32 s{sO}, s{sH}, {WS_O}
    s_addc_u32 s{sO+1}, s{sH+1}, 0
    s_lshr_b32 s{s_t0}, s{s_tb}, 2
    s_mul_i32 s{s_t0}, s{s_t0}, {20 * 4096}
    s_and_b32 s{s_t1}, s{s_tb}, 3
    s_lshl_b32 s{s_t1}, s{s_t1}, 10
    s_add_u32 s{s_t0}, s{s_t0}, s{s_t1}
    s_add_u32 s{s_t0}, s{s_t0}, {WS_H}
    s_add_u32 s{sH}, s{sH}, s{s_t0}
    s_addc_u32 s{sH+1}, s{sH+1}, 0
    s_sub_u32 s{sH+2}, {20 * 4096}, s{s_t1}
    s_mov_b32 s{sH+3}, 0x20000
    """)

    def dma_tile(kind, slot, tag, soff_imm=None, rowstride=256):
        srd, vo = {"K": (sK, vKd), "V": (sV, vVd), "W": (sW, vWd)}[kind]
        ops = []
        for rg in range(8 // NW):
            for half in range(2):
                n = rg * NW + half * 8
                pre = []
                if soff_imm is not None:
                    pre.append(f"s_mov_b32 s{s_t0}, {soff_imm + rg * 32 * rowstride}")
                    so = s_t0
                else:
                    so = {("K", 0): s_koff, ("K", 1): s_koff2, ("V", 0): s_voff, ("V", 1): s_voff2}[(kind, rg)]
                pre.insert(0, f"s_add_u32 m0, s{s_wb}, {slot * SLOT + n * 1024 - half * 128}")
                off = " offset:128" if half else ""
                ops.append(VmOp(f"buffer_load_dwordx4 {vo}, {sr(srd, 4)}, s{so} offen{off} lds", tag, pre))
        return ops

    def h_loads(stage):
        ops = []
        for ks in range(2):
            for qb in range(NQB):
                pre = [f"s_mov_b32 s{s_t1}, {(stage * 2 + ks) * 4096}"] if qb == 0 else []
                ops.append(VmOp(f"buffer_load_dwordx4 {Hf(stage, ks, qb)}, {vHo}, {sr(sH, 4)}, s{s_t1} offen offset:{qb * 1024}",
                                ("h", stage), pre))
        return ops

    WSLOT = [0, 1, 4, 2, 5, 3, 6, 7, 8, 9]
    w_tile = lambda s: dma_tile("W", WSLOT[s], ("W", s), s * 64 * 8192, 8192)
    for s in range(2):
        for op in w_tile(s) + h_loads(s):
            st.emit_vm(op)

    if wpf:
        a(f"""
        v_lshrrev_b32 {t1}, 4, v0
        v_lshlrev_b32 {t1}, 13, {t1}
        v_and_b32 {t2}, 15, v0
        v_lshl_add_u32 {t1}, {t2}, 7, {t1}
        s_lshr_b32 s{s_t0}, s2, 3
        s_lshl_b32 s{s_t0}, s{s_t0}, 2
        s_add_u32 s{s_t0}, s{s_t0}, s{s_wave}
        s_add_u32 s{s_t0}, s{s_t0}, 32
        s_lshl_b32 s{s_t0}, s{s_t0}, 15
        s_and_b32 s{s_t1}, s{s_head}, 7
        s_lshl_b32 s{s_t1}, s{s_t1}, 8
        s_sub_u32 s{s_t0}, s{s_t0}, s{s_t1}
        """)
        st.emit_vm(VmOp(f"buffer_load_dword {Q[0]}, {t1}, {sr(sW, 4)}, s{s_t0} offen", "wpf"))
    a(f"""
    s_lshl_b32 s{s_t0}, s{s_head}, 19
    s_add_u32 s{sK}, s4, s{s_t0}
    s_addc_u32 s{sK+1}, s5, 0
    s_mov_b32 s{sK+2}, 0x80000
    s_mov_b32 s{sK+3}, 0x20000
    s_add_u32 s{sV}, s6, s{s_t0}
    s_addc_u32 s{sV+1}, s7, 0
    s_mov_b32 s{sV+2}, 0x80000
    s_mov_b32 s{sV+3}, 0x20000
    s_mov_b32 s{sO+2}, {S * H * DH * 2}
    s_mov_b32 s{sO+3}, 0x20000
    """)
    a(f"""
    v_lshrrev_b32 {t1}, 4, v0
    s_and_b32 s{s_t0}, s{s_wave}, 1
    s_mul_i32 s{s_t0}, s{s_t0}, 6
    v_and_b32 {t2}, 1, {t1}
    v_lshrrev_b32 {t1}, 1, {t1}
    v_lshl_add_u32 {t2}, {t1}, 2, {t2}
    v_xor_b32 {t2}, s{s_t0}, {t2}
    v_and_b32 {t1}, 7, v0
    v_xor_b32 {t2}, {t2}, {t1}
    v_lshlrev_b32 {t2}, 4, {t2}
    v_lshl_add_u32 {vKd}, {t0}, 8, {t2}
    """)
    a(f"""
    v_bfe_u32 {t0}, v0, 1, 1
    v_bfe_u32 {t1}, v0, 2, 1
    v_bfe_u32 {t2}, v0, 3, 1
    v_xor_b32 {t1}, {t1}, {t2}
    v_lshl_add_u32 {t0}, {t2}, 1, {t0}
    v_lshl_add_u32 {t0}, {t1}, 2, {t0}
    v_bfe_u32 {t1}, v0, 4, 1
    v_bfe_u32 {t2}, v0, 5, 1
    v_lshl_add_u32 {t1}, {t1}, 1, {t2}
    v_xor_b32 {t0}, {t0}, {t1}
    v_and_b32 {t1}, 15, v0
    v_lshlrev_b32 {t1}, 7, {t1}
    v_lshl_add_u32 {vKa[0]}, {t0}, 4, {t1}
    v_xor_b32 {vKa[1]}, 64, {vKa[0]}
    """)
    tr_addr_setup(a, vWlo, [t0, t1, t2])
    for i in range(4):
        a(f"v_add_u32 {vVa[i]}, 0x10000, {vWlo[i]}")
        a(f"v_add_u32 {vWhi[i]}, 0x20000, {vWlo[i]}")
    a(f"v_mov_b32 {t6}, {f32hex(2.0 ** thr_log2)}")
    if timing == "series":
        a(f"""
        s_load_dwordx2 s[52:53], s[0:1], {KA_WS}
        s_waitcnt lgkmcnt(0)
        s_add_u32 s52, s52, 0x8000000
        s_addc_u32 s53, s53, 0
        s_mov_b32 s54, 0x8000
        s_mov_b32 s55, 0x20000
        """)
    if prio == "young":
        a(f"""
        s_cmp_ge_u32 s{s_wave}, {NW // 2}
        s_cbranch_scc0 {name}_noprio
        s_setprio 1
        {name}_noprio:
        """)

    def tr_frag(slot, u, db, guard=None):
        base = slot * SLOT
        ar, rel = (vWlo, base) if base < 0x10000 else (vVa, base - 0x10000) if base < 0x20000 else (vWhi, base - 0x20000)
        reads = []
        for e4 in range(2):
            off = rel + (db // 4) * 8192 + (32 * u + 16 * e4) * 128
            reads.append(("ds_read_b64_tr_b16", 2 * e4, 2, ar[db % 4], off))
        return Frag(reads, guard)

    def k_frag(slot, u, kb, s, guard=None):
        off = slot * SLOT + (s // 2) * 8192 + (32 * u + 16 * kb) * 128
        return Frag([("ds_read_b128", 0, 4, vKa[s % 2], off)], guard)

    rare_blocks = {}

    def sm_compute(par):
        n = 8 * NQB
        ex = lambda i: f"v_exp_f32 {E[i % NE]}, {Sq(par, i // 8)[i % 8]}"
        ops = [ex(0), ex(1)]
        for p in range(n // 2):
            qb, first = (2 * p) // 8, (2 * p) % 8 == 0
            e0, e1 = E[(2 * p) % NE], E[(2 * p + 1) % NE]
            if p + 1 < n // 2:
                ops.append(ex(2 * p + 2))
            ops.append(f"v_add_f32 {ts[qb]}, {e0}, {e1}" if first else f"v_add_f32 {ts[qb]}, {ts[qb]}, {e0}")
            if p + 1 < n // 2:
                ops.append(ex(2 * p + 3))
            if not first:
                ops.append(f"v_add_f32 {ts[qb]}, {ts[qb]}, {e1}")
            ops.append(f"v_cvt_pk_bf16_f32 {Pb(par, qb)[p % 4]}, {e0}, {e1}")
        return ops

    def xlane(op, dst, tmp2):
        return [f"v_mov_b32 {tmp2}, {dst}", f"v_permlane16_swap_b32 {dst}, {tmp2}", f"{op} {dst}, {dst}, {tmp2}",
                f"v_mov_b32 {tmp2}, {dst}", f"v_permlane32_swap_b32 {dst}, {tmp2}", f"{op} {dst}, {dst}, {tmp2}"]

    def rowmax(dst, tmp2, src):
        out = [f"v_max3_f32 {dst}, {src[0]}, {src[1]}, {src[2]}",
               f"v_max3_f32 {dst}, {dst}, {src[3]}, {src[4]}",
               f"v_max3_f32 {dst}, {dst}, {src[5]}, {src[6]}",
               f"v_max_f32 {dst}, {dst}, {src[7]}"]
        return out + xlane("v_max_f32", dst, tmp2)

    def sm_ops(par, tag):
        comp = sm_compute(par)
        lab, ret = f"{name}_rare{tag}", f"{name}_ret{tag}"
        cvts = [o for o in comp if o.startswith("v_cvt")][-3:]
        comp = [o for o in comp if o not in cvts]
        if NQB == 4:
            comp.insert(len(comp) - 6, f"v_max3_f32 {t0}, {ts[0]}, {ts[1]}, {ts[2]}")
            comp.append(f"v_max_f32 {t0}, {t0}, {ts[3]}")
        else:
            comp.append(f"v_max_f32 {t0}, {ts[0]}, {ts[1]}")
        comp.append(f"v_cmp_nle_f32 vcc, {t0}, {t6}")
        ops = (cvts, [f"s_cbranch_vccnz {lab}", f"{ret}:"])
        post = [f"v_add_f32 {lsum[qb]}, {lsum[qb]}, {ts[qb]}" for qb in range(NQB)]
        r = [f"{lab}:", "s_nop 15"]
        for qb in range(NQB):
            r += rowmax(t0, t1, Sq(par, qb))
            r += [f"v_max_f32 {t0}, 0, {t0}", f"v_exp_f32 {t1}, -{t0}", "s_nop 0",
                  f"v_mul_f32 {lsum[qb]}, {lsum[qb]}, {t1}"]
            for i in range(32):
                o = O[qb * 32 + i]
                if acc:
                    tt = tmp[2 + i % 4]
                    r += [f"v_accvgpr_read_b32 {tt}, {o}", f"v_mul_f32 {tt}, {tt}, {t1}",
                          f"v_accvgpr_write_b32 {o}, {tt}"]
                else:
                    r.append(f"v_mul_f32 {o}, {o}, {t1}")
            for blk in (negm(qb), Sq(par, qb), Sq(par ^ 1, qb)):
                for i in range(blk.n):
                    r.append(f"v_sub_f32 {blk[i]}, {blk[i]}, {t0}")
        r += sm_compute(par) + ["s_nop 1", f"s_branch {ret}"]
        rare_blocks.setdefault(tag, r)
        return comp, ops, post

    def build(nbodies, last_special):
        items, groups, vms, scal = [], [], [], []
        nst = 16 * NQB
        kvtile = lambda kind, tile: dma_tile(kind, {"K": tile, "V": 4 + tile}[kind], (kind, tile), tile * SLOT)
        zero1 = lambda r: f"v_accvgpr_write_b32 {r}, 0" if acc else f"v_mov_b32 {r}, 0"

        def conv(s):
            out = []
            for qb in range(NQB):
                for hf in range(2):
                    src = qacc(qb, 2 * s + hf)
                    for j in range(2):
                        out.append(f"v_cvt_pk_bf16_f32 {Qf(qb, s)[2 * hf + j]}, {src[2 * j]}, {src[2 * j + 1]}")
            for qb in range(NQB):
                for j in range(2):
                    out.append(f"v_permlane16_swap_b32 {Qf(qb, s)[j]}, {Qf(qb, s)[2 + j]}")
            return out

        for s in range(10):
            first = len(items)
            for db in range(8):
                frs = []
                for ks in range(2):
                    g = st.guard_wait([("W", s), ("h", s)]) if (ks == 0 and db == 0) else None
                    frs.append(tr_frag(WSLOT[s], ks, db, g))
                    frs[-1].nat = len(items) + ks * NQB
                order = [(qb, ks) for qb in range(NQB) for ks in range(2)] if chain else \
                        [(qb, ks) for ks in range(2) for qb in range(NQB)]
                for qb, ks in order:
                    c = "0" if (s == 0 and ks == 0) else str(qacc(qb, db))
                    items.append(Item(f"{MFMA16} {qacc(qb, db)}, {{A}}, {Hf(s, ks, qb)}, {c}", frs[ks]))
            ops = []
            if s == 0:
                ops += w_tile(2) + h_loads(2)
            if s + 3 < 10:
                ops += w_tile(s + 3) + h_loads(s + 3)
            else:
                ops += kvtile(*[("K", 0), ("K", 1), ("V", 0)][s - 7])
            vms.append((first + 1, first + nst - 1, ops))
            if s >= 7:
                base = ((s - 1) % 4) * 8 * NQB
                g1 = first + (nst - 1 if s < 9 else nst // 4 + 4)
                groups.append((first + 2, g1, [zero1(O[base + i]) for i in range(8 * NQB)]))
            if s == 9:
                q4 = nst // 4
                for cs_ in range(3):
                    groups.append((first + (cs_ + 1) * q4 + 5, min(first + (cs_ + 2) * q4 + 4, first + nst - 1), conv(cs_)))
        items[-1].block += conv(3) + [
            f"s_mov_b32 s{s_koff}, {4 * SLOT}", f"s_mov_b32 s{s_voff}, {2 * SLOT}",
            f"s_mov_b32 s{s_koff2}, {4 * SLOT + 8192}", f"s_mov_b32 s{s_voff2}, {2 * SLOT + 8192}",
            f"s_mov_b32 s{s_cnt}, 8"]

        def qk(unit, kslot, guard=None, first=False, phantom=False):
            par = unit % 2
            for kb in range(2):
                frs = []
                for s in range(4):
                    frs.append(k_frag(kslot, unit % 2, kb, s, guard if (s == 0 and kb == 0) else None))
                    frs[-1].nat = len(items) + s * NQB
                order = [(qb, s) for qb in range(NQB) for s in range(4)] if chain else \
                        [(qb, s) for s in range(4) for qb in range(NQB)]
                for qb, s in order:
                    c = ("0" if first else str(negm(qb))) if s == 0 else str(Sb(par, qb, kb))
                    items.append(Item(f"{MFMA16} {Sb(par, qb, kb)}, {{A}}, {Qf(qb, s)}, {c}", frs[s], phantom))

        def pv(unit, vslot):
            par = unit % 2
            for db in range(8):
                fr = tr_frag(vslot, unit % 2, db)
                for qb in range(NQB):
                    items.append(Item(f"{MFMA16} {Ob(qb, db)}, {{A}}, {Pb(par, qb)}, {Ob(qb, db)}", fr))

        def add_sm(g0, par, tag, post):
            comp, (cvts, br), post2 = sm_ops(par, tag)
            g1 = len(items) - 1
            groups.append((g0, g1 - 2, post + comp))
            items[g1 - 1].valu += cvts[:2]
            items[g1].sc += br
            items[g1].valu += cvts[2:]
            return post2

        g0 = len(items)
        qk(0, 0, st.guard_wait([("K", 0)]), first=True)
        base = (9 % 4) * 8 * NQB
        groups.append((g0, len(items) - 1, [zero1(O[base + i]) for i in range(8 * NQB)] +
                       [f"v_mov_b32 {lsum[qb]}, 0" for qb in range(NQB)]))
        vms.append((g0 + 1, len(items) - 1, kvtile("K", 2) + kvtile("V", 1)))
        g0 = len(items)
        qk(1, 0, first=True)
        vms.append((g0 + 1, g0 + 4 * NQB, kvtile("K", 3)))
        rm = [rowmax(tmp[qb], E[qb], Sq(0, qb)) for qb in range(NQB)]
        init = [rm[qb][i] for i in range(len(rm[0])) for qb in range(NQB)]
        for qb in range(NQB):
            init += [f"v_sub_f32 {Sq(0, qb)[i]}, {Sq(0, qb)[i]}, {tmp[qb]}" for i in range(8)]
        for qb in range(NQB):
            init += [f"v_sub_f32 {negm(qb)[i]}, 0, {tmp[qb]}" for i in range(4)]
        groups.append((g0 + 5, len(items) - 1, init))
        blk = sm_compute(0)
        for qb in range(NQB):
            blk += [f"v_sub_f32 {Sq(1, qb)[i]}, {Sq(1, qb)[i]}, {tmp[qb]}" for i in range(8)]
        items[-1].block += blk
        post = [f"v_add_f32 {lsum[qb]}, {lsum[qb]}, {ts[qb]}" for qb in range(NQB)]
        marks = []
        nper = 32 * NQB
        for T in range(nbodies):
            last = last_special and T == nbodies - 1
            marks.append(len(items))
            b0 = len(items)
            if T == 0:
                guard = st.guard_wait([("K", 1), ("V", 0)])
            else:
                guard = lambda: f"s_waitcnt vmcnt({2 * 16 // NW})"
            ks_, vs_ = (T + 1) % 4, 4 + T % 4
            tag = ("t" if last else "b") + str(T % 4)
            g0 = len(items)
            qk(2 * T + 2, ks_, guard, phantom=last)
            pv(2 * T, vs_)
            post = add_sm(g0, 1, tag + "a", post)
            g0 = len(items)
            qk(2 * T + 3, ks_, phantom=last)
            last_k_use = len(items) - 1
            pv(2 * T + 1, vs_)
            if last:
                groups.append((g0, len(items) - 1, post))
                junk = Q.sub(Q.n - 4, 4)
                pf = []
                for i in range(10):
                    pf.append(VmOp(f"buffer_load_dwordx4 {junk}, {vHo}, {sr(sK, 4)}, s{s_t0} offen", "pf",
                                   [f"s_add_u32 s{s_t0}, s{s_koff}, {i * 1024}"]))
                for i in range(5):
                    pf.append(VmOp(f"buffer_load_dwordx4 {junk}, {vHo}, {sr(sW, 4)}, s{s_t0} offen", "pf",
                                   [f"s_add_u32 s{s_t0}, s{s_voff}, {i * 1024}"]))
                for i in range(3):
                    pf.append(VmOp(f"buffer_load_dwordx4 {junk}, {vHo}, {sr(sV, 4)}, s{s_t0} offen", "pf",
                                   [f"s_add_u32 s{s_t0}, s{s_koff2}, {i * 1024}"]))
                p0 = b0 + 8 * NQB
                vms.append((p0 + 1, p0 + 8 * NQB - 4, pf[:10]))
                vms.append((p0 + 16 * NQB + 1, p0 + 24 * NQB - 2, pf[10:]))
            else:
                post = add_sm(g0, 0, tag + "b", post)
                assert last_k_use < b0 + nper - LA - 2
                dm = dma_tile("K", T % 4, ("x", T)) + dma_tile("V", 4 + (T + 2) % 4, ("x", T))
                upd = [f"s_add_u32 s{s_koff}, s{s_koff}, {SLOT}", f"s_add_u32 s{s_voff}, s{s_voff}, {SLOT}"]
                if NW == 4:
                    upd += [f"s_add_u32 s{s_koff2}, s{s_koff2}, {SLOT}", f"s_add_u32 s{s_voff2}, s{s_voff2}, {SLOT}"]
                vms.append((b0 + 2, b0 + nper - LA - 3, dm))
                scal += [(u, b0 + nper - LA + 1, b0 + nper - 2) for u in upd]
        marks.append(len(items))
        for g in (0, 3 * nst, 7 * nst, 10 * nst - 2, marks[0] - 1):
            items[g].block.append("; STAMP")
        st.layout(items, marks[-2] if last_special else None)
        gb = marks[0] - LA
        assert "s_barrier" in items[gb].sc
        items[gb].sc.insert(items[gb].sc.index("s_barrier"), "s_waitcnt lgkmcnt(0)")
        for g0, g1, ops in vms:
            st.place_vm(items, g0, g1, ops)
        for l, lo, hi in scal:
            st.place_scalar(items, l, lo, hi)
        return items, groups, marks

    head_lines = list(a.lines)
    vm0 = list(st.vm.ops)
    items, groups, marks = build(9, False)
    segs = st.emit(items, groups, marks)
    print("estimated cycles: prologue", sum(st.est[:marks[0]]), "body", sum(st.est[marks[1]:marks[2]]))
    L = a.lines
    pre = L[:segs[0]]
    body = [L[segs[i]:segs[i + 1]] for i in range(8)]
    for i in range(4):
        assert body[i] == body[i + 4], f"loop body {i} is not periodic"
    a.lines = list(head_lines)
    st.vm.ops = list(vm0)
    items, groups, marks = build(4, True)
    segs2 = st.emit(items, groups, marks)
    L2 = a.lines
    assert L2[:segs2[3]] == L[:segs[3]]
    tail = L2[segs2[3]:segs2[4]]

    def stamp():
        if timing != "series":
            return
        a(f"""
        s_memtime s[{s_tm+4}:{s_tm+5}]
        s_memrealtime s[{s_tm+6}:{s_tm+7}]
        s_waitcnt lgkmcnt(0)
        s_sub_u32 s{s_tm+4}, s{s_tm+4}, s{s_tm}
        s_sub_u32 s{s_tm+6}, s{s_tm+6}, s{s_tm+2}
        v_mov_b32 {t2}, s{s_tm+4}
        v_mov_b32 {t3}, s{s_tm+6}
        s_lshl_b32 s{s_t0}, s2, 7
        s_lshl_b32 s{s_t1}, s{s_cnt}, 3
        s_add_u32 s{s_t0}, s{s_t0}, s{s_t1}
        v_mov_b32 {t4}, s{s_t0}
        buffer_store_dword {t2}, {t4}, s[52:55], 0 offen
        buffer_store_dword {t3}, {t4}, s[52:55], 0 offen offset:4
        """)

    def drop(pref):
        return [[l for l in b if not l.strip().startswith(pref)] for b in body]
    if "nosm" in abl:
        body = drop(("v_exp", "v_add_f32", "v_cvt_pk", "v_max", "v_cmp", "s_cbranch_vcc"))
    if "nods" in abl:
        body = drop(("ds_read", "s_waitcnt lgkm"))
    if "nodma" in abl:
        body = drop(("buffer_load", "s_add_u32 m0"))
    if "nomfma" in abl:
        body = drop(("v_mfma", "s_cbranch_vcc"))

    a.lines = list(pre)
    a.label(f"{name}_loop")
    stamp()
    a.extend(body[0] + body[1] + body[2])
    a(f"""
    s_sub_u32 s{s_cnt}, s{s_cnt}, 1
    s_cmp_eq_u32 s{s_cnt}, 0
    s_cbranch_scc1 {name}_tail
    """)
    a.extend(body[3])
    a(f"s_branch {name}_loop")
    a.label(f"{name}_tail")
    stamp()
    a(f"""
    s_mov_b32 s{sK}, s56
    s_mov_b32 s{sK+1}, s57
    s_mov_b32 s{sK+2}, {H * DH * D * 2}
    s_lshr_b32 s{s_koff}, s{s_head}, 3
    s_lshl_b32 s{s_koff}, s{s_koff}, 5
    s_lshr_b32 s{s_t0}, s2, 3
    s_add_u32 s{s_koff}, s{s_koff}, s{s_t0}
    s_lshl_b32 s{s_koff}, s{s_koff}, 2
    s_add_u32 s{s_koff}, s{s_koff}, s{s_wave}
    s_mul_i32 s{s_koff}, s{s_koff}, 10240
    s_and_b32 s{s_t0}, s2, 1
    s_cmp_eq_u32 s{s_t0}, 0
    s_cselect_b32 s{sW}, s60, s62
    s_cselect_b32 s{sW+1}, s61, s63
    s_mov_b32 s{sW+2}, {D * F * 2}
    s_lshr_b32 s{s_voff}, s2, 1
    s_lshl_b32 s{s_voff}, s{s_voff}, 2
    s_add_u32 s{s_voff}, s{s_voff}, s{s_wave}
    s_mul_i32 s{s_voff}, s{s_voff}, 5120
    s_mov_b32 s{sV}, s64
    s_mov_b32 s{sV+1}, s65
    s_mov_b32 s{sV+2}, {D * F * 2}
    s_lshl_b32 s{s_koff2}, s2, 2
    s_add_u32 s{s_koff2}, s{s_koff2}, s{s_wave}
    s_mul_i32 s{s_koff2}, s{s_koff2}, 3072
    s_lshr_b32 s{s_t0}, s2, 3
    s_lshl_b32 s{s_t0}, s{s_t0}, 12
    s_add_u32 s{s_t0}, s{s_t0}, s{s_wb}
    v_add_u32 {t3}, s{s_t0}, {vHo}
    v_min_u32 {t3}, down_kernel_end-oproj_kernel-16, {t3}
    """)
    from small import code_prefetch_addr
    code_prefetch_addr(a, "oproj_kernel", 58, tmp.sub(1, 2), t3)
    a(f"global_load_dwordx4 {Q.sub(Q.n - 4, 4)}, {tmp.sub(1, 2)}, off")
    a.extend(tail)
    a.lines.append("; STAMP")
    a(f"""
    s_lshr_b32 s{s_t1}, s{s_tb}, 2
    s_lshl_b32 s{s_t1}, s{s_t1}, 19
    s_and_b32 s{s_t0}, s{s_tb}, 3
    s_lshl_b32 s{s_t0}, s{s_t0}, 10
    s_add_u32 s{s_t1}, s{s_t1}, s{s_t0}
    s_lshl_b32 s{s_t0}, s{s_head}, 14
    s_add_u32 s{s_t1}, s{s_t1}, s{s_t0}
    """)
    for qb in range(NQB):
        for l in xlane("v_add_f32", lsum[qb], tmp[qb]):
            a(l)
    for qb in range(NQB):
        a(f"v_rcp_f32 {lsum[qb]}, {lsum[qb]}")
    k = 0
    for i in range(4):
        a(f"s_add_u32 s{s_t0}, s{s_t1}, {i * 4096}")
        for qb in range(NQB):
            dst = Q.sub(4 * (k % 8), 4)
            k += 1
            for j in range(4):
                src = Ob(qb, 2 * i + j // 2)
                x0, x1 = src[2 * (j % 2)], src[2 * (j % 2) + 1]
                e0, e1 = E[(2 * j) % NE], E[(2 * j + 1) % NE]
                if acc:
                    a(f"v_accvgpr_read_b32 {e0}, {x0}")
                    a(f"v_accvgpr_read_b32 {e1}, {x1}")
                    x0, x1 = e0, e1
                a(f"v_mul_f32 {e0}, {x0}, {lsum[qb]}")
                a(f"v_mul_f32 {e1}, {x1}, {lsum[qb]}")
                a(f"v_cvt_pk_bf16_f32 {dst[j]}, {e0}, {e1}")
            a(f"buffer_store_dwordx4 {dst}, {vHo}, {sr(sO, 4)}, s{s_t0} offen offset:{qb * 1024}")
    if timing:
        timing_tail(a, s_tm, s_wave, EQ.sub(0, 2), t2)
    a.label(f"{name}_end")
    a("s_endpgm")
    for tag, r in rare_blocks.items():
        for l in r:
            a(l)
    if acc:
        return a.lines, 256 + aa.p, 256, 64 * NW
    return a.lines, va.p, (va.p + 3) // 4 * 4, 64 * NW
```

```python
from asmlib import Asm, Alloc, Reg, sr, VmTracker
from stream import *
from layout import *
from small import srd, relayout_body
from attn16 import timing_head, timing_tail, tr_addr_setup, tr_dma_col


def gen_gemmn(name, NKS, x_off, w_off, res_ka, res_off, out_ka, out_off, gate_idx, PD=6, timing=False):
    a = Asm()
    steps = (NKS + 3) // 4
    va = Alloc(1, 256)
    t = va.get(7)
    vX = va.get(4)
    vW = va.get(2)
    vR = va.get(1)
    vG = va.get(1)
    vL = va.get(4)
    RES = va.get(10, 2)
    ring = va.get(36 * PD, 4)
    aa = Alloc(0, 256, acc=True)
    ACC = aa.get(80, 4)
    G = aa.get(20, 4)
    acc = lambda tl, j: ACC.sub((tl * 5 + j) * 4, 4)
    Xf = lambda i, tl: ring.sub((i % PD) * 36 + tl * 4, 4)
    Wf = lambda i, j: ring.sub((i % PD) * 36 + 16 + j * 4, 4)
    sX, sW, sR, sG, sO = 8, 12, 16, 20, 24
    s_wave, s_tb, s_nb, s_t0, s_t1, s_xo, s_wo = range(28, 35)
    a(f"""
    s_cmp_ge_u32 s2, 256
    s_cbranch_scc1 {name}_end
    s_load_dwordx2 s[4:5], s[0:1], {KA_WS}
    s_load_dwordx2 s[6:7], s[0:1], {res_ka}
    s_load_dwordx2 s[36:37], s[0:1], {out_ka}
    """)
    if timing:
        timing_head(a, 44)
    a(f"""
    v_lshrrev_b32 {t[0]}, 6, v0
    v_and_b32 v0, 63, v0
    v_readfirstlane_b32 s{s_wave}, {t[0]}
    s_and_b32 s{s_tb}, s2, 1
    s_lshl_b32 s{s_tb}, s{s_tb}, 4
    s_bfe_u32 s{s_t0}, s2, 0x10001
    s_lshl_b32 s{s_t0}, s{s_t0}, 3
    s_add_u32 s{s_tb}, s{s_tb}, s{s_t0}
    s_bfe_u32 s{s_t0}, s2, 0x30003
    s_add_u32 s{s_tb}, s{s_tb}, s{s_t0}
    s_bfe_u32 s{s_nb}, s2, 0x10002
    s_lshl_b32 s{s_nb}, s{s_nb}, 2
    s_lshr_b32 s{s_t0}, s2, 6
    s_add_u32 s{s_nb}, s{s_nb}, s{s_t0}
    v_lshlrev_b32 {vW[0]}, 4, v0
    v_add_u32 {vW[1]}, 4096, {vW[0]}
    """)
    for tl in range(4):
        a(f"""
        v_add_u32 {t[1]}, {tl}, {t[0]}
        v_and_b32 {t[1]}, 3, {t[1]}
        v_lshl_add_u32 {vX[tl]}, {t[1]}, 10, {vW[0]}
        v_mul_u32_u24 {t[1]}, {15 * 1024}, {t[1]}
        v_add_u32 {vL[tl]}, {t[1]}, {vW[0]}
        """)
    a(f"""
    s_mul_i32 s{s_t0}, s{s_tb}, {NKS * 4096}
    s_mul_i32 s{s_t1}, s{s_nb}, {NKS * 5120}
    s_lshl_b32 s{s_xo}, s{s_wave}, 12
    s_mul_i32 s{s_wo}, s{s_wave}, 5120
    s_waitcnt lgkmcnt(0)
    """)
    srd(a, sX, 4, off_lines_reg=s_t0, off_imm=x_off, size=NKS * 4096)
    srd(a, sW, 4, off_lines_reg=s_t1, off_imm=w_off, size=NKS * 5120)
    vm = VmTracker()

    def loads(i):
        out = []
        for j in range(5):
            out.append(f"buffer_load_dwordx4 {Wf(i, j)}, {vW[j // 4]}, {sr(sW, 4)}, s{s_wo} offen offset:{(j % 4) * 1024}")
        for tl in range(4):
            out.append(f"buffer_load_dwordx4 {Xf(i, tl)}, {vX[tl]}, {sr(sX, 4)}, s{s_xo} offen")
        return out
    adv = [f"s_add_u32 s{s_xo}, s{s_xo}, {4 * 4096}", f"s_add_u32 s{s_wo}, s{s_wo}, {4 * 5120}"]
    for i in range(min(PD - 1, steps)):
        for l in loads(i):
            a(l)
            vm.issue(i)
        for l in adv:
            a(l)
        if i == 0:
            a(f"""
            v_and_b32 {t[1]}, 15, v0
            v_lshl_add_u32 {t[1]}, {t[0]}, 4, {t[1]}
            v_mul_u32_u24 {t[1]}, {D * 2}, {t[1]}
            v_lshrrev_b32 {t[2]}, 4, v0
            v_mul_u32_u24 {t[2]}, 40, {t[2]}
            v_add_u32 {vR}, {t[1]}, {t[2]}
            v_lshlrev_b32 {vG}, 1, {t[2]}
            s_mul_i32 s{s_t0}, s{s_tb}, {64 * D * 2}
            s_mul_i32 s{s_t1}, s{s_nb}, 160
            s_add_u32 s{s_t0}, s{s_t0}, s{s_t1}
            s_sub_u32 s38, {64 * D * 2}, s{s_t1}
            """)
            srd(a, sR, 6, off_lines_reg=s_t0, off_imm=res_off, size_reg=38)
            srd(a, sO, 36, off_lines_reg=s_t0, off_imm=out_off, size_reg=38)
            a(f"s_mul_i32 s{s_t1}, s{s_nb}, 320")
            srd(a, sG, 4, off_lines_reg=s_t1, off_imm=WS_MOD + gate_idx * D * 4, size=320)
    for i in range(steps):
        n = vm.count_after(lambda tg: tg == i)
        if i == 0:
            a.lines.append("; STAMP issued")
        a(f"s_waitcnt vmcnt({n})")
        if i == 0 or i == steps // 2:
            a.lines.append("; STAMP data")
        pend = []
        if i + PD - 1 < steps:
            pend = [(l, i + PD - 1) for l in loads(i + PD - 1)]
        elif i + PD - 1 == steps:
            pend = [(f"buffer_load_dwordx2 {RES.sub(2 * j, 2)}, {vR}, {sr(sR, 4)}, 0 offen offset:{8 * j}", "e") for j in range(5)]
            pend += [(f"buffer_load_dwordx4 {G.sub(4 * j, 4)}, {vG}, {sr(sG, 4)}, 0 offen offset:{16 * j}", "e") for j in range(5)]
        k = 0
        for j in range(5):
            for tl in range(4):
                c = "0" if i == 0 else str(acc(tl, j))
                a(f"{MFMA16} {acc(tl, j)}, {Wf(i, j)}, {Xf(i, tl)}, {c}")
                if k % 2 == 0 and pend:
                    l, tg = pend.pop(0)
                    a(l)
                    vm.issue(tg)
                k += 1
        assert not pend
        if i + PD - 1 < steps:
            for l in adv:
                a(l)
    for tl in range(1, 4):
        for j in range(5):
            a(f"ds_write_b128 {vL[tl]}, {acc(tl, j)} offset:{((tl - 1) * 5 + j) * 1024}")
    V = ring.sub(0, 20)
    Pt = ring.sub(20, 60)
    for i in range(20):
        a(f"v_accvgpr_read_b32 {V[i]}, {ACC[i]}")
    a("s_waitcnt lgkmcnt(0)")
    a("s_barrier")
    for s in range(3):
        for j in range(5):
            a(f"ds_read_b128 {Pt.sub((s * 5 + j) * 4, 4)}, {vL[0]} offset:{(s * 5 + j) * 1024}")
    Gv = ring.sub(80, 20)
    a("s_waitcnt vmcnt(0)")
    for i in range(20):
        a(f"v_accvgpr_read_b32 {Gv[i]}, {G[i]}")
    for s in range(3):
        a(f"s_waitcnt lgkmcnt({10 - 5 * s})")
        for i in range(20):
            a(f"v_add_f32 {V[i]}, {V[i]}, {Pt[s * 20 + i]}")
    for j in range(5):
        for p in range(2):
            r = RES[2 * j + p]
            i0 = 4 * j + 2 * p
            a(f"v_lshlrev_b32 {t[1]}, 16, {r}")
            a(f"v_and_b32 {t[2]}, 0xffff0000, {r}")
            a(f"v_fmac_f32 {t[1]}, {V[i0]}, {Gv[i0]}")
            a(f"v_fmac_f32 {t[2]}, {V[i0 + 1]}, {Gv[i0 + 1]}")
            a(f"v_cvt_pk_bf16_f32 {r}, {t[1]}, {t[2]}")
        a(f"buffer_store_dwordx2 {RES.sub(2 * j, 2)}, {vR}, {sr(sO, 4)}, 0 offen offset:{8 * j}")
    if timing:
        timing_tail(a, 44, s_wave, ring.sub(0, 2), t[3])
    a.label(f"{name}_end")
    a("s_endpgm")
    return (name, a.lines, 256 + aa.p, 256, 256, 256, 61440)


def gen_gateup(name, la_frags=5, timing=False):
    NQB, NW, SLOT = 4, 4, 16384
    a = Asm()
    va = Alloc(1, 256)
    aa = Alloc(0, 256, acc=True)
    t = va.get(7)
    vA = [va.get(4) for _ in range(3)]
    vWd, vHo = va.get(1), va.get(1)
    ACC = va.get(128, 4)
    OUT = va.get(32, 4)
    Hr = aa.get(128, 4)
    FR = aa.get(32, 4)
    acc = lambda qb, db: ACC.sub((qb * 8 + db) * 4, 4)
    Hf = lambda stage, ks, qb: Hr.sub((((stage % 4) * 2 + ks) * NQB + qb) * 4, 4)
    sG, sU, sH, sO = 8, 12, 16, 20
    s_wave, s_wb, s_fb, s_tb, s_t0, s_t1 = range(28, 34)
    st = Stream(a, FR, 8, la_frags * NQB, 2)
    RS = F * 2
    a(f"""
    s_cmp_ge_u32 s2, 256
    s_cbranch_scc1 {name}_end
    s_load_dwordx4 s[4:7], s[0:1], {KA_WG}
    s_load_dwordx2 s[24:25], s[0:1], {KA_WS}
    """)
    if timing:
        timing_head(a, 44)
    a(f"""
    v_lshrrev_b32 {t[0]}, 6, v0
    v_and_b32 v0, 63, v0
    v_readfirstlane_b32 s{s_wave}, {t[0]}
    s_and_b32 s{s_tb}, s2, 1
    s_lshl_b32 s{s_tb}, s{s_tb}, 2
    s_bfe_u32 s{s_t0}, s2, 0x20003
    s_add_u32 s{s_tb}, s{s_tb}, s{s_t0}
    s_bfe_u32 s{s_fb}, s2, 0x20001
    s_mul_i32 s{s_fb}, s{s_fb}, 7
    s_lshr_b32 s{s_t0}, s2, 5
    s_add_u32 s{s_fb}, s{s_fb}, s{s_t0}
    s_cmp_eq_u32 s{s_t0}, 7
    s_cbranch_scc1 {name}_pf
    s_cmp_ge_u32 s{s_fb}, 27
    s_cbranch_scc1 {name}_fin
    """)
    tr_dma_col(a, t[3], [t[1], t[2]])
    a(f"""
    s_lshl_b32 s{s_tb}, s{s_tb}, 2
    s_add_u32 s{s_tb}, s{s_tb}, s{s_wave}
    s_lshl_b32 s{s_wb}, s{s_wave}, 10
    v_lshrrev_b32 {t[1]}, 3, v0
    v_lshl_add_u32 {t[1]}, {t[0]}, 3, {t[1]}
    v_mul_u32_u24 {t[1]}, {RS}, {t[1]}
    v_add_u32 {vWd}, {t[1]}, {t[3]}
    v_lshlrev_b32 {vHo}, 4, v0
    s_lshl_b32 s{s_t0}, s{s_fb}, 7
    s_sub_u32 s34, {D * RS}, s{s_t0}
    s_mul_i32 s{s_t1}, s{s_tb}, {20 * 4096}
    s_waitcnt lgkmcnt(0)
    """)
    srd(a, sG, 4, off_lines_reg=s_t0, size_reg=34)
    srd(a, sU, 6, off_lines_reg=s_t0, size_reg=34)
    srd(a, sH, 24, off_lines_reg=s_t1, off_imm=WS_H2, size=20 * 4096)

    def w_tile(s):
        ops = []
        for rg in range(2):
            for half in range(2):
                n = rg * NW + half * 8
                pre = [f"s_add_u32 m0, s{s_wb}, {s * SLOT + n * 1024}",
                       f"s_mov_b32 s{s_t0}, {(s * 64 + rg * 32) * RS}"]
                ops.append(VmOp(f"buffer_load_dwordx4 {vWd}, {sr(sU if half else sG, 4)}, s{s_t0} offen lds", ("W", s), pre))
        return ops

    def h_loads(stage):
        ops = []
        for ks in range(2):
            for qb in range(NQB):
                pre = [f"s_mov_b32 s{s_t1}, {(stage * 2 + ks) * 4096}"] if qb == 0 else []
                ops.append(VmOp(f"buffer_load_dwordx4 {Hf(stage, ks, qb)}, {vHo}, {sr(sH, 4)}, s{s_t1} offen offset:{qb * 1024}",
                                ("h", stage), pre))
        return ops
    for s in range(2):
        for op in w_tile(s) + h_loads(s):
            st.emit_vm(op)
    tr_addr_setup(a, vA[0], [t[1], t[2], t[3]])
    for i in range(4):
        a(f"v_add_u32 {vA[1][i]}, 0x10000, {vA[0][i]}")
        a(f"v_add_u32 {vA[2][i]}, 0x20000, {vA[0][i]}")
    a(f"""
    s_mul_i32 s{s_t0}, s{s_tb}, {54 * 4096}
    s_lshl_b32 s34, s{s_fb}, 13
    s_add_u32 s{s_t0}, s{s_t0}, s34
    """)
    srd(a, sO, 24, off_lines_reg=s_t0, off_imm=WS_ACT, size=8192)

    def tr_frag(slot, u, db, guard=None):
        base = slot * SLOT
        ar, rel = vA[base >> 16], base & 0xffff
        return Frag([("ds_read_b64_tr_b16", 2 * e4, 2, ar[db % 4], rel + (db // 4) * 8192 + (32 * u + 16 * e4) * 128)
                     for e4 in range(2)], guard)
    items, vms = [], []
    for s in range(10):
        first = len(items)
        for ks in range(2):
            for db in range(8):
                g = st.guard_wait([("W", s), ("h", s)]) if (ks == 0 and db == 0) else None
                fr = tr_frag(s, ks, db, g)
                for qb in range(NQB):
                    c = "0" if (s == 0 and ks == 0) else str(acc(qb, db))
                    items.append(Item(f"{MFMA16} {acc(qb, db)}, {{A}}, {Hf(s, ks, qb)}, {c}", fr))
        ops = []
        if s == 0:
            ops += w_tile(2) + h_loads(2)
        if s + 3 < 10:
            ops += w_tile(s + 3) + h_loads(s + 3)
        if ops:
            vms.append((first + 1, first + 63, ops))
    st.layout(items)
    for g0, g1, ops in vms:
        st.place_vm(items, g0, g1, ops)
    for g in (0, 64, 192, 320, 639):
        items[g].block.append("; STAMP")
    a.lines.append("; STAMP")
    st.emit(items, [])
    for i in range(2):
        a(f"s_mov_b32 s{s_t0}, {i * 4096}")
        for qb in range(NQB):
            dst = OUT.sub((i * 4 + qb) * 4, 4)
            for hf in range(2):
                gt, up = acc(qb, 2 * i + hf), acc(qb, 4 + 2 * i + hf)
                for r in range(4):
                    a(f"v_max_f32 {gt[r]}, 0, {gt[r]}")
                for r in range(4):
                    a(f"v_mul_f32 {gt[r]}, {gt[r]}, {up[r]}")
                for j in range(2):
                    a(f"v_cvt_pk_bf16_f32 {dst[2 * hf + j]}, {gt[2 * j]}, {gt[2 * j + 1]}")
            a(f"buffer_store_dwordx4 {dst}, {vHo}, {sr(sO, 4)}, s{s_t0} offen offset:{qb * 1024} sc1")
    a(f"s_branch {name}_fin")
    a.label(f"{name}_pf")
    a(f"""
    s_waitcnt lgkmcnt(0)
    s_and_b32 s3, s2, 31
    s_add_u32 s3, s3, 128
    v_lshl_add_u32 v0, {t[0]}, 6, v0
    v_mov_b32 v50, v0
    {name}_relay:
    """)
    relayout_body(a, name, 3)
    a(f"""
    s_add_u32 s3, s3, 32
    v_mov_b32 v0, v50
    s_barrier
    s_cmp_lt_u32 s3, 182
    s_cbranch_scc1 {name}_relay
    """)
    a.label(f"{name}_fin")
    a.label(f"{name}_end")
    a("s_endpgm")
    return (name, a.lines, 256 + aa.p, 256, 256, 256, 163840)


def gen_oproj(name, la_frags=8, NRING=6, XD=4, timing=False, sc1=True):
    NT, NB, NST = 2, 10, 16
    SL = 64 * 320
    a = Asm()
    va = Alloc(1, 256)
    t = va.get(7)
    vA = [va.get(2) for _ in range(2)]
    vWd = va.get(5)
    vHo = va.get(1)
    ACC = va.get(80, 4)
    Xr = va.get(XD * 16, 4)
    NFR = 12
    FR = va.get(4 * NFR, 4)
    acc = lambda tb, j: ACC.sub((tb * NB + j) * 4, 4)
    Xf = lambda stage, ks, tb: Xr.sub((((stage % XD) * 2 + ks) * NT + tb) * 4, 4)
    sW, sX, sO = 8, 12, 16
    s_wave, s_wb, s_hg, s_tb, s_nb, s_t0, s_t1 = range(28, 35)
    st = Stream(a, FR, NFR, la_frags * NT, 2)
    a(f"""
    s_cmp_ge_u32 s2, 256
    s_cbranch_scc1 {name}_end
    s_load_dwordx2 s[4:5], s[0:1], {KA_WO}
    s_load_dwordx2 s[6:7], s[0:1], {KA_WS}
    v_lshrrev_b32 {t[0]}, 6, v0
    v_readfirstlane_b32 s{s_wave}, {t[0]}
    s_bfe_u32 s{s_hg}, s2, 0x20001
    s_and_b32 s{s_tb}, s2, 1
    s_lshl_b32 s{s_tb}, s{s_tb}, 3
    s_bfe_u32 s{s_t0}, s2, 0x30003
    s_add_u32 s{s_tb}, s{s_tb}, s{s_t0}
    s_lshr_b32 s{s_nb}, s2, 6
    """)
    for i in range(5):
        a(f"""
        v_add_u32 {t[1]}, {256 * i}, v0
        v_mul_u32_u24 {t[2]}, 3277, {t[1]}
        v_lshrrev_b32 {t[2]}, 16, {t[2]}
        v_mul_u32_u24 {t[3]}, 20, {t[2]}
        v_sub_u32 {t[3]}, {t[1]}, {t[3]}
        v_bfe_u32 {t[4]}, {t[2]}, 2, 1
        v_lshlrev_b32 {t[4]}, 1, {t[4]}
        v_xor_b32 {t[3]}, {t[3]}, {t[4]}
        v_mul_u32_u24 {t[2]}, {D * 2}, {t[2]}
        v_lshl_add_u32 {vWd[i]}, {t[3]}, 4, {t[2]}
        """)
    assert all((p * 3277) >> 16 == p // 20 for p in range(1280))
    a(f"""
    v_and_b32 v0, 63, v0
    v_lshlrev_b32 {vHo}, 4, v0
    s_lshl_b32 s{s_wb}, s{s_wave}, 10
    s_mul_i32 s{s_t0}, s{s_hg}, {1024 * D * 2}
    s_mul_i32 s{s_t1}, s{s_nb}, 320
    s_add_u32 s{s_t0}, s{s_t0}, s{s_t1}
    s_sub_u32 s36, {1024 * D * 2}, s{s_t1}
    s_lshl_b32 s37, s{s_tb}, 1
    s_lshr_b32 s38, s{s_wave}, 1
    s_add_u32 s37, s37, s38
    s_and_b32 s38, s{s_wave}, 1
    s_lshl_b32 s38, s38, 11
    s_lshl_b32 s39, s37, 19
    s_lshl_b32 s40, s{s_hg}, 17
    s_add_u32 s39, s39, s40
    s_add_u32 s39, s39, s38
    s_sub_u32 s40, {32 * 4096}, s38
    s_waitcnt lgkmcnt(0)
    """)
    srd(a, sW, 4, off_lines_reg=s_t0, size_reg=36)
    srd(a, sX, 6, off_lines_reg=39, off_imm=WS_O, size_reg=40)

    def w_tile(s):
        ops = []
        for i in range(5):
            pre = [f"s_add_u32 m0, s{s_wb}, {(s % NRING) * SL + i * 4096}"]
            if i == 0:
                pre.append(f"s_mov_b32 s{s_t0}, {s * 64 * D * 2}")
            ops.append(VmOp(f"buffer_load_dwordx4 {vWd[i]}, {sr(sW, 4)}, s{s_t0} offen lds", ("W", s), pre))
        return ops

    def x_loads(s):
        ops = []
        for ks in range(2):
            for tb in range(NT):
                pre = [f"s_mov_b32 s{s_t1}, {(s * 2 + ks) * 4096}"] if tb == 0 else []
                ops.append(VmOp(f"buffer_load_dwordx4 {Xf(s, ks, tb)}, {vHo}, {sr(sX, 4)}, s{s_t1} offen offset:{tb * 1024}",
                                ("x", s), pre))
        return ops
    PF = XD - 1
    for s in range(PF):
        for op in w_tile(s) + x_loads(s):
            st.emit_vm(op)
    a(f"""
    v_lshrrev_b32 {t[1]}, 2, v0
    v_mul_u32_u24 {t[1]}, 320, {t[1]}
    v_and_b32 {t[2]}, 3, v0
    v_lshl_add_u32 {t[1]}, {t[2]}, 3, {t[1]}
    v_bfe_u32 {t[2]}, v0, 4, 1
    v_lshlrev_b32 {t[2]}, 5, {t[2]}
    v_add_u32 {vA[0][0]}, {t[1]}, {t[2]}
    v_xor_b32 {t[2]}, 32, {t[2]}
    v_add_u32 {vA[0][1]}, {t[1]}, {t[2]}
    v_add_u32 {vA[1][0]}, {3 * SL}, {vA[0][0]}
    v_add_u32 {vA[1][1]}, {3 * SL}, {vA[0][1]}
    s_mul_i32 s39, s37, {20 * 4096}
    s_mul_i32 s40, s{s_hg}, {PSTRIDE}
    s_add_u32 s39, s39, s40
    s_mul_i32 s40, s{s_nb}, {5 * 4096}
    s_add_u32 s39, s39, s40
    s_add_u32 s39, s39, s38
    s_sub_u32 s40, {5 * 4096}, s38
    """)
    srd(a, sO, 6, off_lines_reg=39, off_imm=WS_PART, size_reg=40)

    def tr_frag(s, ks, j, guard=None):
        slot = s % NRING
        ar, rel = vA[slot // 3], (slot % 3) * SL
        return Frag([("ds_read_b64_tr_b16", 2 * e4, 2, ar[j % 2], rel + (32 * ks + 16 * e4) * 320 + (j // 2) * 64)
                     for e4 in range(2)], guard)
    items, vms = [], []
    nst = 2 * NB * NT
    for s in range(NST):
        first = len(items)
        for ks in range(2):
            for j in range(NB):
                g = st.guard_wait([("W", s), ("x", s)]) if (ks == 0 and j == 0) else None
                fr = tr_frag(s, ks, j, g)
                for tb in range(NT):
                    c = "0" if (s == 0 and ks == 0) else str(acc(tb, j))
                    items.append(Item(f"{MFMA16} {acc(tb, j)}, {{A}}, {Xf(s, ks, tb)}, {c}", fr))
        if s + PF < NST:
            assert NRING >= PF + 2
            vms.append((first + 1, first + nst - 1, w_tile(s + PF) + x_loads(s + PF)))
    st.layout(items)
    for g0, g1, ops in vms:
        st.place_vm(items, g0, g1, ops)
    for g in (0, nst * 4, nst * 8, len(items) - 1):
        items[g].block.append("; STAMP")
    a.lines.append("; STAMP")
    st.emit(items, [])
    print(name, "estimated cycles", sum(st.est))
    k = 0
    for i in range(5):
        a(f"s_mov_b32 s{s_t0}, {i * 4096}")
        for tb in range(NT):
            dst = Xr.sub(4 * k, 4)
            k += 1
            for hf in range(2):
                src = acc(tb, 2 * i + hf)
                for j in range(2):
                    a(f"v_cvt_pk_bf16_f32 {dst[2 * hf + j]}, {src[2 * j]}, {src[2 * j + 1]}")
            a(f"buffer_store_dwordx4 {dst}, {vHo}, {sr(sO, 4)}, s{s_t0} offen offset:{tb * 1024}{' sc1' if sc1 else ''}")
    a.label(f"{name}_end")
    a("s_endpgm")
    return (name, a.lines, va.p, (va.p + 3) // 4 * 4, 256, 256, NRING * SL)
```

```python
KA_X, KA_K, KA_V, KA_WQ, KA_WO, KA_BX, KA_WG, KA_WU, KA_WD, KA_C, KA_WMOD, KA_OUT, KA_DBG, KA_WS = [8 * i for i in range(14)]

S, D, H, DH, F = 2048, 640, 32, 128, 1728

WS_MOD = 0x0
WS_H = 0x10000
WS_O = WS_H + S * D * 2
WS_X1 = WS_O + S * H * DH * 2
WS_H2 = WS_X1 + S * D * 2
WS_ACT = WS_H2 + S * D * 2
WS_WOF = WS_ACT + S * F * 2
WS_WDF = WS_WOF + H * DH * D * 2
WS_PART = WS_WDF + F * D * 2
import os
PSTRIDE = S * D * 2 + int(os.environ.get('PPAD', '0'), 0)
WS_PART += int(os.environ.get('POFF', '0'), 0)
WS_END = WS_PART + 4 * PSTRIDE
QSCALE = 1.4426950408889634 * DH ** -0.5
```

```python
from asmlib import Asm, Alloc, Reg, sr
from stream import f32hex
from layout import *


def srd(a, dst, base, off_lines_reg=None, off_imm=0, size=None, size_reg=None):
    if off_lines_reg is not None:
        a(f"s_add_u32 s{dst}, s{base}, s{off_lines_reg}")
        a(f"s_addc_u32 s{dst+1}, s{base+1}, 0")
        if off_imm:
            a(f"s_add_u32 s{dst}, s{dst}, {off_imm}")
            a(f"s_addc_u32 s{dst+1}, s{dst+1}, 0")
    else:
        a(f"s_add_u32 s{dst}, s{base}, {off_imm}")
        a(f"s_addc_u32 s{dst+1}, s{base+1}, 0")
    a(f"s_mov_b32 s{dst+2}, {size if size_reg is None else 's%d' % size_reg}")
    a(f"s_mov_b32 s{dst+3}, 0x20000")


_uid = [0]


def code_prefetch_addr(a, label, s_tmp, vaddr, voff):
    _uid[0] += 1
    here = f"cpf_here{_uid[0]}"
    a(f"s_getpc_b64 s[{s_tmp}:{s_tmp+1}]")
    a.label(here)
    if label is not None:
        a(f"s_add_u32 s{s_tmp}, s{s_tmp}, {label}-{here}")
        a(f"s_addc_u32 s{s_tmp+1}, s{s_tmp+1}, 0")
    a(f"v_mov_b32 {vaddr[1]}, s{s_tmp+1}")
    a(f"v_add_co_u32 {vaddr[0]}, vcc, s{s_tmp}, {voff}")
    a(f"v_addc_co_u32 {vaddr[1]}, vcc, 0, {vaddr[1]}, vcc")


def round_bf16(a, v, tmp):
    a(f"v_cvt_pk_bf16_f32 {v}, {v}, {v}")
    a(f"v_and_b32 {v}, 0xffff0000, {v}")


def mod_body(a, name, wg, pf=None):
    a(f"""
    s_load_dwordx4 s[4:7], s[0:1], {KA_C}
    s_load_dwordx2 s[16:17], s[0:1], {KA_WS}
    v_and_b32 v1, 3, v0
    v_lshrrev_b32 v2, 2, v0
    v_lshlrev_b32 v3, 1, v2
    v_mul_u32_u24 v4, {6 * D * 2}, v2
    v_lshl_add_u32 v4, v1, 4, v4
    s_lshl_b32 s20, s{wg}, 6
    s_waitcnt lgkmcnt(0)
    """)
    srd(a, 8, 4, size=D * 2)
    srd(a, 12, 6, size=D * 6 * D * 2)
    W = Reg(16, 40)
    C = Reg(56, 10)
    ACC = Reg(8, 8)
    for i in range(10):
        a(f"buffer_load_ushort {C[i]}, v3, s[8:11], 0 offen offset:{128 * i}")
    for i in range(10):
        a(f"s_add_u32 s21, s20, {64 * i * 6 * D * 2}")
        a(f"buffer_load_dwordx4 {W.sub(4 * i, 4)}, v4, s[12:15], s21 offen")
    npf = pf(a) if pf else 0
    for j in range(8):
        a(f"v_mov_b32 {ACC[j]}, 0")
    a(f"s_waitcnt vmcnt({10 + npf})")
    for i in range(10):
        a(f"v_lshlrev_b32 {C[i]}, 16, {C[i]}")
        a(f"v_mul_f32 v5, {f32hex(-1.4426950408889634)}, {C[i]}")
        a(f"v_exp_f32 v5, v5")
        a(f"v_add_f32 v5, 1.0, v5")
        a(f"v_rcp_f32 v5, v5")
        a(f"v_mul_f32 {C[i]}, {C[i]}, v5")
        round_bf16(a, C[i], None)
    for i in range(10):
        a(f"s_waitcnt vmcnt({9 - i + npf})")
        for j in range(4):
            w = W[4 * i + j]
            a(f"v_lshlrev_b32 v5, 16, {w}")
            a(f"v_and_b32 v6, 0xffff0000, {w}")
            a(f"v_fmac_f32 {ACC[2 * j]}, v5, {C[i]}")
            a(f"v_fmac_f32 {ACC[2 * j + 1]}, v6, {C[i]}")
    a(f"""
    v_lshlrev_b32 v5, 5, v0
    ds_write_b128 v5, {ACC.sub(0, 4)}
    ds_write_b128 v5, {ACC.sub(4, 4)} offset:16
    s_waitcnt lgkmcnt(0)
    s_barrier
    v_and_b32 v1, 31, v0
    v_lshrrev_b32 v2, 5, v0
    v_lshlrev_b32 v5, 2, v1
    v_lshl_add_u32 v5, v2, 10, v5
    """)
    for i in range(8):
        a(f"ds_read_b32 {W[i]}, v5 offset:{128 * i}")
    a("s_waitcnt lgkmcnt(0)")
    for i in range(1, 8):
        a(f"v_add_f32 {W[0]}, {W[0]}, {W[i]}")
    a(f"""
    s_barrier
    v_lshlrev_b32 v5, 2, v0
    ds_write_b32 v5, {W[0]}
    s_waitcnt lgkmcnt(0)
    s_barrier
    v_lshlrev_b32 v5, 2, v1
    """)
    for i in range(8):
        a(f"ds_read_b32 {W[i]}, v5 offset:{128 * i}")
    a("s_waitcnt lgkmcnt(0)")
    for i in range(1, 8):
        a(f"v_add_f32 {W[0]}, {W[0]}, {W[i]}")
    round_bf16(a, W[0], None)
    a(f"""
    s_sub_u32 s21, s{wg}, 20
    s_cmp_lt_u32 s21, 20
    s_cselect_b32 s22, 1.0, 0
    s_sub_u32 s21, s{wg}, 80
    s_cmp_lt_u32 s21, 20
    s_cselect_b32 s22, 1.0, s22
    v_add_f32 {W[0]}, s22, {W[0]}
    """)
    round_bf16(a, W[0], None)
    srd(a, 8, 16, off_imm=WS_MOD, size=3840 * 4)
    a(f"""
    s_lshl_b32 s20, s{wg}, 7
    v_cmp_gt_u32 vcc, 32, v0
    s_and_saveexec_b64 s[24:25], vcc
    s_cbranch_execz {name}_modend
    buffer_store_dword {W[0]}, v5, s[8:11], s20 offen
    {name}_modend:
    """)


def gen_mod(name, wq_half=False):
    a = Asm()
    a(f"""
    s_cmp_ge_u32 s2, 256
    s_cbranch_scc1 {name}_end
    s_cmp_ge_u32 s2, 120
    s_cbranch_scc1 {name}_pf
    v_lshlrev_b32 v9, 4, v0
    """)
    code_prefetch_addr(a, None, 56, Reg(10, 2), "v9")
    a("global_load_dwordx4 v[68:71], v[10:11], off")
    mod_body(a, name, 2)
    a(f"""
    s_branch {name}_fin
    {name}_pf:
    s_load_dwordx2 s[44:45], s[0:1], {KA_X}
    s_load_dwordx2 s[46:47], s[0:1], {KA_WQ}
    v_lshlrev_b32 v6, 4, v0
    s_lshr_b32 s42, s2, 3
    s_sub_u32 s42, s42, 15
    s_lshl_b32 s43, s42, 12
    v_add_u32 v9, s43, v6
    v_min_u32 v9, attn_kernel_hotend-ln1_kernel-16, v9
    """)
    code_prefetch_addr(a, "ln1_kernel", 56, Reg(10, 2), "v9")
    a("global_load_dwordx4 v[12:15], v[10:11], off")
    a(f"""
    s_and_b32 s40, s2, 1
    s_mul_i32 s41, s40, {320 * 8192}
    s_lshl_b32 s40, s40, 7
    s_bfe_u32 s43, s2, 0x20001
    s_add_u32 s40, s40, s43
    s_lshl_b32 s43, s43, 11
    s_add_u32 s41, s41, s43
    s_mul_i32 s43, s42, {20 * 8192}
    s_add_u32 s41, s41, s43
    s_lshl_b32 s43, s42, 3
    s_add_u32 s40, s40, s43
    s_mul_i32 s40, s40, {8 * D * 2}
    s_cmp_ge_u32 s42, 16
    s_cbranch_scc1 {name}_fin
    s_waitcnt lgkmcnt(0)
    """)
    srd(a, 48, 44, size=S * D * 2)
    for g in range(2):
        for i in range(3):
            a(f"s_add_u32 s43, s40, {4096 * i + g * 4 * 8 * D * 2}")
            a(f"buffer_load_dwordx4 v[12:15], v6, s[48:51], s43 offen")
    if wq_half:
        a(f"""
        v_and_b32 v7, 127, v0
        v_lshlrev_b32 v7, 4, v7
        v_lshrrev_b32 v8, 7, v0
        v_lshl_add_u32 v7, v8, 13, v7
        """)
        srd(a, 52, 46, size=D * H * DH * 2)
        for i in range(10):
            a(f"s_add_u32 s43, s41, {2 * 8192 * i}")
            a(f"buffer_load_dwordx4 v[12:15], v7, s[52:55], s43 offen")
    a.label(f"{name}_fin")
    a.label(f"{name}_end")
    a("s_endpgm")
    return (name, a.lines, 72, 72, 256, 256, 8192)


def ln_body(a, t8, which, prefetch=None):
    X = Reg(12, 4)
    Xf = Reg(16, 8)
    SC = Reg(24, 8)
    SH = Reg(32, 8)
    PT = Reg(40, 16)
    ST = Reg(40, 20)
    dst_off, shift_idx, scale_idx = (WS_H, 0, 1) if which == 1 else (WS_H2, 3, 4)
    a(f"""
    s_load_dwordx2 s[4:5], s[0:1], {KA_X}
    s_load_dwordx2 s[6:7], s[0:1], {KA_WS}
    v_and_b32 v1, 7, v0
    v_bfe_u32 v2, v0, 3, 2
    v_lshrrev_b32 v3, 5, v0
    v_lshlrev_b32 v4, 2, v2
    v_lshl_add_u32 v4, v3, 5, v4
    v_mul_u32_u24 v5, {D * 2}, v1
    v_lshl_add_u32 v5, v4, 1, v5
    v_lshlrev_b32 v6, 2, v4
    v_lshlrev_b32 v7, 4, v1
    v_lshl_add_u32 v7, v2, 8, v7
    v_lshl_add_u32 v7, v3, 12, v7
    s_mul_i32 s20, s{t8}, {8 * D * 2}
    s_lshr_b32 s36, s{t8}, 3
    s_mul_i32 s36, s36, {20 * 4096}
    s_bfe_u32 s21, s{t8}, 0x20001
    s_lshl_b32 s21, s21, 10
    s_and_b32 s22, s{t8}, 1
    s_lshl_b32 s22, s22, 7
    s_add_u32 s21, s21, s22
    s_add_u32 s36, s36, s21
    s_sub_u32 s23, {20 * 4096}, s21
    s_waitcnt lgkmcnt(0)
    """)
    if which == 2:
        a(f"s_add_u32 s37, s23, {3 * PSTRIDE}")
        srd(a, 24, 6, off_lines_reg=36, off_imm=WS_PART, size_reg=37)
        for sp in range(4):
            a(f"s_mov_b32 s21, {sp * PSTRIDE}")
            a(f"buffer_load_dwordx4 {PT.sub(sp * 4, 4)}, v7, s[24:27], s21 offen")
    srd(a, 8, 4, off_lines_reg=20, size=8 * D * 2)
    for e4 in range(2):
        a(f"buffer_load_dwordx2 {X.sub(2 * e4, 2)}, v5, s[8:11], 0 offen offset:{32 * e4}")
    srd(a, 12, 6, off_imm=WS_MOD, size=3840 * 4)
    if which == 2:
        a(f"s_mov_b32 s21, {2 * D * 4}")
        for e4 in range(2):
            a(f"buffer_load_dwordx4 {Xf.sub(4 * e4, 4)}, v6, s[12:15], s21 offen offset:{64 * e4}")
    a(f"s_mov_b32 s21, {scale_idx * D * 4}")
    a(f"s_mov_b32 s22, {shift_idx * D * 4}")
    for e4 in range(2):
        a(f"buffer_load_dwordx4 {SC.sub(4 * e4, 4)}, v6, s[12:15], s21 offen offset:{64 * e4}")
        a(f"buffer_load_dwordx4 {SH.sub(4 * e4, 4)}, v6, s[12:15], s22 offen offset:{64 * e4}")
    srd(a, 16, 6, off_lines_reg=36, off_imm=dst_off, size_reg=23)
    a(f"""
    v_lshrrev_b32 v2, 6, v0
    v_lshlrev_b32 v2, 6, v2
    v_lshl_add_u32 v2, v1, 3, v2
    v_lshlrev_b32 v3, 3, v1
    """)
    npf = prefetch(a) if prefetch else 0
    a("; STAMP")
    if which == 2:
        srd(a, 28, 6, off_lines_reg=20, off_imm=WS_X1, size=8 * D * 2)
        a(f"s_waitcnt vmcnt({8 + npf})")
        a("; STAMP")
        for i in range(4):
            a(f"v_lshlrev_b32 v8, 16, {PT[i]}")
            a(f"v_and_b32 v9, 0xffff0000, {PT[i]}")
            for sp in range(1, 4):
                a(f"v_lshlrev_b32 v10, 16, {PT[sp * 4 + i]}")
                a(f"v_and_b32 v11, 0xffff0000, {PT[sp * 4 + i]}")
                d0, d1 = (PT[i], PT[4 + i]) if sp == 3 else ("v8", "v9")
                a(f"v_add_f32 {d0}, v8, v10")
                a(f"v_add_f32 {d1}, v9, v11")
        a(f"s_waitcnt vmcnt({4 + npf})")
        for i in range(4):
            a(f"v_lshlrev_b32 v8, 16, {X[i]}")
            a(f"v_and_b32 v9, 0xffff0000, {X[i]}")
            a(f"v_fmac_f32 v8, {Xf[2 * i]}, {PT[i]}")
            a(f"v_fmac_f32 v9, {Xf[2 * i + 1]}, {PT[4 + i]}")
            a(f"v_cvt_pk_bf16_f32 {X[i]}, v8, v9")
        for e4 in range(2):
            a(f"buffer_store_dwordx2 {X.sub(2 * e4, 2)}, v5, s[28:31], 0 offen offset:{32 * e4}")
    else:
        a(f"s_waitcnt vmcnt({4 + npf})")
        a("; STAMP")
    for i in range(4):
        a(f"v_lshlrev_b32 {Xf[2 * i]}, 16, {X[i]}")
        a(f"v_and_b32 {Xf[2 * i + 1]}, 0xffff0000, {X[i]}")

    def reduce(v, t):
        a(f"""
        v_add_f32_dpp {v}, {v}, {v} row_ror:8 row_mask:0xf bank_mask:0xf
        v_mov_b32 {t}, {v}
        v_permlane16_swap_b32 {v}, {t}
        v_add_f32 {v}, {v}, {t}
        v_mov_b32 {t}, {v}
        v_permlane32_swap_b32 {v}, {t}
        v_add_f32 {v}, {v}, {t}
        """)
    a(f"v_add_f32 v8, {Xf[0]}, {Xf[1]}")
    a(f"v_add_f32 v9, {Xf[2]}, {Xf[3]}")
    a(f"v_add_f32 v10, {Xf[4]}, {Xf[5]}")
    a(f"v_add_f32 v11, {Xf[6]}, {Xf[7]}")
    a("v_add_f32 v8, v8, v9\nv_add_f32 v10, v10, v11\nv_add_f32 v8, v8, v10")
    reduce("v8", "v9")
    a(f"v_mul_f32 v8, {f32hex(1.0 / 64)}, v8")
    a(f"v_sub_f32 v10, {Xf[0]}, v8")
    a("v_mul_f32 v9, v10, v10")
    for i in range(1, 8):
        a(f"v_sub_f32 v10, {Xf[i]}, v8")
        a("v_fmac_f32 v9, v10, v10")
    reduce("v9", "v10")
    a("""
    ds_write_b64 v2, v[8:9]
    s_waitcnt lgkmcnt(0)
    s_barrier
    """)
    for w in range(10):
        a(f"ds_read_b64 {ST.sub(2 * w, 2)}, v3 offset:{64 * w}")
    a("s_waitcnt lgkmcnt(0)")
    a(f"v_add_f32 v8, {ST[0]}, {ST[2]}")
    a(f"v_add_f32 v9, {ST[1]}, {ST[3]}")
    for w in range(2, 10):
        a(f"v_add_f32 v8, v8, {ST[2 * w]}")
        a(f"v_add_f32 v9, v9, {ST[2 * w + 1]}")
    a(f"v_mul_f32 v8, {f32hex(0.1)}, v8")
    a(f"v_sub_f32 v10, {ST[0]}, v8")
    a("v_mul_f32 v11, v10, v10")
    for w in range(1, 10):
        a(f"v_sub_f32 v10, {ST[2 * w]}, v8")
        a("v_fmac_f32 v11, v10, v10")
    a(f"v_fmac_f32 v9, {f32hex(64.0)}, v11")
    a(f"v_mov_b32 v10, {f32hex(1e-5)}")
    a(f"v_fmac_f32 v10, {f32hex(1.0 / D)}, v9")
    a("v_rsq_f32 v9, v10")
    for i in range(8):
        a(f"v_sub_f32 {Xf[i]}, {Xf[i]}, v8")
    for i in range(8):
        a(f"v_mul_f32 {Xf[i]}, {Xf[i]}, v9")
    a(f"s_waitcnt vmcnt({(2 if which == 2 else 0) + npf})")
    for j in range(8):
        a(f"v_fma_f32 {Xf[j]}, {Xf[j]}, {SC[j]}, {SH[j]}")
    if which == 1:
        for j in range(8):
            a(f"v_mul_f32 {Xf[j]}, {f32hex(QSCALE)}, {Xf[j]}")
    for j in range(4):
        a(f"v_cvt_pk_bf16_f32 {ST[j]}, {Xf[2 * j]}, {Xf[2 * j + 1]}")
    a(f"buffer_store_dwordx4 {ST.sub(0, 4)}, v7, s[16:19], 0 offen sc1")
    a("; STAMP")


def gen_ln(name, which, wq=2, kv=True, wgu=True):
    a = Asm()
    NX = 0
    a(f"""
    s_cmp_ge_u32 s2, {256 + NX}
    s_cbranch_scc1 {name}_end
    """)
    if NX:
        a(f"""
        s_cmp_lt_u32 s2, {NX}
        s_cbranch_scc1 {name}_extra
        s_sub_u32 s2, s2, {NX}
        """)
    a(f"""
    s_and_b32 s3, s2, 1
    s_lshl_b32 s3, s3, 7
    s_lshr_b32 s40, s2, 1
    s_add_u32 s3, s3, s40
    """)
    if which == 2:
        a(f"s_load_dwordx4 s[44:47], s[0:1], {KA_WG}")
    else:
        a(f"s_load_dwordx4 s[44:47], s[0:1], {KA_K}")
        a(f"s_load_dwordx2 s[60:61], s[0:1], {KA_WQ}")

    def pf2(a):
        if not wgu:
            return 0
        a(f"""
        v_and_b32 v60, 63, v0
        v_lshlrev_b32 v60, 4, v60
        v_lshrrev_b32 v61, 6, v0
        v_mul_u32_u24 v61, {2 * F * 2}, v61
        v_add_u32 v60, v60, v61
        s_lshr_b32 s40, s2, 3
        s_mul_i32 s40, s40, {20 * F * 2}
        s_bfe_u32 s41, s2, 0x20001
        s_mul_i32 s41, s41, 896
        s_add_u32 s40, s40, s41
        s_add_u32 s41, s40, {F * 2}
        """)
        srd(a, 48, 44, size=D * F * 2)
        srd(a, 52, 46, size=D * F * 2)
        for sd in (48, 52):
            for so in (40, 41):
                a(f"buffer_load_dwordx4 v[64:67], v60, s[{sd}:{sd+3}], s{so} offen")
        return 4

    def pf1(a):
        n = 0
        if wq:
            a(f"""
            v_and_b32 v61, 63, v0
            v_lshlrev_b32 v61, 4, v61
            v_lshrrev_b32 v60, 6, v0
            v_lshl_add_u32 v61, v60, 13, v61
            s_and_b32 s42, s2, 1
            s_mul_i32 s43, s42, {320 * 8192}
            s_xor_b32 s42, s42, 1
            s_mul_i32 s42, s42, {320 * 8192}
            s_lshr_b32 s41, s2, 3
            s_mul_i32 s40, s41, {10 * 8192}
            s_bfe_u32 s41, s2, 0x20001
            s_lshl_b32 s41, s41, 11
            s_add_u32 s40, s40, s41
            s_add_u32 s42, s42, s40
            s_add_u32 s43, s43, s40
            """)
            srd(a, 56, 60, size=D * H * DH * 2)
            for so in ([43, 42] if wq == 2 else [42]):
                a(f"buffer_load_dwordx4 v[64:67], v61, s[56:59], s{so} offen")
                a(f"buffer_load_dwordx4 v[64:67], v61, s[56:59], s{so} offen offset:1024")
                n += 2
        if kv:
            a(f"""
            v_lshlrev_b32 v60, 4, v0
            s_bfe_u32 s40, s2, 0x20001
            s_lshl_b32 s40, s40, 3
            s_bfe_u32 s41, s2, 0x30003
            s_add_u32 s40, s40, s41
            s_lshl_b32 s40, s40, 19
            s_lshr_b32 s41, s2, 6
            s_mul_i32 s41, s41, 10240
            s_add_u32 s40, s40, s41
            """)
            srd(a, 48, 44, size=H * S * DH * 2)
            srd(a, 52, 46, size=H * S * DH * 2)
            for sd in (48, 52):
                a(f"buffer_load_dwordx4 v[64:67], v60, s[{sd}:{sd+3}], s40 offen")
            n += 2
        return n
    ln_body(a, 3, which, pf2 if which == 2 else pf1)
    if NX:
        a(f"""
        s_branch {name}_fin
        {name}_extra:
        v_readfirstlane_b32 s3, v0
        s_cmp_ge_u32 s3, 256
        s_cbranch_scc1 {name}_end
        s_cmp_ge_u32 s2, 54
        s_cbranch_scc1 {name}_end
        s_add_u32 s3, s2, 128
        """)
        relayout_body(a, name, 3)
        a.label(f"{name}_fin")
    a.label(f"{name}_end")
    a("s_endpgm")
    return (name, a.lines, 72, 72, 640, 256 + NX, 40960 if NX else 1024)


def relayout_body(a, name, wg, pf=None):
    a(f"""
    s_load_dwordx2 s[4:5], s[0:1], {KA_WO}
    s_load_dwordx2 s[6:7], s[0:1], {KA_WD}
    s_load_dwordx2 s[16:17], s[0:1], {KA_WS}
    v_lshrrev_b32 v1, 6, v0
    v_and_b32 v0, 63, v0
    v_readfirstlane_b32 s28, v1
    v_lshlrev_b32 v2, 4, v0
    v_lshrrev_b32 v3, 2, v0
    v_mul_u32_u24 v3, {D * 2}, v3
    v_and_b32 v4, 3, v0
    v_mul_u32_u24 v4, 40, v4
    v_add_u32 v3, v3, v4
    v_mul_u32_u24 v4, 320, v1
    v_add_u32 v3, v3, v4
    s_cmp_lt_u32 s{wg}, 128
    s_cselect_b32 s20, 0, 128
    s_sub_u32 s20, s{wg}, s20
    s_waitcnt lgkmcnt(0)
    s_cmp_lt_u32 s{wg}, 128
    s_cselect_b32 s4, s4, s6
    s_cselect_b32 s5, s5, s7
    s_cselect_b32 s24, 128, 54
    s_mov_b32 s25, {WS_WDF}
    s_cselect_b32 s25, {WS_WOF}, s25
    s_mul_i32 s21, s20, {32 * D * 2}
    """)
    srd(a, 8, 4, off_lines_reg=21, size=32 * D * 2)
    a(f"s_mul_i32 s22, s28, 10240")
    for i in range(10):
        a(f"s_add_u32 s23, s22, {1024 * i}")
        a(f"s_mov_b32 m0, s23")
        a(f"buffer_load_dwordx4 v2, s[8:11], s23 offen lds")
    npf = pf(a) if pf else 0
    a(f"""
    s_mul_i32 s26, s24, {8 * 5120}
    """)
    srd(a, 12, 16, off_lines_reg=25, size_reg=26)
    a(f"""
    s_mul_i32 s27, s24, 5120
    s_lshl_b32 s22, s28, 1
    s_mul_i32 s22, s22, s27
    s_mul_i32 s21, s20, 5120
    s_add_u32 s22, s22, s21
    s_waitcnt vmcnt({npf})
    s_barrier
    """)
    Fq = Reg(8, 40)
    for nbl in range(2):
        for j in range(5):
            f = Fq.sub((nbl * 5 + j) * 4, 4)
            for e4 in range(2):
                a(f"ds_read_b64_tr_b16 {f.sub(2 * e4, 2)}, v3 offset:{e4 * 16 * D * 2 + (nbl * 80 + 4 * j) * 2}")
        a("s_waitcnt lgkmcnt(0)")
        for j in range(5):
            f = Fq.sub((nbl * 5 + j) * 4, 4)
            a(f"s_add_u32 s23, s22, {1024 * j}")
            a(f"buffer_store_dwordx4 {f}, v2, s[12:15], s23 offen")
        a(f"s_add_u32 s22, s22, s27")


def gen_relayout(name):
    a = Asm()
    a(f"s_cmp_ge_u32 s2, 182\ns_cbranch_scc1 {name}_end")
    relayout_body(a, name, 2)
    a.label(f"{name}_end")
    a("s_endpgm")
    return (name, a.lines, 48, 48, 256, 182, 40960)
```

```python
import sys
from build import build
from attn16 import gen_attn16
from small import *
from gemm import *

def attn(**kw):
    lines, vgpr, accum, block = gen_attn16("attn_kernel", **kw)
    return ("attn_kernel", lines, vgpr, accum, block, 256, 163840)

def pipeline(mod_wq=False, ln_wq=2, ln_kv=False, wgu=False, osc1=True, **akw):
    return [gen_mod("mod_kernel", mod_wq), gen_ln("ln1_kernel", 1, wq=ln_wq, kv=ln_kv), attn(**akw), gen_oproj("oproj_kernel", sc1=osc1),
            gen_ln("ln2_kernel", 2, wgu=wgu), gen_gateup("gateup_kernel"),
            gen_gemmn("down_kernel", 54, WS_ACT, WS_WDF, KA_WS, WS_X1, KA_OUT, 0, 5)]


def emit(p, base):
    from tl import instrument
    build(p, base + ".s")
    build([instrument(k, i) for i, k in enumerate(p)], base + "_tl.s")


if __name__ == "__main__":
    import shutil
    emit(pipeline(), "full")
    shutil.copy("full.s", "adaLN_cond__gqa_block_cached__glu_gated_reglu__prompt.s")
```

```python
from asmlib import Asm, Alloc, Reg, sr
from stream import *
from layout import *

SLOT = 16384


def timing_head(a, s_tm):
    a(f"s_memtime s[{s_tm}:{s_tm+1}]")
    a(f"s_memrealtime s[{s_tm+2}:{s_tm+3}]")


def timing_tail(a, s_tm, s_wave, v2, v1):
    a(f"""
    s_memtime s[{s_tm+4}:{s_tm+5}]
    s_memrealtime s[{s_tm+6}:{s_tm+7}]
    s_load_dwordx2 s[4:5], s[0:1], {KA_WS}
    s_waitcnt lgkmcnt(0)
    s_sub_u32 s{s_tm}, s{s_tm+4}, s{s_tm}
    s_sub_u32 s{s_tm+2}, s{s_tm+6}, s{s_tm+2}
    s_add_u32 s4, s4, 0x8000
    s_addc_u32 s5, s5, 0
    s_mov_b32 s6, 0x8000
    s_mov_b32 s7, 0x20000
    v_mov_b32 {v2[0]}, s{s_tm}
    v_mov_b32 {v2[1]}, s{s_tm+2}
    s_lshl_b32 s{s_tm+4}, s2, 6
    s_lshl_b32 s{s_tm+5}, s{s_wave}, 3
    s_add_u32 s{s_tm+4}, s{s_tm+4}, s{s_tm+5}
    v_mov_b32 {v1}, s{s_tm+4}
    buffer_store_dwordx2 {v2}, {v1}, s[4:7], 0 offen
    """)


def tr_addr_setup(a, dst4, t):
    a(f"""
    v_lshrrev_b32 {t[0]}, 2, v0
    v_lshlrev_b32 {t[1]}, 7, {t[0]}
    v_and_b32 {t[2]}, 3, v0
    v_lshl_add_u32 {t[1]}, {t[2]}, 3, {t[1]}
    v_bfe_u32 {t[0]}, v0, 3, 2
    v_lshl_add_u32 {dst4[0]}, {t[0]}, 5, {t[1]}
    v_xor_b32 {dst4[1]}, 32, {dst4[0]}
    v_xor_b32 {dst4[2]}, 64, {dst4[0]}
    v_xor_b32 {dst4[3]}, 0x60, {dst4[0]}
    """)


def tr_dma_col(a, dst, t):
    a(f"""
    v_bfe_u32 {t[0]}, v0, 1, 2
    v_lshrrev_b32 {t[1]}, 4, v0
    v_xor_b32 {t[0]}, {t[0]}, {t[1]}
    v_lshlrev_b32 {t[0]}, 5, {t[0]}
    v_and_b32 {t[1]}, 1, v0
    v_lshl_add_u32 {dst}, {t[1]}, 4, {t[0]}
    """)


def gen_attn16(name, NQB=4, la_frags=7, wait_group=4, chain=True, thr_log2=40, timing=False, prio=None, abl=(), cap2=16, wpf=False, sj_wo=True):
    NW = 16 // NQB
    LA = la_frags * NQB
    acc = NQB == 4
    a = Asm()
    va = Alloc(1, 256)
    aa = Alloc(0, 256, acc=True)
    tmp = va.get(7)
    vKa = va.get(2)
    vVa = va.get(4)
    vWlo = va.get(4)
    vWhi = va.get(4)
    vKd, vVd, vWd, vHo = va.get(1), va.get(1), va.get(1), va.get(1)
    EQ = va.get(16, 4)
    E = [EQ[4 * (i // 3) + i % 3] for i in range(12)]
    NE = 12
    ts = [EQ[4 * q + 3] for q in range(NQB)]
    lq = va.get(6, 4)
    lsum = [lq[0], lq[1], lq[2], lq[4]][:NQB]
    ACCQ = va.get(32 * NQB, 4)
    Q = va.get(16 * NQB, 4)
    O = (aa if acc else va).get(32 * NQB, 4)
    NFR = 16
    FR = (aa if acc else va).get(4 * NFR, 4)
    SJ = aa.get(32, 4)
    vSj = va.get(1)
    Sq = lambda par, qb: ACCQ.sub((par * NQB + qb) * 8, 8)
    Sb = lambda par, qb, kb: Sq(par, qb).sub(4 * kb, 4)
    negm = lambda qb: ACCQ.sub(16 * NQB + qb * 4, 4)
    Pb = lambda par, qb: ACCQ.sub(20 * NQB + (par * NQB + qb) * 4, 4)
    qacc = lambda qb, db: ACCQ.sub((qb * 8 + db) * 4, 4)
    Qf = lambda qb, s: Q.sub((qb * 4 + s) * 4, 4)
    Ob = lambda qb, db: O.sub((qb * 8 + db) * 4, 4)
    Hf = lambda stage, ks, qb: O.sub((((stage % 4) * 2 + ks) * NQB + qb) * 4, 4)
    sK, sV, sW, sH, sO = 8, 12, 16, 20, 24
    s_wave, s_wb, s_head, s_qb, s_koff, s_voff, s_koff2, s_voff2, s_cnt, s_thr, s_t0, s_t1, s_tb = range(28, 41)
    s_tm = 44
    s_sjl, s_sjd = 41, 42
    st = Stream(a, FR, NFR, LA, wait_group, cap=8 if NQB == 4 else cap2)

    a(f"""
    s_cmp_ge_u32 s2, 256
    s_cbranch_scc1 {name}_end
    s_load_dwordx4 s[4:7], s[0:1], {KA_K}
    s_load_dwordx2 s[16:17], s[0:1], {KA_WQ}
    s_load_dwordx2 s[20:21], s[0:1], {KA_WS}
    s_load_dwordx2 s[56:57], s[0:1], {KA_WO}
    s_load_dwordx4 s[60:63], s[0:1], {KA_WG}
    s_load_dwordx2 s[64:65], s[0:1], {KA_WD}
    """)
    if timing:
        timing_head(a, s_tm)
    t0, t1, t2, t3, t4, t5, t6 = [tmp[i] for i in range(7)]
    a(f"""
    v_lshrrev_b32 {t0}, 6, v0
    v_and_b32 v0, 63, v0
    v_readfirstlane_b32 s{s_wave}, {t0}
    s_bfe_u32 s{s_head}, s2, 0x20001
    s_lshl_b32 s{s_head}, s{s_head}, 3
    s_bfe_u32 s{s_t0}, s2, 0x30003
    s_add_u32 s{s_head}, s{s_head}, s{s_t0}
    s_and_b32 s{s_qb}, s2, 1
    s_lshl_b32 s{s_qb}, s{s_qb}, 2
    s_lshr_b32 s{s_t0}, s2, 6
    s_add_u32 s{s_qb}, s{s_qb}, s{s_t0}
    s_lshl_b32 s{s_wb}, s{s_wave}, 10
    """)
    tr_dma_col(a, t3, [t1, t2])
    a(f"""
    v_lshrrev_b32 {t0}, 3, v0
    s_lshl_b32 s{s_t0}, s{s_wave}, 3
    v_add_u32 {t0}, s{s_t0}, {t0}
    v_lshl_add_u32 {vVd}, {t0}, 8, {t3}
    v_lshl_add_u32 {vWd}, {t0}, 13, {t3}
    v_lshlrev_b32 {vHo}, 4, v0
    """)
    a(f"""
    s_lshl_b32 s{s_tb}, s{s_qb}, 4
    s_mul_i32 s{s_t1}, s{s_wave}, {NQB}
    s_add_u32 s{s_tb}, s{s_tb}, s{s_t1}
    s_waitcnt lgkmcnt(0)
    s_lshl_b32 s{s_t0}, s{s_head}, 8
    s_add_u32 s{sW}, s{sW}, s{s_t0}
    s_addc_u32 s{sW+1}, s{sW+1}, 0
    s_sub_u32 s{sW+2}, {D * H * DH * 2}, s{s_t0}
    s_mov_b32 s{sW+3}, 0x20000
    s_add_u32 s{sO}, s{sH}, {WS_O}
    s_addc_u32 s{sO+1}, s{sH+1}, 0
    s_lshr_b32 s{s_t0}, s{s_tb}, 2
    s_mul_i32 s{s_t0}, s{s_t0}, {20 * 4096}
    s_and_b32 s{s_t1}, s{s_tb}, 3
    s_lshl_b32 s{s_t1}, s{s_t1}, 10
    s_add_u32 s{s_t0}, s{s_t0}, s{s_t1}
    s_add_u32 s{s_t0}, s{s_t0}, {WS_H}
    s_add_u32 s{sH}, s{sH}, s{s_t0}
    s_addc_u32 s{sH+1}, s{sH+1}, 0
    s_sub_u32 s{sH+2}, {20 * 4096}, s{s_t1}
    s_mov_b32 s{sH+3}, 0x20000
    """)

    def dma_tile(kind, slot, tag, soff_imm=None, rowstride=256):
        srd, vo = {"K": (sK, vKd), "V": (sV, vVd), "W": (sW, vWd)}[kind]
        ops = []
        for rg in range(8 // NW):
            for half in range(2):
                n = rg * NW + half * 8
                pre = []
                if soff_imm is not None:
                    pre.append(f"s_mov_b32 s{s_t0}, {soff_imm + rg * 32 * rowstride}")
                    so = s_t0
                else:
                    so = {("K", 0): s_koff, ("K", 1): s_koff2, ("V", 0): s_voff, ("V", 1): s_voff2}[(kind, rg)]
                pre.insert(0, f"s_add_u32 m0, s{s_wb}, {slot * SLOT + n * 1024 - half * 128}")
                off = " offset:128" if half else ""
                ops.append(VmOp(f"buffer_load_dwordx4 {vo}, {sr(srd, 4)}, s{so} offen{off} lds", tag, pre))
        return ops

    def h_loads(stage):
        ops = []
        for ks in range(2):
            for qb in range(NQB):
                pre = [f"s_mov_b32 s{s_t1}, {(stage * 2 + ks) * 4096}"] if qb == 0 else []
                ops.append(VmOp(f"buffer_load_dwordx4 {Hf(stage, ks, qb)}, {vHo}, {sr(sH, 4)}, s{s_t1} offen offset:{qb * 1024}",
                                ("h", stage), pre))
        return ops

    WSLOT = [0, 1, 4, 2, 5, 3, 6, 7, 8, 9]
    w_tile = lambda s: dma_tile("W", WSLOT[s], ("W", s), s * 64 * 8192, 8192)
    for s in range(2):
        for op in w_tile(s) + h_loads(s):
            st.emit_vm(op)

    if wpf:
        a(f"""
        v_lshrrev_b32 {t1}, 4, v0
        v_lshlrev_b32 {t1}, 13, {t1}
        v_and_b32 {t2}, 15, v0
        v_lshl_add_u32 {t1}, {t2}, 7, {t1}
        s_lshr_b32 s{s_t0}, s2, 3
        s_lshl_b32 s{s_t0}, s{s_t0}, 2
        s_add_u32 s{s_t0}, s{s_t0}, s{s_wave}
        s_add_u32 s{s_t0}, s{s_t0}, 32
        s_lshl_b32 s{s_t0}, s{s_t0}, 15
        s_and_b32 s{s_t1}, s{s_head}, 7
        s_lshl_b32 s{s_t1}, s{s_t1}, 8
        s_sub_u32 s{s_t0}, s{s_t0}, s{s_t1}
        """)
        st.emit_vm(VmOp(f"buffer_load_dword {Q[0]}, {t1}, {sr(sW, 4)}, s{s_t0} offen", "wpf"))
    a(f"""
    s_lshl_b32 s{s_t0}, s{s_head}, 19
    s_add_u32 s{sK}, s4, s{s_t0}
    s_addc_u32 s{sK+1}, s5, 0
    s_mov_b32 s{sK+2}, 0x80000
    s_mov_b32 s{sK+3}, 0x20000
    s_add_u32 s{sV}, s6, s{s_t0}
    s_addc_u32 s{sV+1}, s7, 0
    s_mov_b32 s{sV+2}, 0x80000
    s_mov_b32 s{sV+3}, 0x20000
    s_mov_b32 s{sO+2}, {S * H * DH * 2}
    s_mov_b32 s{sO+3}, 0x20000
    """)
    a(f"""
    v_lshrrev_b32 {t1}, 3, v0
    v_mul_u32_u24 {t1}, {D * 2}, {t1}
    v_add_u32 {vSj}, {t1}, {t3}
    s_lshl_b32 s{s_sjl}, s{s_wave}, 13
    """)
    NSJ = 2 if sj_wo else 1
    for u in range(NSJ):
        sd = 68 + 4 * u
        a(f"""
        s_lshl_b32 s{s_t0}, s2, 2
        s_add_u32 s{s_t0}, s{s_t0}, s{s_wave}
        s_add_u32 s{s_t0}, s{s_t0}, {1024 * u if sj_wo else 1280}
        s_lshl_b32 s{s_sjd + u}, s{s_t0}, 12
        s_mul_i32 s{s_t1}, s{s_t0}, 6554
        s_lshr_b32 s{s_t1}, s{s_t1}, 16
        s_mul_i32 s66, s{s_t1}, 10
        s_sub_u32 s66, s{s_t0}, s66
        s_lshl_b32 s66, s66, 7
        s_cmp_lt_u32 s{s_t0}, 1820
        s_cselect_b32 s{sd + 2}, {32 * D * 2 - 9 * 128}, 0
        s_cmp_lt_u32 s{s_t1}, 128
        s_cselect_b32 s{sd}, s56, s64
        s_cselect_b32 s{sd + 1}, s57, s65
        s_cselect_b32 s67, 0, 128
        s_sub_u32 s{s_t1}, s{s_t1}, s67
        s_min_u32 s{s_t1}, s{s_t1}, 127
        s_mul_i32 s{s_t1}, s{s_t1}, {32 * D * 2}
        s_add_u32 s{s_t1}, s{s_t1}, s66
        s_add_u32 s{sd}, s{sd}, s{s_t1}
        s_addc_u32 s{sd + 1}, s{sd + 1}, 0
        s_mov_b32 s{sd + 3}, 0x20000
        """)
    assert all((u * 6554) >> 16 == u // 10 for u in range(2400))
    a(f"""
    s_add_u32 s76, s{sO}, {WS_WOF - WS_O}
    s_addc_u32 s77, s{sO + 1}, 0
    s_mov_b32 s78, {1820 * 4096}
    s_mov_b32 s79, 0x20000
    """)
    a(f"""
    v_lshrrev_b32 {t1}, 4, v0
    s_and_b32 s{s_t0}, s{s_wave}, 1
    s_mul_i32 s{s_t0}, s{s_t0}, 6
    v_and_b32 {t2}, 1, {t1}
    v_lshrrev_b32 {t1}, 1, {t1}
    v_lshl_add_u32 {t2}, {t1}, 2, {t2}
    v_xor_b32 {t2}, s{s_t0}, {t2}
    v_and_b32 {t1}, 7, v0
    v_xor_b32 {t2}, {t2}, {t1}
    v_lshlrev_b32 {t2}, 4, {t2}
    v_lshl_add_u32 {vKd}, {t0}, 8, {t2}
    """)
    a(f"""
    v_bfe_u32 {t0}, v0, 1, 1
    v_bfe_u32 {t1}, v0, 2, 1
    v_bfe_u32 {t2}, v0, 3, 1
    v_xor_b32 {t1}, {t1}, {t2}
    v_lshl_add_u32 {t0}, {t2}, 1, {t0}
    v_lshl_add_u32 {t0}, {t1}, 2, {t0}
    v_bfe_u32 {t1}, v0, 4, 1
    v_bfe_u32 {t2}, v0, 5, 1
    v_lshl_add_u32 {t1}, {t1}, 1, {t2}
    v_xor_b32 {t0}, {t0}, {t1}
    v_and_b32 {t1}, 15, v0
    v_lshlrev_b32 {t1}, 7, {t1}
    v_lshl_add_u32 {vKa[0]}, {t0}, 4, {t1}
    v_xor_b32 {vKa[1]}, 64, {vKa[0]}
    """)
    tr_addr_setup(a, vWlo, [t0, t1, t2])
    for i in range(4):
        a(f"v_add_u32 {vVa[i]}, 0x10000, {vWlo[i]}")
        a(f"v_add_u32 {vWhi[i]}, 0x20000, {vWlo[i]}")
    a(f"v_mov_b32 {t6}, {f32hex(2.0 ** thr_log2)}")
    if timing == "series":
        a(f"""
        s_load_dwordx2 s[52:53], s[0:1], {KA_WS}
        s_waitcnt lgkmcnt(0)
        s_add_u32 s52, s52, 0x8000000
        s_addc_u32 s53, s53, 0
        s_mov_b32 s54, 0x8000
        s_mov_b32 s55, 0x20000
        """)
    if prio == "young":
        a(f"""
        s_cmp_ge_u32 s{s_wave}, {NW // 2}
        s_cbranch_scc0 {name}_noprio
        s_setprio 1
        {name}_noprio:
        """)

    def tr_frag(slot, u, db, guard=None):
        base = slot * SLOT
        ar, rel = (vWlo, base) if base < 0x10000 else (vVa, base - 0x10000) if base < 0x20000 else (vWhi, base - 0x20000)
        reads = []
        for e4 in range(2):
            off = rel + (db // 4) * 8192 + (32 * u + 16 * e4) * 128
            reads.append(("ds_read_b64_tr_b16", 2 * e4, 2, ar[db % 4], off))
        return Frag(reads, guard)

    def k_frag(slot, u, kb, s, guard=None):
        off = slot * SLOT + (s // 2) * 8192 + (32 * u + 16 * kb) * 128
        return Frag([("ds_read_b128", 0, 4, vKa[s % 2], off)], guard)

    rare_blocks = {}

    def sm_compute(par):
        n = 8 * NQB
        ex = lambda i: f"v_exp_f32 {E[i % NE]}, {Sq(par, i // 8)[i % 8]}"
        ops = [ex(0), ex(1)]
        for p in range(n // 2):
            qb, first = (2 * p) // 8, (2 * p) % 8 == 0
            e0, e1 = E[(2 * p) % NE], E[(2 * p + 1) % NE]
            if p + 1 < n // 2:
                ops.append(ex(2 * p + 2))
            ops.append(f"v_add_f32 {ts[qb]}, {e0}, {e1}" if first else f"v_add_f32 {ts[qb]}, {ts[qb]}, {e0}")
            if p + 1 < n // 2:
                ops.append(ex(2 * p + 3))
            if not first:
                ops.append(f"v_add_f32 {ts[qb]}, {ts[qb]}, {e1}")
            ops.append(f"v_cvt_pk_bf16_f32 {Pb(par, qb)[p % 4]}, {e0}, {e1}")
        return ops

    def xlane(op, dst, tmp2):
        return [f"v_mov_b32 {tmp2}, {dst}", f"v_permlane16_swap_b32 {dst}, {tmp2}", f"{op} {dst}, {dst}, {tmp2}",
                f"v_mov_b32 {tmp2}, {dst}", f"v_permlane32_swap_b32 {dst}, {tmp2}", f"{op} {dst}, {dst}, {tmp2}"]

    def rowmax(dst, tmp2, src):
        out = [f"v_max3_f32 {dst}, {src[0]}, {src[1]}, {src[2]}",
               f"v_max3_f32 {dst}, {dst}, {src[3]}, {src[4]}",
               f"v_max3_f32 {dst}, {dst}, {src[5]}, {src[6]}",
               f"v_max_f32 {dst}, {dst}, {src[7]}"]
        return out + xlane("v_max_f32", dst, tmp2)

    def sm_ops(par, tag):
        comp = sm_compute(par)
        lab, ret = f"{name}_rare{tag}", f"{name}_ret{tag}"
        cvts = [o for o in comp if o.startswith("v_cvt")][-3:]
        comp = [o for o in comp if o not in cvts]
        if NQB == 4:
            comp.insert(len(comp) - 6, f"v_max3_f32 {t0}, {ts[0]}, {ts[1]}, {ts[2]}")
            comp.append(f"v_max_f32 {t0}, {t0}, {ts[3]}")
        else:
            comp.append(f"v_max_f32 {t0}, {ts[0]}, {ts[1]}")
        comp.append(f"v_cmp_nle_f32 vcc, {t0}, {t6}")
        ops = (cvts, [f"s_cbranch_vccnz {lab}", f"{ret}:"])
        post = [f"v_add_f32 {lsum[qb]}, {lsum[qb]}, {ts[qb]}" for qb in range(NQB)]
        r = [f"{lab}:", "s_nop 15"]
        for qb in range(NQB):
            r += rowmax(t0, t1, Sq(par, qb))
            r += [f"v_max_f32 {t0}, 0, {t0}", f"v_exp_f32 {t1}, -{t0}", "s_nop 0",
                  f"v_mul_f32 {lsum[qb]}, {lsum[qb]}, {t1}"]
            for i in range(32):
                o = O[qb * 32 + i]
                if acc:
                    tt = tmp[2 + i % 4]
                    r += [f"v_accvgpr_read_b32 {tt}, {o}", f"v_mul_f32 {tt}, {tt}, {t1}",
                          f"v_accvgpr_write_b32 {o}, {tt}"]
                else:
                    r.append(f"v_mul_f32 {o}, {o}, {t1}")
            for blk in (negm(qb), Sq(par, qb), Sq(par ^ 1, qb)):
                for i in range(blk.n):
                    r.append(f"v_sub_f32 {blk[i]}, {blk[i]}, {t0}")
        r += sm_compute(par) + ["s_nop 1", f"s_branch {ret}"]
        rare_blocks.setdefault(tag, r)
        return comp, ops, post

    def build(nbodies, last_special):
        items, groups, vms, scal = [], [], [], []
        nst = 16 * NQB
        kvtile = lambda kind, tile: dma_tile(kind, {"K": tile, "V": 4 + tile}[kind], (kind, tile), tile * SLOT)
        zero1 = lambda r: f"v_accvgpr_write_b32 {r}, 0" if acc else f"v_mov_b32 {r}, 0"

        def conv(s):
            out = []
            for qb in range(NQB):
                for hf in range(2):
                    src = qacc(qb, 2 * s + hf)
                    for j in range(2):
                        out.append(f"v_cvt_pk_bf16_f32 {Qf(qb, s)[2 * hf + j]}, {src[2 * j]}, {src[2 * j + 1]}")
            for qb in range(NQB):
                for j in range(2):
                    out.append(f"v_permlane16_swap_b32 {Qf(qb, s)[j]}, {Qf(qb, s)[2 + j]}")
            return out

        for s in range(10):
            first = len(items)
            for db in range(8):
                frs = []
                for ks in range(2):
                    g = st.guard_wait([("W", s), ("h", s)]) if (ks == 0 and db == 0) else None
                    frs.append(tr_frag(WSLOT[s], ks, db, g))
                    frs[-1].nat = len(items) + ks * NQB
                order = [(qb, ks) for qb in range(NQB) for ks in range(2)] if chain else \
                        [(qb, ks) for ks in range(2) for qb in range(NQB)]
                for qb, ks in order:
                    c = "0" if (s == 0 and ks == 0) else str(qacc(qb, db))
                    items.append(Item(f"{MFMA16} {qacc(qb, db)}, {{A}}, {Hf(s, ks, qb)}, {c}", frs[ks]))
            ops = []
            if s == 0:
                ops += w_tile(2) + h_loads(2)
            if s + 3 < 10:
                ops += w_tile(s + 3) + h_loads(s + 3)
            else:
                ops += kvtile(*[("K", 0), ("K", 1), ("V", 0)][s - 7])
            vms.append((first + 1, first + nst - 1, ops))
            if s >= 7:
                base = ((s - 1) % 4) * 8 * NQB
                g1 = first + (nst - 1 if s < 9 else nst // 4 + 4)
                groups.append((first + 2, g1, [zero1(O[base + i]) for i in range(8 * NQB)]))
            if s == 9:
                q4 = nst // 4
                for cs_ in range(3):
                    groups.append((first + (cs_ + 1) * q4 + 5, min(first + (cs_ + 2) * q4 + 4, first + nst - 1), conv(cs_)))
        items[-1].block += conv(3) + [
            f"s_mov_b32 s{s_koff}, {4 * SLOT}", f"s_mov_b32 s{s_voff}, {2 * SLOT}",
            f"s_mov_b32 s{s_koff2}, {4 * SLOT + 8192}", f"s_mov_b32 s{s_voff2}, {2 * SLOT + 8192}",
            f"s_mov_b32 s{s_cnt}, 8"]

        def qk(unit, kslot, guard=None, first=False, phantom=False):
            par = unit % 2
            for kb in range(2):
                frs = []
                for s in range(4):
                    frs.append(k_frag(kslot, unit % 2, kb, s, guard if (s == 0 and kb == 0) else None))
                    frs[-1].nat = len(items) + s * NQB
                order = [(qb, s) for qb in range(NQB) for s in range(4)] if chain else \
                        [(qb, s) for s in range(4) for qb in range(NQB)]
                for qb, s in order:
                    c = ("0" if first else str(negm(qb))) if s == 0 else str(Sb(par, qb, kb))
                    items.append(Item(f"{MFMA16} {Sb(par, qb, kb)}, {{A}}, {Qf(qb, s)}, {c}", frs[s], phantom))

        def pv(unit, vslot):
            par = unit % 2
            for db in range(8):
                fr = tr_frag(vslot, unit % 2, db)
                for qb in range(NQB):
                    items.append(Item(f"{MFMA16} {Ob(qb, db)}, {{A}}, {Pb(par, qb)}, {Ob(qb, db)}", fr))

        def add_sm(g0, par, tag, post):
            comp, (cvts, br), post2 = sm_ops(par, tag)
            g1 = len(items) - 1
            groups.append((g0, g1 - 2, post + comp))
            items[g1 - 1].valu += cvts[:2]
            items[g1].sc += br
            items[g1].valu += cvts[2:]
            return post2

        g0 = len(items)
        qk(0, 0, st.guard_wait([("K", 0)]), first=True)
        base = (9 % 4) * 8 * NQB
        groups.append((g0, len(items) - 1, [zero1(O[base + i]) for i in range(8 * NQB)] +
                       [f"v_mov_b32 {lsum[qb]}, 0" for qb in range(NQB)]))
        vms.append((g0 + 1, len(items) - 1, kvtile("K", 2) + kvtile("V", 1)))
        g0 = len(items)
        qk(1, 0, first=True)
        vms.append((g0 + 1, g0 + 4 * NQB, kvtile("K", 3)))
        rm = [rowmax(tmp[qb], E[qb], Sq(0, qb)) for qb in range(NQB)]
        init = [rm[qb][i] for i in range(len(rm[0])) for qb in range(NQB)]
        for qb in range(NQB):
            init += [f"v_sub_f32 {Sq(0, qb)[i]}, {Sq(0, qb)[i]}, {tmp[qb]}" for i in range(8)]
        for qb in range(NQB):
            init += [f"v_sub_f32 {negm(qb)[i]}, 0, {tmp[qb]}" for i in range(4)]
        groups.append((g0 + 5, len(items) - 1, init))
        sj = []
        for u in range(NSJ):
            for i in range(4):
                sj.append(VmOp(f"buffer_load_dwordx4 {vSj}, s[{68 + 4 * u}:{71 + 4 * u}], s{s_t0} offen lds", "sj",
                               [f"s_add_u32 m0, s{s_sjl}, {8 * SLOT + u * 4096 + i * 1024}",
                                f"s_mov_b32 s{s_t0}, {i * 8 * D * 2}"]))
        vms.append((g0 + 4 * NQB + 2, len(items) - 1, sj))
        blk = [f"v_add_u32 {vWhi[i]}, s{s_sjl}, {vWhi[i]}" for i in range(4)] + sm_compute(0)
        for qb in range(NQB):
            blk += [f"v_sub_f32 {Sq(1, qb)[i]}, {Sq(1, qb)[i]}, {tmp[qb]}" for i in range(8)]
        items[-1].block += blk
        post = [f"v_add_f32 {lsum[qb]}, {lsum[qb]}, {ts[qb]}" for qb in range(NQB)]
        marks = []
        nper = 32 * NQB
        for T in range(nbodies):
            last = last_special and T == nbodies - 1
            marks.append(len(items))
            b0 = len(items)
            if T == 0:
                guard = st.guard_wait([("K", 1), ("V", 0)])
            else:
                guard = lambda: f"s_waitcnt vmcnt({2 * 16 // NW})"
            ks_, vs_ = (T + 1) % 4, 4 + T % 4
            tag = ("t" if last else "b") + str(T % 4)
            g0 = len(items)
            qk(2 * T + 2, ks_, guard, phantom=last)
            pv(2 * T, vs_)
            post = add_sm(g0, 1, tag + "a", post)
            g0 = len(items)
            qk(2 * T + 3, ks_, phantom=last)
            last_k_use = len(items) - 1
            pv(2 * T + 1, vs_)
            if last:
                groups.append((g0, len(items) - 1, post))
                junk = Q.sub(Q.n - 4, 4)
                pf = []
                for i in range(5):
                    pf.append(VmOp(f"buffer_load_dwordx4 {junk}, {vHo}, {sr(sW, 4)}, s{s_t0} offen", "pf",
                                   [f"s_add_u32 s{s_t0}, s{s_voff}, {i * 1024}"]))
                p0 = b0 + 8 * NQB
                if sj_wo:
                    vms.append((p0 + 1, p0 + 8 * NQB - 4, pf))
                else:
                    pfo = [VmOp(f"buffer_load_dwordx4 {junk}, {vHo}, {sr(sK, 4)}, s{s_t0} offen", "pf",
                                [f"s_add_u32 s{s_t0}, s{s_koff}, {i * 1024}"]) for i in range(10)]
                    vms.append((p0 + 1, p0 + 8 * NQB - 4, pfo))
                    vms.append((p0 + 16 * NQB + 1, p0 + 24 * NQB - 2, pf))
            else:
                post = add_sm(g0, 0, tag + "b", post)
                assert last_k_use < b0 + nper - LA - 2
                dm = dma_tile("K", T % 4, ("x", T)) + dma_tile("V", 4 + (T + 2) % 4, ("x", T))
                upd = [f"s_add_u32 s{s_koff}, s{s_koff}, {SLOT}", f"s_add_u32 s{s_voff}, s{s_voff}, {SLOT}"]
                if NW == 4:
                    upd += [f"s_add_u32 s{s_koff2}, s{s_koff2}, {SLOT}", f"s_add_u32 s{s_voff2}, s{s_voff2}, {SLOT}"]
                vms.append((b0 + 2, b0 + nper - LA - 3, dm))
                scal += [(u, b0 + nper - LA + 1, b0 + nper - 2) for u in upd]
        marks.append(len(items))
        for g in (0, 3 * nst, 7 * nst, 10 * nst - 2, marks[0] - 1):
            items[g].block.append("; STAMP")
        st.layout(items, marks[-2] if last_special else None)
        gb = marks[0] - LA
        assert "s_barrier" in items[gb].sc
        items[gb].sc.insert(items[gb].sc.index("s_barrier"), "s_waitcnt lgkmcnt(0)")
        for g0, g1, ops in vms:
            st.place_vm(items, g0, g1, ops)
        for l, lo, hi in scal:
            st.place_scalar(items, l, lo, hi)
        return items, groups, marks

    head_lines = list(a.lines)
    vm0 = list(st.vm.ops)
    items, groups, marks = build(9, False)
    segs = st.emit(items, groups, marks)
    print("estimated cycles: prologue", sum(st.est[:marks[0]]), "body", sum(st.est[marks[1]:marks[2]]))
    L = a.lines
    pre = L[:segs[0]]
    body = [L[segs[i]:segs[i + 1]] for i in range(8)]
    for i in range(4):
        assert body[i] == body[i + 4], f"loop body {i} is not periodic"
    a.lines = list(head_lines)
    st.vm.ops = list(vm0)
    items, groups, marks = build(4, True)
    segs2 = st.emit(items, groups, marks)
    L2 = a.lines
    assert L2[:segs2[3]] == L[:segs[3]]
    tail = L2[segs2[3]:segs2[4]]

    def stamp():
        if timing != "series":
            return
        a(f"""
        s_memtime s[{s_tm+4}:{s_tm+5}]
        s_memrealtime s[{s_tm+6}:{s_tm+7}]
        s_waitcnt lgkmcnt(0)
        s_sub_u32 s{s_tm+4}, s{s_tm+4}, s{s_tm}
        s_sub_u32 s{s_tm+6}, s{s_tm+6}, s{s_tm+2}
        v_mov_b32 {t2}, s{s_tm+4}
        v_mov_b32 {t3}, s{s_tm+6}
        s_lshl_b32 s{s_t0}, s2, 7
        s_lshl_b32 s{s_t1}, s{s_cnt}, 3
        s_add_u32 s{s_t0}, s{s_t0}, s{s_t1}
        v_mov_b32 {t4}, s{s_t0}
        buffer_store_dword {t2}, {t4}, s[52:55], 0 offen
        buffer_store_dword {t3}, {t4}, s[52:55], 0 offen offset:4
        """)

    def drop(pref):
        return [[l for l in b if not l.strip().startswith(pref)] for b in body]
    if "nosm" in abl:
        body = drop(("v_exp", "v_add_f32", "v_cvt_pk", "v_max", "v_cmp", "s_cbranch_vcc"))
    if "nods" in abl:
        body = drop(("ds_read", "s_waitcnt lgkm"))
    if "nodma" in abl:
        body = drop(("buffer_load", "s_add_u32 m0"))
    if "nobar" in abl:
        body = drop(("s_barrier",))
    if "nobr" in abl:
        body = drop(("s_cbranch_vcc",))
    if "nowait" in abl:
        body = drop(("s_waitcnt lgkm",))
    if "nomfma" in abl:
        body = drop(("v_mfma", "s_cbranch_vcc"))

    a.lines = list(pre)
    a.label(f"{name}_loop")
    stamp()
    a(f"""
    s_cmp_eq_u32 s{s_cnt}, 7
    s_cbranch_scc1 {name}_sidejob
    {name}_sideret:
    """)
    a.extend(body[0] + body[1] + body[2])
    a(f"""
    s_sub_u32 s{s_cnt}, s{s_cnt}, 1
    s_cmp_eq_u32 s{s_cnt}, 0
    s_cbranch_scc1 {name}_tail
    """)
    a.extend(body[3])
    a(f"s_branch {name}_loop")
    a.label(f"{name}_tail")
    stamp()
    a(f"""
    s_mov_b32 s{sK}, s56
    s_mov_b32 s{sK+1}, s57
    s_mov_b32 s{sK+2}, {H * DH * D * 2}
    s_lshr_b32 s{s_koff}, s{s_head}, 3
    s_lshl_b32 s{s_koff}, s{s_koff}, 5
    s_lshr_b32 s{s_t0}, s2, 3
    s_add_u32 s{s_koff}, s{s_koff}, s{s_t0}
    s_lshl_b32 s{s_koff}, s{s_koff}, 2
    s_add_u32 s{s_koff}, s{s_koff}, s{s_wave}
    s_mul_i32 s{s_koff}, s{s_koff}, 10240
    s_and_b32 s{s_t0}, s2, 1
    s_cmp_eq_u32 s{s_t0}, 0
    s_cselect_b32 s{sW}, s60, s62
    s_cselect_b32 s{sW+1}, s61, s63
    s_mov_b32 s{sW+2}, {D * F * 2}
    s_lshr_b32 s{s_voff}, s2, 1
    s_lshl_b32 s{s_voff}, s{s_voff}, 2
    s_add_u32 s{s_voff}, s{s_voff}, s{s_wave}
    s_mul_i32 s{s_voff}, s{s_voff}, 5120
    s_lshr_b32 s{s_t0}, s2, 3
    s_lshl_b32 s{s_t0}, s{s_t0}, 12
    s_add_u32 s{s_t0}, s{s_t0}, s{s_wb}
    v_add_u32 {t3}, s{s_t0}, {vHo}
    v_min_u32 {t3}, {"64" if timing else "down_kernel_end-oproj_kernel-16"}, {t3}
    """)
    from small import code_prefetch_addr
    if not timing:
        code_prefetch_addr(a, "oproj_kernel", 58, tmp.sub(1, 2), t3)
        a(f"global_load_dwordx4 {Q.sub(Q.n - 4, 4)}, {tmp.sub(1, 2)}, off")
    a.extend(tail)
    a.lines.append("; STAMP")
    a(f"""
    s_lshr_b32 s{s_t1}, s{s_tb}, 2
    s_lshl_b32 s{s_t1}, s{s_t1}, 19
    s_and_b32 s{s_t0}, s{s_tb}, 3
    s_lshl_b32 s{s_t0}, s{s_t0}, 10
    s_add_u32 s{s_t1}, s{s_t1}, s{s_t0}
    s_lshl_b32 s{s_t0}, s{s_head}, 14
    s_add_u32 s{s_t1}, s{s_t1}, s{s_t0}
    """)
    for qb in range(NQB):
        for l in xlane("v_add_f32", lsum[qb], tmp[qb]):
            a(l)
    for qb in range(NQB):
        a(f"v_rcp_f32 {lsum[qb]}, {lsum[qb]}")
    k = 0
    for i in range(4):
        a(f"s_add_u32 s{s_t0}, s{s_t1}, {i * 4096}")
        for qb in range(NQB):
            dst = Q.sub(4 * (k % 8), 4)
            k += 1
            for j in range(4):
                src = Ob(qb, 2 * i + j // 2)
                x0, x1 = src[2 * (j % 2)], src[2 * (j % 2) + 1]
                e0, e1 = E[(2 * j) % NE], E[(2 * j + 1) % NE]
                if acc:
                    a(f"v_accvgpr_read_b32 {e0}, {x0}")
                    a(f"v_accvgpr_read_b32 {e1}, {x1}")
                    x0, x1 = e0, e1
                a(f"v_mul_f32 {e0}, {x0}, {lsum[qb]}")
                a(f"v_mul_f32 {e1}, {x1}, {lsum[qb]}")
                a(f"v_cvt_pk_bf16_f32 {dst[j]}, {e0}, {e1}")
            a(f"buffer_store_dwordx4 {dst}, {vHo}, {sr(sO, 4)}, s{s_t0} offen offset:{qb * 1024}")
    if timing:
        timing_tail(a, s_tm, s_wave, EQ.sub(0, 2), t2)
    a.label(f"{name}_end")
    a("s_endpgm")
    a.label(f"{name}_sidejob")
    a("s_waitcnt lgkmcnt(4)")
    for u in range(NSJ):
        for j in range(4):
            for e4 in range(2):
                a(f"ds_read_b64_tr_b16 {SJ.sub(16 * u + 4 * j + 2 * e4, 2)}, {vWhi[j]} offset:{u * 4096 + e4 * 2048}")
        a("s_waitcnt lgkmcnt(0)")
        for j in range(4):
            a(f"buffer_store_dwordx4 {SJ.sub(16 * u + 4 * j, 4)}, {vHo}, s[76:79], s{s_sjd + u} offen offset:{j * 1024}")
    a(f"s_branch {name}_sideret")
    a.label(f"{name}_hotend")
    for tag, r in rare_blocks.items():
        for l in r:
            a(l)
    if acc:
        return a.lines, 256 + aa.p, 256, 64 * NW
    return a.lines, va.p, (va.p + 3) // 4 * 4, 64 * NW
```

```python
import sys
from build import build
from attn16 import gen_attn16
from small import *
from gemm import *

def attn(**kw):
    lines, vgpr, accum, block = gen_attn16("attn_kernel", **kw)
    return ("attn_kernel", lines, vgpr, accum, block, 256, 163840)

def pipeline(mod_wq=False, ln_wq=0, ln_kv=False, wgu=False, osc1=True, rawo=False, **akw):
    return [gen_ln("pre_kernel", 1, wq=ln_wq, kv=ln_kv), attn(sj_wo=not rawo, **akw),
            gen_oproj("oproj_kernel", sc1=osc1) if rawo else gen_gemm_lds("oproj_kernel", "oproj", sc1=osc1),
            gen_ln("ln2_kernel", 2, wgu=wgu), gen_gateup("gateup_kernel"),
            gen_gemm_lds("down_kernel", "down")]


def emit(p, base):
    from tl import instrument
    build(p, base + ".s")
    build([instrument(k, i) for i, k in enumerate(p)], base + "_tl.s")


if __name__ == "__main__":
    import shutil
    emit(pipeline(), "full")
    shutil.copy("full.s", "adaLN_cond__gqa_block_cached__glu_gated_reglu__prompt.s")
```

```python
from asmlib import Asm, Alloc, Reg, sr, VmTracker
from stream import *
from layout import *
from small import srd, relayout_body
from attn16 import timing_head, timing_tail, tr_addr_setup, tr_dma_col


def gen_gemmn(name, NKS, x_off, w_off, res_ka, res_off, out_ka, out_off, gate_idx, PD=6, timing=False):
    a = Asm()
    steps = (NKS + 3) // 4
    va = Alloc(1, 256)
    t = va.get(7)
    vX = va.get(4)
    vW = va.get(2)
    vR = va.get(1)
    vG = va.get(1)
    vL = va.get(4)
    RES = va.get(10, 2)
    ring = va.get(36 * PD, 4)
    aa = Alloc(0, 256, acc=True)
    ACC = aa.get(80, 4)
    G = aa.get(20, 4)
    acc = lambda tl, j: ACC.sub((tl * 5 + j) * 4, 4)
    Xf = lambda i, tl: ring.sub((i % PD) * 36 + tl * 4, 4)
    Wf = lambda i, j: ring.sub((i % PD) * 36 + 16 + j * 4, 4)
    sX, sW, sR, sG, sO = 8, 12, 16, 20, 24
    s_wave, s_tb, s_nb, s_t0, s_t1, s_xo, s_wo = range(28, 35)
    a(f"""
    s_cmp_ge_u32 s2, 256
    s_cbranch_scc1 {name}_end
    s_load_dwordx2 s[4:5], s[0:1], {KA_WS}
    s_load_dwordx2 s[6:7], s[0:1], {res_ka}
    s_load_dwordx2 s[36:37], s[0:1], {out_ka}
    """)
    if timing:
        timing_head(a, 44)
    a(f"""
    v_lshrrev_b32 {t[0]}, 6, v0
    v_and_b32 v0, 63, v0
    v_readfirstlane_b32 s{s_wave}, {t[0]}
    s_and_b32 s{s_tb}, s2, 1
    s_lshl_b32 s{s_tb}, s{s_tb}, 4
    s_bfe_u32 s{s_t0}, s2, 0x10001
    s_lshl_b32 s{s_t0}, s{s_t0}, 3
    s_add_u32 s{s_tb}, s{s_tb}, s{s_t0}
    s_bfe_u32 s{s_t0}, s2, 0x30003
    s_add_u32 s{s_tb}, s{s_tb}, s{s_t0}
    s_bfe_u32 s{s_nb}, s2, 0x10002
    s_lshl_b32 s{s_nb}, s{s_nb}, 2
    s_lshr_b32 s{s_t0}, s2, 6
    s_add_u32 s{s_nb}, s{s_nb}, s{s_t0}
    v_lshlrev_b32 {vW[0]}, 4, v0
    v_add_u32 {vW[1]}, 4096, {vW[0]}
    """)
    for tl in range(4):
        a(f"""
        v_add_u32 {t[1]}, {tl}, {t[0]}
        v_and_b32 {t[1]}, 3, {t[1]}
        v_lshl_add_u32 {vX[tl]}, {t[1]}, 10, {vW[0]}
        v_mul_u32_u24 {t[1]}, {15 * 1024}, {t[1]}
        v_add_u32 {vL[tl]}, {t[1]}, {vW[0]}
        """)
    a(f"""
    s_mul_i32 s{s_t0}, s{s_tb}, {NKS * 4096}
    s_mul_i32 s{s_t1}, s{s_nb}, {NKS * 5120}
    s_lshl_b32 s{s_xo}, s{s_wave}, 12
    s_mul_i32 s{s_wo}, s{s_wave}, 5120
    s_waitcnt lgkmcnt(0)
    """)
    srd(a, sX, 4, off_lines_reg=s_t0, off_imm=x_off, size=NKS * 4096)
    srd(a, sW, 4, off_lines_reg=s_t1, off_imm=w_off, size=NKS * 5120)
    vm = VmTracker()

    def loads(i):
        out = []
        for j in range(5):
            out.append(f"buffer_load_dwordx4 {Wf(i, j)}, {vW[j // 4]}, {sr(sW, 4)}, s{s_wo} offen offset:{(j % 4) * 1024}")
        for tl in range(4):
            out.append(f"buffer_load_dwordx4 {Xf(i, tl)}, {vX[tl]}, {sr(sX, 4)}, s{s_xo} offen")
        return out
    adv = [f"s_add_u32 s{s_xo}, s{s_xo}, {4 * 4096}", f"s_add_u32 s{s_wo}, s{s_wo}, {4 * 5120}"]
    for i in range(min(PD - 1, steps)):
        for l in loads(i):
            a(l)
            vm.issue(i)
        for l in adv:
            a(l)
        if i == 0:
            a(f"""
            v_and_b32 {t[1]}, 15, v0
            v_lshl_add_u32 {t[1]}, {t[0]}, 4, {t[1]}
            v_mul_u32_u24 {t[1]}, {D * 2}, {t[1]}
            v_lshrrev_b32 {t[2]}, 4, v0
            v_mul_u32_u24 {t[2]}, 40, {t[2]}
            v_add_u32 {vR}, {t[1]}, {t[2]}
            v_lshlrev_b32 {vG}, 1, {t[2]}
            s_mul_i32 s{s_t0}, s{s_tb}, {64 * D * 2}
            s_mul_i32 s{s_t1}, s{s_nb}, 160
            s_add_u32 s{s_t0}, s{s_t0}, s{s_t1}
            s_sub_u32 s38, {64 * D * 2}, s{s_t1}
            """)
            srd(a, sR, 6, off_lines_reg=s_t0, off_imm=res_off, size_reg=38)
            srd(a, sO, 36, off_lines_reg=s_t0, off_imm=out_off, size_reg=38)
            a(f"s_mul_i32 s{s_t1}, s{s_nb}, 320")
            srd(a, sG, 4, off_lines_reg=s_t1, off_imm=WS_MOD + gate_idx * D * 4, size=320)
    for i in range(steps):
        n = vm.count_after(lambda tg: tg == i)
        if i == 0:
            a.lines.append("; STAMP issued")
        a(f"s_waitcnt vmcnt({n})")
        if i == 0 or i == steps // 2:
            a.lines.append("; STAMP data")
        pend = []
        if i + PD - 1 < steps:
            pend = [(l, i + PD - 1) for l in loads(i + PD - 1)]
        elif i + PD - 1 == steps:
            pend = [(f"buffer_load_dwordx2 {RES.sub(2 * j, 2)}, {vR}, {sr(sR, 4)}, 0 offen offset:{8 * j}", "e") for j in range(5)]
            pend += [(f"buffer_load_dwordx4 {G.sub(4 * j, 4)}, {vG}, {sr(sG, 4)}, 0 offen offset:{16 * j}", "e") for j in range(5)]
        k = 0
        for j in range(5):
            for tl in range(4):
                c = "0" if i == 0 else str(acc(tl, j))
                a(f"{MFMA16} {acc(tl, j)}, {Wf(i, j)}, {Xf(i, tl)}, {c}")
                if k % 2 == 0 and pend:
                    l, tg = pend.pop(0)
                    a(l)
                    vm.issue(tg)
                k += 1
        assert not pend
        if i + PD - 1 < steps:
            for l in adv:
                a(l)
    for tl in range(1, 4):
        for j in range(5):
            a(f"ds_write_b128 {vL[tl]}, {acc(tl, j)} offset:{((tl - 1) * 5 + j) * 1024}")
    V = ring.sub(0, 20)
    Pt = ring.sub(20, 60)
    for i in range(20):
        a(f"v_accvgpr_read_b32 {V[i]}, {ACC[i]}")
    a("s_waitcnt lgkmcnt(0)")
    a("s_barrier")
    for s in range(3):
        for j in range(5):
            a(f"ds_read_b128 {Pt.sub((s * 5 + j) * 4, 4)}, {vL[0]} offset:{(s * 5 + j) * 1024}")
    Gv = ring.sub(80, 20)
    a("s_waitcnt vmcnt(0)")
    for i in range(20):
        a(f"v_accvgpr_read_b32 {Gv[i]}, {G[i]}")
    for s in range(3):
        a(f"s_waitcnt lgkmcnt({10 - 5 * s})")
        for i in range(20):
            a(f"v_add_f32 {V[i]}, {V[i]}, {Pt[s * 20 + i]}")
    for j in range(5):
        for p in range(2):
            r = RES[2 * j + p]
            i0 = 4 * j + 2 * p
            a(f"v_lshlrev_b32 {t[1]}, 16, {r}")
            a(f"v_and_b32 {t[2]}, 0xffff0000, {r}")
            a(f"v_fmac_f32 {t[1]}, {V[i0]}, {Gv[i0]}")
            a(f"v_fmac_f32 {t[2]}, {V[i0 + 1]}, {Gv[i0 + 1]}")
            a(f"v_cvt_pk_bf16_f32 {r}, {t[1]}, {t[2]}")
        a(f"buffer_store_dwordx2 {RES.sub(2 * j, 2)}, {vR}, {sr(sO, 4)}, 0 offen offset:{8 * j}")
    if timing:
        timing_tail(a, 44, s_wave, ring.sub(0, 2), t[3])
    a.label(f"{name}_end")
    a("s_endpgm")
    return (name, a.lines, 256 + aa.p, 256, 256, 256, 61440)


def gen_gateup(name, la_frags=5, timing=False):
    NQB, NW, SLOT = 4, 4, 16384
    a = Asm()
    va = Alloc(1, 256)
    aa = Alloc(0, 256, acc=True)
    t = va.get(7)
    vA = [va.get(4) for _ in range(3)]
    vWd, vHo = va.get(1), va.get(1)
    ACC = va.get(128, 4)
    OUT = va.get(32, 4)
    Hr = aa.get(128, 4)
    FR = aa.get(32, 4)
    acc = lambda qb, db: ACC.sub((qb * 8 + db) * 4, 4)
    Hf = lambda stage, ks, qb: Hr.sub((((stage % 4) * 2 + ks) * NQB + qb) * 4, 4)
    sG, sU, sH, sO = 8, 12, 16, 20
    s_wave, s_wb, s_fb, s_tb, s_t0, s_t1 = range(28, 34)
    st = Stream(a, FR, 8, la_frags * NQB, 2)
    RS = F * 2
    a(f"""
    s_cmp_ge_u32 s2, 256
    s_cbranch_scc1 {name}_end
    s_load_dwordx4 s[4:7], s[0:1], {KA_WG}
    s_load_dwordx2 s[24:25], s[0:1], {KA_WS}
    """)
    if timing:
        timing_head(a, 44)
    a(f"""
    v_lshrrev_b32 {t[0]}, 6, v0
    v_and_b32 v0, 63, v0
    v_readfirstlane_b32 s{s_wave}, {t[0]}
    s_and_b32 s{s_tb}, s2, 1
    s_lshl_b32 s{s_tb}, s{s_tb}, 2
    s_bfe_u32 s{s_t0}, s2, 0x20003
    s_add_u32 s{s_tb}, s{s_tb}, s{s_t0}
    s_bfe_u32 s{s_fb}, s2, 0x20001
    s_mul_i32 s{s_fb}, s{s_fb}, 7
    s_lshr_b32 s{s_t0}, s2, 5
    s_add_u32 s{s_fb}, s{s_fb}, s{s_t0}
    s_cmp_eq_u32 s{s_t0}, 7
    s_cbranch_scc1 {name}_fin
    s_cmp_ge_u32 s{s_fb}, 27
    s_cbranch_scc1 {name}_fin
    """)
    tr_dma_col(a, t[3], [t[1], t[2]])
    a(f"""
    s_lshl_b32 s{s_tb}, s{s_tb}, 2
    s_add_u32 s{s_tb}, s{s_tb}, s{s_wave}
    s_lshl_b32 s{s_wb}, s{s_wave}, 10
    v_lshrrev_b32 {t[1]}, 3, v0
    v_lshl_add_u32 {t[1]}, {t[0]}, 3, {t[1]}
    v_mul_u32_u24 {t[1]}, {RS}, {t[1]}
    v_add_u32 {vWd}, {t[1]}, {t[3]}
    v_lshlrev_b32 {vHo}, 4, v0
    s_lshl_b32 s{s_t0}, s{s_fb}, 7
    s_sub_u32 s34, {D * RS}, s{s_t0}
    s_mul_i32 s{s_t1}, s{s_tb}, {20 * 4096}
    s_waitcnt lgkmcnt(0)
    """)
    srd(a, sG, 4, off_lines_reg=s_t0, size_reg=34)
    srd(a, sU, 6, off_lines_reg=s_t0, size_reg=34)
    srd(a, sH, 24, off_lines_reg=s_t1, off_imm=WS_H2, size=20 * 4096)

    def w_tile(s):
        ops = []
        for rg in range(2):
            for half in range(2):
                n = rg * NW + half * 8
                pre = [f"s_add_u32 m0, s{s_wb}, {s * SLOT + n * 1024}",
                       f"s_mov_b32 s{s_t0}, {(s * 64 + rg * 32) * RS}"]
                ops.append(VmOp(f"buffer_load_dwordx4 {vWd}, {sr(sU if half else sG, 4)}, s{s_t0} offen lds", ("W", s), pre))
        return ops

    def h_loads(stage):
        ops = []
        for ks in range(2):
            for qb in range(NQB):
                pre = [f"s_mov_b32 s{s_t1}, {(stage * 2 + ks) * 4096}"] if qb == 0 else []
                ops.append(VmOp(f"buffer_load_dwordx4 {Hf(stage, ks, qb)}, {vHo}, {sr(sH, 4)}, s{s_t1} offen offset:{qb * 1024}",
                                ("h", stage), pre))
        return ops
    for s in range(2):
        for op in w_tile(s) + h_loads(s):
            st.emit_vm(op)
    tr_addr_setup(a, vA[0], [t[1], t[2], t[3]])
    for i in range(4):
        a(f"v_add_u32 {vA[1][i]}, 0x10000, {vA[0][i]}")
        a(f"v_add_u32 {vA[2][i]}, 0x20000, {vA[0][i]}")
    a(f"""
    s_mul_i32 s{s_t0}, s{s_tb}, {54 * 4096}
    s_lshl_b32 s34, s{s_fb}, 13
    s_add_u32 s{s_t0}, s{s_t0}, s34
    """)
    srd(a, sO, 24, off_lines_reg=s_t0, off_imm=WS_ACT, size=8192)

    def tr_frag(slot, u, db, guard=None):
        base = slot * SLOT
        ar, rel = vA[base >> 16], base & 0xffff
        return Frag([("ds_read_b64_tr_b16", 2 * e4, 2, ar[db % 4], rel + (db // 4) * 8192 + (32 * u + 16 * e4) * 128)
                     for e4 in range(2)], guard)
    items, vms = [], []
    for s in range(10):
        first = len(items)
        for ks in range(2):
            for db in range(8):
                g = st.guard_wait([("W", s), ("h", s)]) if (ks == 0 and db == 0) else None
                fr = tr_frag(s, ks, db, g)
                for qb in range(NQB):
                    c = "0" if (s == 0 and ks == 0) else str(acc(qb, db))
                    items.append(Item(f"{MFMA16} {acc(qb, db)}, {{A}}, {Hf(s, ks, qb)}, {c}", fr))
        ops = []
        if s == 0:
            ops += w_tile(2) + h_loads(2)
        if s + 3 < 10:
            ops += w_tile(s + 3) + h_loads(s + 3)
        if ops:
            vms.append((first + 1, first + 63, ops))
    st.layout(items)
    for g0, g1, ops in vms:
        st.place_vm(items, g0, g1, ops)
    for g in (0, 64, 192, 320, 639):
        items[g].block.append("; STAMP")
    a.lines.append("; STAMP")
    st.emit(items, [])
    for i in range(2):
        a(f"s_mov_b32 s{s_t0}, {i * 4096}")
        for qb in range(NQB):
            dst = OUT.sub((i * 4 + qb) * 4, 4)
            for hf in range(2):
                gt, up = acc(qb, 2 * i + hf), acc(qb, 4 + 2 * i + hf)
                for r in range(4):
                    a(f"v_max_f32 {gt[r]}, 0, {gt[r]}")
                for r in range(4):
                    a(f"v_mul_f32 {gt[r]}, {gt[r]}, {up[r]}")
                for j in range(2):
                    a(f"v_cvt_pk_bf16_f32 {dst[2 * hf + j]}, {gt[2 * j]}, {gt[2 * j + 1]}")
            a(f"buffer_store_dwordx4 {dst}, {vHo}, {sr(sO, 4)}, s{s_t0} offen offset:{qb * 1024} sc1")
    a.label(f"{name}_fin")
    a.label(f"{name}_end")
    a("s_endpgm")
    return (name, a.lines, 256 + aa.p, 256, 256, 256, 163840)


def gen_oproj(name, la_frags=8, NRING=6, XD=4, timing=False, sc1=True):
    NT, NB, NST = 2, 10, 16
    SL = 64 * 320
    a = Asm()
    va = Alloc(1, 256)
    t = va.get(7)
    vA = [va.get(2) for _ in range(2)]
    vWd = va.get(5)
    vHo = va.get(1)
    ACC = va.get(80, 4)
    Xr = va.get(XD * 16, 4)
    NFR = 12
    FR = va.get(4 * NFR, 4)
    acc = lambda tb, j: ACC.sub((tb * NB + j) * 4, 4)
    Xf = lambda stage, ks, tb: Xr.sub((((stage % XD) * 2 + ks) * NT + tb) * 4, 4)
    sW, sX, sO = 8, 12, 16
    s_wave, s_wb, s_hg, s_tb, s_nb, s_t0, s_t1 = range(28, 35)
    st = Stream(a, FR, NFR, la_frags * NT, 2)
    a(f"""
    s_cmp_ge_u32 s2, 256
    s_cbranch_scc1 {name}_end
    s_load_dwordx2 s[4:5], s[0:1], {KA_WO}
    s_load_dwordx2 s[6:7], s[0:1], {KA_WS}
    v_lshrrev_b32 {t[0]}, 6, v0
    v_readfirstlane_b32 s{s_wave}, {t[0]}
    s_bfe_u32 s{s_hg}, s2, 0x20001
    s_and_b32 s{s_tb}, s2, 1
    s_lshl_b32 s{s_tb}, s{s_tb}, 3
    s_bfe_u32 s{s_t0}, s2, 0x30003
    s_add_u32 s{s_tb}, s{s_tb}, s{s_t0}
    s_lshr_b32 s{s_nb}, s2, 6
    """)
    for i in range(5):
        a(f"""
        v_add_u32 {t[1]}, {256 * i}, v0
        v_mul_u32_u24 {t[2]}, 3277, {t[1]}
        v_lshrrev_b32 {t[2]}, 16, {t[2]}
        v_mul_u32_u24 {t[3]}, 20, {t[2]}
        v_sub_u32 {t[3]}, {t[1]}, {t[3]}
        v_bfe_u32 {t[4]}, {t[2]}, 2, 1
        v_lshlrev_b32 {t[4]}, 1, {t[4]}
        v_xor_b32 {t[3]}, {t[3]}, {t[4]}
        v_mul_u32_u24 {t[2]}, {D * 2}, {t[2]}
        v_lshl_add_u32 {vWd[i]}, {t[3]}, 4, {t[2]}
        """)
    assert all((p * 3277) >> 16 == p // 20 for p in range(1280))
    a(f"""
    v_and_b32 v0, 63, v0
    v_lshlrev_b32 {vHo}, 4, v0
    s_lshl_b32 s{s_wb}, s{s_wave}, 10
    s_mul_i32 s{s_t0}, s{s_hg}, {1024 * D * 2}
    s_mul_i32 s{s_t1}, s{s_nb}, 320
    s_add_u32 s{s_t0}, s{s_t0}, s{s_t1}
    s_sub_u32 s36, {1024 * D * 2}, s{s_t1}
    s_lshl_b32 s37, s{s_tb}, 1
    s_lshr_b32 s38, s{s_wave}, 1
    s_add_u32 s37, s37, s38
    s_and_b32 s38, s{s_wave}, 1
    s_lshl_b32 s38, s38, 11
    s_lshl_b32 s39, s37, 19
    s_lshl_b32 s40, s{s_hg}, 17
    s_add_u32 s39, s39, s40
    s_add_u32 s39, s39, s38
    s_sub_u32 s40, {32 * 4096}, s38
    s_waitcnt lgkmcnt(0)
    """)
    srd(a, sW, 4, off_lines_reg=s_t0, size_reg=36)
    srd(a, sX, 6, off_lines_reg=39, off_imm=WS_O, size_reg=40)

    def w_tile(s):
        ops = []
        for i in range(5):
            pre = [f"s_add_u32 m0, s{s_wb}, {(s % NRING) * SL + i * 4096}"]
            if i == 0:
                pre.append(f"s_mov_b32 s{s_t0}, {s * 64 * D * 2}")
            ops.append(VmOp(f"buffer_load_dwordx4 {vWd[i]}, {sr(sW, 4)}, s{s_t0} offen lds", ("W", s), pre))
        return ops

    def x_loads(s):
        ops = []
        for ks in range(2):
            for tb in range(NT):
                pre = [f"s_mov_b32 s{s_t1}, {(s * 2 + ks) * 4096}"] if tb == 0 else []
                ops.append(VmOp(f"buffer_load_dwordx4 {Xf(s, ks, tb)}, {vHo}, {sr(sX, 4)}, s{s_t1} offen offset:{tb * 1024}",
                                ("x", s), pre))
        return ops
    PF = XD - 1
    for s in range(PF):
        for op in w_tile(s) + x_loads(s):
            st.emit_vm(op)
    a(f"""
    v_lshrrev_b32 {t[1]}, 2, v0
    v_mul_u32_u24 {t[1]}, 320, {t[1]}
    v_and_b32 {t[2]}, 3, v0
    v_lshl_add_u32 {t[1]}, {t[2]}, 3, {t[1]}
    v_bfe_u32 {t[2]}, v0, 4, 1
    v_lshlrev_b32 {t[2]}, 5, {t[2]}
    v_add_u32 {vA[0][0]}, {t[1]}, {t[2]}
    v_xor_b32 {t[2]}, 32, {t[2]}
    v_add_u32 {vA[0][1]}, {t[1]}, {t[2]}
    v_add_u32 {vA[1][0]}, {3 * SL}, {vA[0][0]}
    v_add_u32 {vA[1][1]}, {3 * SL}, {vA[0][1]}
    s_mul_i32 s39, s37, {20 * 4096}
    s_mul_i32 s40, s{s_hg}, {PSTRIDE}
    s_add_u32 s39, s39, s40
    s_mul_i32 s40, s{s_nb}, {5 * 4096}
    s_add_u32 s39, s39, s40
    s_add_u32 s39, s39, s38
    s_sub_u32 s40, {5 * 4096}, s38
    """)
    srd(a, sO, 6, off_lines_reg=39, off_imm=WS_PART, size_reg=40)

    def tr_frag(s, ks, j, guard=None):
        slot = s % NRING
        ar, rel = vA[slot // 3], (slot % 3) * SL
        return Frag([("ds_read_b64_tr_b16", 2 * e4, 2, ar[j % 2], rel + (32 * ks + 16 * e4) * 320 + (j // 2) * 64)
                     for e4 in range(2)], guard)
    items, vms = [], []
    nst = 2 * NB * NT
    for s in range(NST):
        first = len(items)
        for ks in range(2):
            for j in range(NB):
                g = st.guard_wait([("W", s), ("x", s)]) if (ks == 0 and j == 0) else None
                fr = tr_frag(s, ks, j, g)
                for tb in range(NT):
                    c = "0" if (s == 0 and ks == 0) else str(acc(tb, j))
                    items.append(Item(f"{MFMA16} {acc(tb, j)}, {{A}}, {Xf(s, ks, tb)}, {c}", fr))
        if s + PF < NST:
            assert NRING >= PF + 2
            vms.append((first + 1, first + nst - 1, w_tile(s + PF) + x_loads(s + PF)))
    st.layout(items)
    for g0, g1, ops in vms:
        st.place_vm(items, g0, g1, ops)
    for g in (0, nst * 4, nst * 8, len(items) - 1):
        items[g].block.append("; STAMP")
    a.lines.append("; STAMP")
    st.emit(items, [])
    print(name, "estimated cycles", sum(st.est))
    k = 0
    for i in range(5):
        a(f"s_mov_b32 s{s_t0}, {i * 4096}")
        for tb in range(NT):
            dst = Xr.sub(4 * k, 4)
            k += 1
            for hf in range(2):
                src = acc(tb, 2 * i + hf)
                for j in range(2):
                    a(f"v_cvt_pk_bf16_f32 {dst[2 * hf + j]}, {src[2 * j]}, {src[2 * j + 1]}")
            a(f"buffer_store_dwordx4 {dst}, {vHo}, {sr(sO, 4)}, s{s_t0} offen offset:{tb * 1024}{' sc1' if sc1 else ''}")
    a.label(f"{name}_end")
    a("s_endpgm")
    return (name, a.lines, va.p, (va.p + 3) // 4 * 4, 256, 256, NRING * SL)


def gen_gemm_lds(name, kind, la_frags=None, NRING=None, PF=None, sc1=True):
    if kind == "oproj":
        NT, NB, KSS, NST, NKS = 2, 10, 2, 16, 32
        la_frags, NRING, PF = la_frags or 8, NRING or 6, PF or 3
    else:
        NT, NB, KSS, NST, NKS = 1, 5, 4, 14, 54
        la_frags, NRING, PF = la_frags or 10, NRING or 7, PF or 5
    SL = 20480
    XD = PF + 1
    a = Asm()
    va = Alloc(1, 256)
    t = va.get(7)
    vA = va.get(3)
    vWd = va.get(5)
    vHo = va.get(1)
    vR, vG = va.get(1), va.get(1)
    ACC = va.get(NT * NB * 4, 4)
    Xr = va.get(XD * 16, 4)
    NFR = 16 if kind == "oproj" else 15
    FR = va.get(4 * NFR, 4)
    if kind == "down":
        RES = va.get(10, 2)
        G = va.get(20, 4)
    acc = lambda tb, j: ACC.sub((tb * NB + j) * 4, 4)
    Xf = lambda stage, ks, tb: Xr.sub((((stage % XD) * KSS + ks) * NT + tb) * 4, 4)
    sW, sX, sO, sR, sG = 8, 12, 16, 20, 24
    s_wave, s_wb, s_hg, s_tb, s_nb, s_t0, s_t1 = range(28, 35)
    st = Stream(a, FR, NFR, la_frags * NT, 4 if kind == "oproj" else 5)
    a(f"""
    s_cmp_ge_u32 s2, 256
    s_cbranch_scc1 {name}_end
    s_load_dwordx2 s[6:7], s[0:1], {KA_WS}
    s_load_dwordx2 s[4:5], s[0:1], {KA_OUT}
    v_lshrrev_b32 {t[0]}, 6, v0
    v_and_b32 v0, 63, v0
    v_readfirstlane_b32 s{s_wave}, {t[0]}
    v_lshlrev_b32 {vHo}, 4, v0
    """)
    magic = (65536 + NB - 1) // NB
    assert all((p * magic) >> 16 == p // NB for p in range(20))
    for i in range(5):
        a(f"""
        v_add_u32 {t[1]}, {4 * i}, {t[0]}
        v_mul_u32_u24 {t[2]}, {magic}, {t[1]}
        v_lshrrev_b32 {t[2]}, 16, {t[2]}
        v_mul_u32_u24 {t[2]}, {40 - NB}, {t[2]}
        v_add_u32 {t[1]}, {t[1]}, {t[2]}
        v_lshl_add_u32 {vWd[i]}, {t[1]}, 10, {vHo}
        """)
    if kind == "oproj":
        a(f"""
        s_bfe_u32 s{s_hg}, s2, 0x20001
        s_and_b32 s{s_tb}, s2, 1
        s_lshl_b32 s{s_tb}, s{s_tb}, 3
        s_bfe_u32 s{s_t0}, s2, 0x30003
        s_add_u32 s{s_tb}, s{s_tb}, s{s_t0}
        s_lshr_b32 s{s_nb}, s2, 6
        s_mul_i32 s{s_t0}, s{s_hg}, {32 * 40960}
        s_mul_i32 s{s_t1}, s{s_nb}, {NB * 1024}
        s_add_u32 s{s_t0}, s{s_t0}, s{s_t1}
        s_sub_u32 s36, {32 * 40960}, s{s_t1}
        s_lshl_b32 s37, s{s_tb}, 1
        s_lshr_b32 s38, s{s_wave}, 1
        s_add_u32 s37, s37, s38
        s_and_b32 s38, s{s_wave}, 1
        s_lshl_b32 s38, s38, 11
        s_lshl_b32 s39, s37, 19
        s_lshl_b32 s40, s{s_hg}, 17
        s_add_u32 s39, s39, s40
        s_add_u32 s39, s39, s38
        s_sub_u32 s40, {32 * 4096}, s38
        """)
        w_off, x_off = WS_WOF, WS_O
    else:
        a(f"""
        s_and_b32 s{s_tb}, s2, 1
        s_lshl_b32 s{s_tb}, s{s_tb}, 4
        s_bfe_u32 s{s_t0}, s2, 0x10001
        s_lshl_b32 s{s_t0}, s{s_t0}, 3
        s_add_u32 s{s_tb}, s{s_tb}, s{s_t0}
        s_bfe_u32 s{s_t0}, s2, 0x30003
        s_add_u32 s{s_tb}, s{s_tb}, s{s_t0}
        s_bfe_u32 s{s_nb}, s2, 0x10002
        s_lshl_b32 s{s_nb}, s{s_nb}, 2
        s_lshr_b32 s{s_t0}, s2, 6
        s_add_u32 s{s_nb}, s{s_nb}, s{s_t0}
        s_mul_i32 s{s_t0}, s{s_nb}, {NB * 1024}
        s_sub_u32 s36, {54 * 40960}, s{s_t0}
        s_lshl_b32 s38, s{s_wave}, 10
        s_mul_i32 s39, s{s_tb}, {54 * 4096}
        s_add_u32 s39, s39, s38
        s_sub_u32 s40, {54 * 4096}, s38
        """)
        w_off, x_off = WS_WDF, WS_ACT
    a(f"""
    s_lshl_b32 s{s_wb}, s{s_wave}, 10
    s_waitcnt lgkmcnt(0)
    """)
    srd(a, sW, 6, off_lines_reg=s_t0, off_imm=w_off, size_reg=36)
    srd(a, sX, 6, off_lines_reg=39, off_imm=x_off, size_reg=40)

    def w_tile(s):
        ops = []
        for i in range(5):
            pre = [f"s_add_u32 m0, s{s_wb}, {(s % NRING) * SL + i * 4096}"]
            if i == 0:
                pre.append(f"s_mov_b32 s{s_t0}, {s * KSS * 40960}")
            ops.append(VmOp(f"buffer_load_dwordx4 {vWd[i]}, {sr(sW, 4)}, s{s_t0} offen lds", ("W", s), pre))
        return ops

    def x_loads(s):
        ops = []
        for ks in range(KSS):
            for tb in range(NT):
                pre = [f"s_mov_b32 s{s_t1}, {(s * KSS + ks) * 4096}"] if tb == 0 else []
                ops.append(VmOp(f"buffer_load_dwordx4 {Xf(s, ks, tb)}, {vHo}, {sr(sX, 4)}, s{s_t1} offen offset:{tb * 1024}",
                                ("x", s), pre))
        return ops
    for s in range(PF):
        for op in w_tile(s) + x_loads(s):
            st.emit_vm(op)
    for i in range(3):
        a(f"v_add_u32 {vA[i]}, {3 * SL * i}, {vHo}")
    if kind == "oproj":
        a(f"""
        s_mul_i32 s39, s37, {20 * 4096}
        s_mul_i32 s40, s{s_hg}, {PSTRIDE}
        s_add_u32 s39, s39, s40
        s_mul_i32 s40, s{s_nb}, {5 * 4096}
        s_add_u32 s39, s39, s40
        s_add_u32 s39, s39, s38
        s_sub_u32 s40, {5 * 4096}, s38
        """)
        srd(a, sO, 6, off_lines_reg=39, off_imm=WS_PART, size_reg=40)
    else:
        a(f"""
        v_and_b32 {t[1]}, 15, v0
        v_lshl_add_u32 {t[1]}, {t[0]}, 4, {t[1]}
        v_mul_u32_u24 {t[1]}, {D * 2}, {t[1]}
        v_lshrrev_b32 {t[2]}, 4, v0
        v_lshl_add_u32 {vR}, {t[2]}, 3, {t[1]}
        v_lshlrev_b32 {vG}, 4, {t[2]}
        s_mul_i32 s39, s{s_tb}, {64 * D * 2}
        s_mul_i32 s40, s{s_nb}, 160
        s_add_u32 s39, s39, s40
        s_sub_u32 s38, {64 * D * 2}, s40
        """)
        srd(a, sR, 6, off_lines_reg=39, off_imm=WS_X1, size_reg=38)
        srd(a, sO, 4, off_lines_reg=39, size_reg=38)
        a(f"s_mul_i32 s40, s{s_nb}, 320")
        srd(a, sG, 6, off_lines_reg=40, off_imm=WS_MOD + 5 * D * 4, size=320)

    def w_frag(s, ks, j, guard=None):
        slot = s % NRING
        return Frag([("ds_read_b128", 0, 4, vA[slot // 3], (slot % 3) * SL + (ks * NB + j) * 1024)], guard)
    items, vms = [], []
    nst = KSS * NB * NT
    for s in range(NST):
        first = len(items)
        nks = min(KSS, NKS - s * KSS)
        for j in range(NB):
            frs = []
            for ks in range(nks):
                g = st.guard_wait([("W", s), ("x", s)]) if (ks == 0 and j == 0) else None
                frs.append(w_frag(s, ks, j, g))
                frs[-1].nat = len(items) + ks * NT
            for tb in range(NT):
                for ks in range(nks):
                    c = "0" if (s == 0 and ks == 0) else str(acc(tb, j))
                    items.append(Item(f"{MFMA16} {acc(tb, j)}, {{A}}, {Xf(s, ks, tb)}, {c}", frs[ks]))
        if s + PF < NST:
            assert NRING >= PF + 2
            vms.append((first + 1, len(items) - 1, w_tile(s + PF) + x_loads(s + PF)))
        elif s + PF == NST and kind == "down":
            ep = [VmOp(f"buffer_load_dwordx2 {RES.sub(2 * j, 2)}, {vR}, {sr(sR, 4)}, 0 offen offset:{32 * j}", "e") for j in range(5)]
            ep += [VmOp(f"buffer_load_dwordx4 {G.sub(4 * j, 4)}, {vG}, {sr(sG, 4)}, 0 offen offset:{64 * j}", "e") for j in range(5)]
            vms.append((first + 1, len(items) - 1, ep))
    st.layout(items)
    for g0, g1, ops in vms:
        st.place_vm(items, g0, g1, ops)
    for g in (0, nst * (NST // 4), nst * (NST // 2), len(items) - 1):
        items[g].block.append("; STAMP")
    a.lines.append("; STAMP")
    st.emit(items, [])
    print(name, "estimated cycles", sum(st.est))
    if kind == "oproj":
        k = 0
        for i in range(5):
            a(f"s_mov_b32 s{s_t0}, {i * 4096}")
            for tb in range(NT):
                dst = Xr.sub(4 * k, 4)
                k += 1
                for hf in range(2):
                    src = acc(tb, 2 * i + hf)
                    for j in range(2):
                        a(f"v_cvt_pk_bf16_f32 {dst[2 * hf + j]}, {src[2 * j]}, {src[2 * j + 1]}")
                a(f"buffer_store_dwordx4 {dst}, {vHo}, {sr(sO, 4)}, s{s_t0} offen offset:{tb * 1024}{' sc1' if sc1 else ''}")
    else:
        a("s_waitcnt vmcnt(0)")
        for j in range(5):
            for p in range(2):
                r = RES[2 * j + p]
                i0 = 4 * j + 2 * p
                a(f"v_lshlrev_b32 {t[1 + 2 * p]}, 16, {r}")
                a(f"v_and_b32 {t[2 + 2 * p]}, 0xffff0000, {r}")
                a(f"v_fmac_f32 {t[1 + 2 * p]}, {ACC[i0]}, {G[i0]}")
                a(f"v_fmac_f32 {t[2 + 2 * p]}, {ACC[i0 + 1]}, {G[i0 + 1]}")
                a(f"v_cvt_pk_bf16_f32 {r}, {t[1 + 2 * p]}, {t[2 + 2 * p]}")
            a(f"buffer_store_dwordx2 {RES.sub(2 * j, 2)}, {vR}, {sr(sO, 4)}, 0 offen offset:{32 * j}")
    a.label(f"{name}_end")
    a("s_endpgm")
    return (name, a.lines, va.p, (va.p + 3) // 4 * 4, 256, 256, NRING * SL)
```

```python
KA_X, KA_K, KA_V, KA_WQ, KA_WO, KA_BX, KA_WG, KA_WU, KA_WD, KA_C, KA_WMOD, KA_OUT, KA_DBG, KA_WS = [8 * i for i in range(14)]

S, D, H, DH, F = 2048, 640, 32, 128, 1728

import os
WS_BASE = int(os.environ.get("WSBASE", "0"), 0)
ALIAS = int(os.environ.get("ALIAS", "0"))
WS_MOD = WS_BASE
WS_H = WS_BASE + 0x10000
WS_O = WS_H + S * D * 2
WS_WOF = WS_O + S * H * DH * 2
WS_WDF = WS_WOF + H * DH * D * 2
WS_PART = WS_WDF + F * D * 2
PSTRIDE = S * D * 2
if ALIAS:
    WS_X1 = WS_O
    WS_H2 = WS_H
    WS_ACT = WS_O + S * D * 2
    WS_END = WS_PART + 4 * PSTRIDE
else:
    WS_X1 = WS_PART + 4 * PSTRIDE
    WS_H2 = WS_X1 + S * D * 2
    WS_ACT = WS_H2 + S * D * 2
    WS_END = WS_ACT + S * F * 2
QSCALE = 1.4426950408889634 * DH ** -0.5
```

```python
from layout import *

def instrument_dbg(k, idx):
    name, lines, vgpr, accum, block, grid, lds = k
    out = []
    done_head = False
    for l in lines:
        if l.strip() == f"{name}_end:":
            out += [f"  {x}" for x in f"""s_mov_b64 exec, 1
s_cmp_lg_u32 s94, 0
s_cbranch_scc1 {name}_end
s_waitcnt vmcnt(0)
s_memrealtime s[92:93]
s_load_dwordx2 s[84:85], s[0:1], {KA_DBG}
s_waitcnt lgkmcnt(0)
s_sub_u32 s84, s84, {idx * 512}
s_subb_u32 s85, s85, 0
s_mov_b32 s86, 256
s_mov_b32 s87, 0x20000
s_not_b32 s90, s90
v_mov_b32 v2, s90
v_mov_b32 v3, s92
v_mov_b32 v1, {idx * 8}
buffer_atomic_umax v2, v1, s[84:87], 0 offen sc1
buffer_atomic_umax v3, v1, s[84:87], 0 offen offset:4 sc1""".split("\n")]
        out.append(l)
        if not done_head and l.strip().startswith("s_cbranch_scc1") and l.strip().endswith("_end"):
            out += ["  s_memrealtime s[90:91]", "  v_lshrrev_b32 v1, 6, v0", "  s_nop 0", "  v_readfirstlane_b32 s94, v1"]
            done_head = True
    return (name, out, max(vgpr, 8), accum, block, grid, lds)
```

```python
from layout import *

def instrument_dbg(k, idx):
    name, lines, vgpr, accum, block, grid, lds = k
    out = []
    done_head = False
    for l in lines:
        if l.strip() == f"{name}_end:":
            out += [f"  {x}" for x in f"""s_mov_b64 exec, 1
s_cmp_lg_u32 s94, 0
s_cbranch_scc1 {name}_end
s_and_b32 s95, s95, 0x78
s_cmp_lg_u32 s95, 0
s_cbranch_scc1 {name}_end
s_waitcnt vmcnt(0)
s_memrealtime s[92:93]
s_load_dwordx2 s[84:85], s[0:1], {KA_DBG}
s_waitcnt lgkmcnt(0)
s_add_u32 s84, s84, {(6 - idx) * 512}
s_addc_u32 s85, s85, 0
s_mov_b32 s86, 256
s_mov_b32 s87, 0x20000
s_not_b32 s90, s90
v_mov_b32 v2, s90
v_mov_b32 v3, s92
v_mov_b32 v1, {idx * 8}
buffer_atomic_umax v2, v1, s[84:87], 0 offen sc1
buffer_atomic_umax v3, v1, s[84:87], 0 offen offset:4 sc1""".split("\n")]
        out.append(l)
        if not done_head and l.strip().startswith("s_cbranch_scc1") and l.strip().endswith("_end"):
            out += ["  s_memrealtime s[90:91]", "  v_lshrrev_b32 v1, 6, v0", "  s_mov_b32 s95, s2", "  v_readfirstlane_b32 s94, v1"]
            done_head = True
    return (name, out, max(vgpr, 8), accum, block, grid, lds)
```

```python
from asmlib import Asm, Alloc, Reg, sr
from stream import *
from layout import *

SLOT = 16384


def timing_head(a, s_tm):
    a(f"s_memtime s[{s_tm}:{s_tm+1}]")
    a(f"s_memrealtime s[{s_tm+2}:{s_tm+3}]")


def timing_tail(a, s_tm, s_wave, v2, v1):
    a(f"""
    s_memtime s[{s_tm+4}:{s_tm+5}]
    s_memrealtime s[{s_tm+6}:{s_tm+7}]
    s_load_dwordx2 s[4:5], s[0:1], {KA_WS}
    s_waitcnt lgkmcnt(0)
    s_sub_u32 s{s_tm}, s{s_tm+4}, s{s_tm}
    s_sub_u32 s{s_tm+2}, s{s_tm+6}, s{s_tm+2}
    s_add_u32 s4, s4, 0x8000
    s_addc_u32 s5, s5, 0
    s_mov_b32 s6, 0x8000
    s_mov_b32 s7, 0x20000
    v_mov_b32 {v2[0]}, s{s_tm}
    v_mov_b32 {v2[1]}, s{s_tm+2}
    s_lshl_b32 s{s_tm+4}, s2, 6
    s_lshl_b32 s{s_tm+5}, s{s_wave}, 3
    s_add_u32 s{s_tm+4}, s{s_tm+4}, s{s_tm+5}
    v_mov_b32 {v1}, s{s_tm+4}
    buffer_store_dwordx2 {v2}, {v1}, s[4:7], 0 offen
    """)


def tr_addr_setup(a, dst4, t):
    a(f"""
    v_lshrrev_b32 {t[0]}, 2, v0
    v_lshlrev_b32 {t[1]}, 7, {t[0]}
    v_and_b32 {t[2]}, 3, v0
    v_lshl_add_u32 {t[1]}, {t[2]}, 3, {t[1]}
    v_bfe_u32 {t[0]}, v0, 3, 2
    v_lshl_add_u32 {dst4[0]}, {t[0]}, 5, {t[1]}
    v_xor_b32 {dst4[1]}, 32, {dst4[0]}
    v_xor_b32 {dst4[2]}, 64, {dst4[0]}
    v_xor_b32 {dst4[3]}, 0x60, {dst4[0]}
    """)


def tr_dma_col(a, dst, t):
    a(f"""
    v_bfe_u32 {t[0]}, v0, 1, 2
    v_lshrrev_b32 {t[1]}, 4, v0
    v_xor_b32 {t[0]}, {t[0]}, {t[1]}
    v_lshlrev_b32 {t[0]}, 5, {t[0]}
    v_and_b32 {t[1]}, 1, v0
    v_lshl_add_u32 {dst}, {t[1]}, 4, {t[0]}
    """)


def gen_attn16(name, NQB=4, la_frags=7, wait_group=4, chain=True, thr_log2=40, timing=False, prio=None, abl=(), cap2=16, wpf=False, sj_wo=True, mapA=True, osc=True, tlbw=False):
    NW = 16 // NQB
    LA = la_frags * NQB
    acc = NQB == 4
    a = Asm()
    va = Alloc(1, 256)
    aa = Alloc(0, 256, acc=True)
    tmp = va.get(7)
    vKa = va.get(2)
    vVa = va.get(4)
    vWlo = va.get(4)
    vWhi = va.get(4)
    vKd, vVd, vWd, vHo = va.get(1), va.get(1), va.get(1), va.get(1)
    EQ = va.get(16, 4)
    E = [EQ[4 * (i // 3) + i % 3] for i in range(12)]
    NE = 12
    ts = [EQ[4 * q + 3] for q in range(NQB)]
    lq = va.get(6, 4)
    lsum = [lq[0], lq[1], lq[2], lq[4]][:NQB]
    ACCQ = va.get(32 * NQB, 4)
    Q = va.get(16 * NQB, 4)
    O = (aa if acc else va).get(32 * NQB, 4)
    NFR = 16
    FR = (aa if acc else va).get(4 * NFR, 4)
    SJ = aa.get(32, 4)
    vSj = va.get(1)
    Sq = lambda par, qb: ACCQ.sub((par * NQB + qb) * 8, 8)
    Sb = lambda par, qb, kb: Sq(par, qb).sub(4 * kb, 4)
    negm = lambda qb: ACCQ.sub(16 * NQB + qb * 4, 4)
    Pb = lambda par, qb: ACCQ.sub(20 * NQB + (par * NQB + qb) * 4, 4)
    qacc = lambda qb, db: O.sub((qb * 8 + db) * 4, 4)
    Qf = lambda qb, s: Q.sub((qb * 4 + s) * 4, 4)
    Ob = lambda qb, db: O.sub((qb * 8 + db) * 4, 4)
    Hslot = lambda stage: Q.sub(32, 32) if stage % 5 == 0 else ACCQ.sub((stage % 5 - 1) * 32, 32)
    Hf = lambda stage, ks, qb: Hslot(stage).sub((ks * NQB + qb) * 4, 4)
    XS = va.get(8, 2)
    assert XS.base % 4 == 2
    CSH = lambda ks: Q.sub(8 * ks, 8)
    CSC = lambda ks: Q.sub(18, 8) if ks == 0 else XS
    vTab = va.get(1)
    assert NQB == 4
    sK, sV, sW, sH, sO = 8, 12, 16, 20, 24
    s_wave, s_wb, s_head, s_qb, s_koff, s_voff, s_koff2, s_voff2, s_cnt, s_thr, s_t0, s_t1, s_tb = range(28, 41)
    s_tm = 44
    s_sjl, s_sjd = 41, 42
    st = Stream(a, FR, NFR, LA, wait_group, cap=8 if NQB == 4 else cap2)

    if "pv32" in abl:
        st.rstep = 2
    a(f"""
    s_cmp_ge_u32 s2, 256
    s_cbranch_scc1 {name}_end
    s_load_dwordx4 s[4:7], s[0:1], {KA_K}
    s_load_dwordx2 s[16:17], s[0:1], {KA_WQ}
    s_load_dwordx2 s[20:21], s[0:1], {KA_WS}
    s_load_dwordx2 s[56:57], s[0:1], {KA_WO}
    s_load_dwordx4 s[60:63], s[0:1], {KA_WG}
    s_load_dwordx2 s[64:65], s[0:1], {KA_WD}
    """)
    if timing:
        timing_head(a, s_tm)
    t0, t1, t2, t3, t4, t5, t6 = [tmp[i] for i in range(7)]
    a(f"""
    v_lshrrev_b32 {t0}, 6, v0
    v_and_b32 v0, 63, v0
    v_readfirstlane_b32 s{s_wave}, {t0}
    s_bfe_u32 s{s_head}, s2, 0x20001
    s_lshl_b32 s{s_head}, s{s_head}, 3
    s_bfe_u32 s{s_t0}, s2, 0x30003
    s_add_u32 s{s_head}, s{s_head}, s{s_t0}
    s_and_b32 s{s_qb}, s2, 1
    s_lshl_b32 s{s_qb}, s{s_qb}, 2
    s_lshr_b32 s{s_t0}, s2, 6
    s_add_u32 s{s_qb}, s{s_qb}, s{s_t0}
    s_lshl_b32 s{s_wb}, s{s_wave}, 10
    """)
    if mapA:
        a(f"""
        s_and_b32 s{s_head}, s2, 7
        s_lshl_b32 s{s_head}, s{s_head}, 2
        s_bfe_u32 s{s_t0}, s2, 0x20003
        s_add_u32 s{s_head}, s{s_head}, s{s_t0}
        s_lshr_b32 s{s_qb}, s2, 5
        """)
    tr_dma_col(a, t3, [t1, t2])
    a(f"""
    v_lshrrev_b32 {t0}, 3, v0
    s_lshl_b32 s{s_t0}, s{s_wave}, 3
    v_add_u32 {t0}, s{s_t0}, {t0}
    v_lshl_add_u32 {vVd}, {t0}, 8, {t3}
    v_lshl_add_u32 {vWd}, {t0}, 13, {t3}
    v_lshlrev_b32 {vHo}, 4, v0
    """)
    a(f"""
    s_lshl_b32 s{s_tb}, s{s_qb}, 4
    s_mul_i32 s{s_t1}, s{s_wave}, {NQB}
    s_add_u32 s{s_tb}, s{s_tb}, s{s_t1}
    s_waitcnt lgkmcnt(0)
    s_lshl_b32 s{s_t0}, s{s_head}, 8
    s_add_u32 s{sW}, s{sW}, s{s_t0}
    s_addc_u32 s{sW+1}, s{sW+1}, 0
    s_sub_u32 s{sW+2}, {D * H * DH * 2}, s{s_t0}
    s_mov_b32 s{sW+3}, 0x20000
    s_add_u32 s{sO}, s{sH}, {WS_O}
    s_addc_u32 s{sO+1}, s{sH+1}, 0
    s_add_u32 s80, s{sH}, {WS_MOD}
    s_addc_u32 s81, s{sH+1}, 0
    s_mov_b32 s82, {2 * D * 4}
    s_mov_b32 s83, 0x20000
    s_lshr_b32 s{s_t0}, s{s_tb}, 2
    s_mul_i32 s{s_t0}, s{s_t0}, {20 * 4096}
    s_and_b32 s{s_t1}, s{s_tb}, 3
    s_lshl_b32 s{s_t1}, s{s_t1}, 10
    s_add_u32 s{s_t0}, s{s_t0}, s{s_t1}
    s_add_u32 s{s_t0}, s{s_t0}, {WS_H}
    s_add_u32 s{sH}, s{sH}, s{s_t0}
    s_addc_u32 s{sH+1}, s{sH+1}, 0
    s_sub_u32 s{sH+2}, {20 * 4096}, s{s_t1}
    s_mov_b32 s{sH+3}, 0x20000
    """)

    def dma_tile(kind, slot, tag, soff_imm=None, rowstride=256):
        srd, vo = {"K": (sK, vKd), "V": (sV, vVd), "W": (sW, vWd)}[kind]
        ops = []
        for rg in range(8 // NW):
            for half in range(2):
                n = rg * NW + half * 8
                pre = []
                if soff_imm is not None:
                    pre.append(f"s_mov_b32 s{s_t0}, {soff_imm + rg * 32 * rowstride}")
                    so = s_t0
                else:
                    so = {("K", 0): s_koff, ("K", 1): s_koff2, ("V", 0): s_voff, ("V", 1): s_voff2}[(kind, rg)]
                pre.insert(0, f"s_add_u32 m0, s{s_wb}, {slot * SLOT + n * 1024 - half * 128}")
                off = " offset:128" if half else ""
                ops.append(VmOp(f"buffer_load_dwordx4 {vo}, {sr(srd, 4)}, s{so} offen{off} lds", tag, pre))
        return ops

    def h_loads(stage):
        ops = []
        for ks in range(2):
            for qb in range(NQB):
                pre = [f"s_mov_b32 s{s_t1}, {(stage * 2 + ks) * 4096}"] if qb == 0 else []
                ops.append(VmOp(f"buffer_load_dwordx4 {Hf(stage, ks, qb)}, {vHo}, {sr(sH, 4)}, s{s_t1} offen offset:{qb * 1024}",
                                ("h", stage), pre))
        return ops

    WSLOT = [0, 1, 4, 2, 5, 3, 6, 7, 2, 8]
    w_tile = lambda s: dma_tile("W", WSLOT[s], ("W", s), s * 64 * 8192, 8192)
    tab = [VmOp(f"buffer_load_dwordx4 {vHo}, s[80:83], s{s_wb} offen lds", ("W", 0), [f"s_add_u32 m0, s{s_wb}, {9 * SLOT}"]),
           VmOp(f"buffer_load_dwordx4 {vHo}, s[80:83], s{s_t0} offen lds", ("W", 0),
                [f"s_add_u32 m0, s{s_wb}, {9 * SLOT + 4096}", f"s_add_u32 s{s_t0}, s{s_wb}, 4096"])]
    for op in tab + h_loads(0) + w_tile(0) + h_loads(1) + w_tile(1) + h_loads(2):
        st.emit_vm(op)

    if wpf:
        a(f"""
        v_lshrrev_b32 {t1}, 4, v0
        v_lshlrev_b32 {t1}, 13, {t1}
        v_and_b32 {t2}, 15, v0
        v_lshl_add_u32 {t1}, {t2}, 7, {t1}
        s_lshr_b32 s{s_t0}, s2, 3
        s_lshl_b32 s{s_t0}, s{s_t0}, 2
        s_add_u32 s{s_t0}, s{s_t0}, s{s_wave}
        s_add_u32 s{s_t0}, s{s_t0}, 32
        s_lshl_b32 s{s_t0}, s{s_t0}, 15
        s_and_b32 s{s_t1}, s{s_head}, 7
        s_lshl_b32 s{s_t1}, s{s_t1}, 8
        s_sub_u32 s{s_t0}, s{s_t0}, s{s_t1}
        """)
        st.emit_vm(VmOp(f"buffer_load_dword {Q[0]}, {t1}, {sr(sW, 4)}, s{s_t0} offen", "wpf"))
    a(f"""
    s_lshl_b32 s{s_t0}, s{s_head}, 19
    s_add_u32 s{sK}, s4, s{s_t0}
    s_addc_u32 s{sK+1}, s5, 0
    s_mov_b32 s{sK+2}, 0x80000
    s_mov_b32 s{sK+3}, 0x20000
    s_add_u32 s{sV}, s6, s{s_t0}
    s_addc_u32 s{sV+1}, s7, 0
    s_mov_b32 s{sV+2}, 0x80000
    s_mov_b32 s{sV+3}, 0x20000
    s_mov_b32 s{sO+2}, {S * H * DH * 2}
    s_mov_b32 s{sO+3}, 0x20000
    """)
    a(f"""
    v_lshrrev_b32 {t1}, 3, v0
    v_mul_u32_u24 {t1}, {D * 2}, {t1}
    v_add_u32 {vSj}, {t1}, {t3}
    s_lshl_b32 s{s_sjl}, s{s_wave}, 13
    """)
    NSJ = 2 if sj_wo else 1
    for u in range(NSJ):
        sd = 68 + 4 * u
        a(f"""
        s_lshl_b32 s{s_t0}, s2, 2
        s_add_u32 s{s_t0}, s{s_t0}, s{s_wave}
        s_add_u32 s{s_t0}, s{s_t0}, {1024 * u if sj_wo else 1280}
        s_lshl_b32 s{s_sjd + u}, s{s_t0}, 12
        s_mul_i32 s{s_t1}, s{s_t0}, 6554
        s_lshr_b32 s{s_t1}, s{s_t1}, 16
        s_mul_i32 s66, s{s_t1}, 10
        s_sub_u32 s66, s{s_t0}, s66
        s_lshl_b32 s66, s66, 7
        s_cmp_lt_u32 s{s_t0}, 1820
        s_cselect_b32 s{sd + 2}, {32 * D * 2 - 9 * 128}, 0
        s_cmp_lt_u32 s{s_t1}, 128
        s_cselect_b32 s{sd}, s56, s64
        s_cselect_b32 s{sd + 1}, s57, s65
        s_cselect_b32 s67, 0, 128
        s_sub_u32 s{s_t1}, s{s_t1}, s67
        s_min_u32 s{s_t1}, s{s_t1}, 127
        s_mul_i32 s{s_t1}, s{s_t1}, {32 * D * 2}
        s_add_u32 s{s_t1}, s{s_t1}, s66
        s_add_u32 s{sd}, s{sd}, s{s_t1}
        s_addc_u32 s{sd + 1}, s{sd + 1}, 0
        s_mov_b32 s{sd + 3}, 0x20000
        """)
    assert all((u * 6554) >> 16 == u // 10 for u in range(2400))
    a(f"""
    s_add_u32 s76, s{sO}, {WS_WOF - WS_O}
    s_addc_u32 s77, s{sO + 1}, 0
    s_mov_b32 s78, {1820 * 4096}
    s_mov_b32 s79, 0x20000
    """)
    a(f"""
    v_lshrrev_b32 {t1}, 4, v0
    s_and_b32 s{s_t0}, s{s_wave}, 1
    s_mul_i32 s{s_t0}, s{s_t0}, 6
    v_and_b32 {t2}, 1, {t1}
    v_lshrrev_b32 {t1}, 1, {t1}
    v_lshl_add_u32 {t2}, {t1}, 2, {t2}
    v_xor_b32 {t2}, s{s_t0}, {t2}
    v_and_b32 {t1}, 7, v0
    v_xor_b32 {t2}, {t2}, {t1}
    v_lshlrev_b32 {t2}, 4, {t2}
    v_lshl_add_u32 {vKd}, {t0}, 8, {t2}
    """)
    a(f"""
    v_bfe_u32 {t0}, v0, 1, 1
    v_bfe_u32 {t1}, v0, 2, 1
    v_bfe_u32 {t2}, v0, 3, 1
    v_xor_b32 {t1}, {t1}, {t2}
    v_lshl_add_u32 {t0}, {t2}, 1, {t0}
    v_lshl_add_u32 {t0}, {t1}, 2, {t0}
    v_bfe_u32 {t1}, v0, 4, 1
    v_bfe_u32 {t2}, v0, 5, 1
    v_lshl_add_u32 {t1}, {t1}, 1, {t2}
    v_xor_b32 {t0}, {t0}, {t1}
    v_and_b32 {t1}, 15, v0
    v_lshlrev_b32 {t1}, 7, {t1}
    v_lshl_add_u32 {vKa[0]}, {t0}, 4, {t1}
    v_xor_b32 {vKa[1]}, 64, {vKa[0]}
    """)
    tr_addr_setup(a, vWlo, [t0, t1, t2])
    for i in range(4):
        a(f"v_add_u32 {vVa[i]}, 0x10000, {vWlo[i]}")
        a(f"v_add_u32 {vWhi[i]}, 0x20000, {vWlo[i]}")
    a(f"v_mov_b32 {t6}, {f32hex(2.0 ** thr_log2)}")
    a(f"v_lshrrev_b32 {vTab}, 4, v0")
    a(f"v_lshlrev_b32 {vTab}, 4, {vTab}")
    a(f"v_add_u32 {vTab}, {9 * SLOT}, {vTab}")
    if timing == "series":
        a(f"""
        s_load_dwordx2 s[52:53], s[0:1], {KA_WS}
        s_waitcnt lgkmcnt(0)
        s_add_u32 s52, s52, 0x8000000
        s_addc_u32 s53, s53, 0
        s_mov_b32 s54, 0x8000
        s_mov_b32 s55, 0x20000
        """)
    if prio == "young":
        a(f"""
        s_cmp_ge_u32 s{s_wave}, {NW // 2}
        s_cbranch_scc0 {name}_noprio
        s_setprio 1
        {name}_noprio:
        """)

    def tr_frag(slot, u, db, guard=None):
        base = slot * SLOT
        ar, rel = (vWlo, base) if base < 0x10000 else (vVa, base - 0x10000) if base < 0x20000 else (vWhi, base - 0x20000)
        reads = []
        for e4 in range(2):
            off = rel + (db // 4) * 8192 + (32 * u + 16 * e4) * 128
            reads.append(("ds_read_b64_tr_b16", 2 * e4, 2, ar[db % 4], off))
        return Frag(reads, guard)

    def k_frag(slot, u, kb, s, guard=None):
        off = slot * SLOT + (s // 2) * 8192 + (32 * u + 16 * kb) * 128
        return Frag([("ds_read_b128", 0, 4, vKa[s % 2], off)], guard)

    rare_blocks = {}

    def sm_compute(par):
        n = 8 * NQB
        ex = lambda i: f"v_exp_f32 {E[i % NE]}, {Sq(par, i // 8)[i % 8]}"
        ops = [ex(0), ex(1)]
        for p in range(n // 2):
            qb, first = (2 * p) // 8, (2 * p) % 8 == 0
            e0, e1 = E[(2 * p) % NE], E[(2 * p + 1) % NE]
            if p + 1 < n // 2:
                ops.append(ex(2 * p + 2))
            ops.append(f"v_add_f32 {ts[qb]}, {e0}, {e1}" if first else f"v_add_f32 {ts[qb]}, {ts[qb]}, {e0}")
            if p + 1 < n // 2:
                ops.append(ex(2 * p + 3))
            if not first:
                ops.append(f"v_add_f32 {ts[qb]}, {ts[qb]}, {e1}")
            ops.append(f"v_cvt_pk_bf16_f32 {Pb(par, qb)[p % 4]}, {e0}, {e1}")
        return ops

    def xlane(op, dst, tmp2):
        return [f"v_mov_b32 {tmp2}, {dst}", f"v_permlane16_swap_b32 {dst}, {tmp2}", f"{op} {dst}, {dst}, {tmp2}",
                f"v_mov_b32 {tmp2}, {dst}", f"v_permlane32_swap_b32 {dst}, {tmp2}", f"{op} {dst}, {dst}, {tmp2}"]

    def rowmax(dst, tmp2, src):
        out = [f"v_max3_f32 {dst}, {src[0]}, {src[1]}, {src[2]}",
               f"v_max3_f32 {dst}, {dst}, {src[3]}, {src[4]}",
               f"v_max3_f32 {dst}, {dst}, {src[5]}, {src[6]}",
               f"v_max_f32 {dst}, {dst}, {src[7]}"]
        return out + xlane("v_max_f32", dst, tmp2)

    def sm_ops(par, tag):
        comp = sm_compute(par)
        lab, ret = f"{name}_rare{tag}", f"{name}_ret{tag}"
        cvts = [o for o in comp if o.startswith("v_cvt")][-3:]
        comp = [o for o in comp if o not in cvts]
        if NQB == 4:
            comp.insert(len(comp) - 6, f"v_max3_f32 {t0}, {ts[0]}, {ts[1]}, {ts[2]}")
            comp.append(f"v_max_f32 {t0}, {t0}, {ts[3]}")
        else:
            comp.append(f"v_max_f32 {t0}, {ts[0]}, {ts[1]}")
        comp.append(f"v_cmp_nle_f32 vcc, {t0}, {t6}")
        ops = (cvts, [f"s_cbranch_vccnz {lab}", f"{ret}:"])
        post = [f"v_add_f32 {lsum[qb]}, {lsum[qb]}, {ts[qb]}" for qb in range(NQB)]
        r = [f"{lab}:", "s_nop 15"]
        for qb in range(NQB):
            r += rowmax(t0, t1, Sq(par, qb))
            r += [f"v_max_f32 {t0}, 0, {t0}", f"v_exp_f32 {t1}, -{t0}", "s_nop 0",
                  f"v_mul_f32 {lsum[qb]}, {lsum[qb]}, {t1}"]
            for i in range(32):
                o = O[qb * 32 + i]
                if acc:
                    tt = tmp[2 + i % 4]
                    r += [f"v_accvgpr_read_b32 {tt}, {o}", f"v_mul_f32 {tt}, {tt}, {t1}",
                          f"v_accvgpr_write_b32 {o}, {tt}"]
                else:
                    r.append(f"v_mul_f32 {o}, {o}, {t1}")
            for blk in (negm(qb), Sq(par, qb), Sq(par ^ 1, qb)):
                for i in range(blk.n):
                    r.append(f"v_sub_f32 {blk[i]}, {blk[i]}, {t0}")
        r += sm_compute(par) + ["s_nop 1", f"s_branch {ret}"]
        rare_blocks.setdefault(tag, r)
        return comp, ops, post

    def build(nbodies, last_special):
        items, groups, vms, scal = [], [], [], []
        nst = 16 * NQB
        kvtile = lambda kind, tile: dma_tile(kind, {"K": tile, "V": 4 + tile}[kind], (kind, tile), tile * SLOT)
        zero1 = lambda r: f"v_accvgpr_write_b32 {r}, 0" if acc else f"v_mov_b32 {r}, 0"

        def conv(s):
            out = []
            k = 0
            for qb in range(NQB):
                for hf in range(2):
                    src = qacc(qb, 2 * s + hf)
                    for j in range(2):
                        e0, e1 = E[k % NE], E[(k + 1) % NE]
                        k += 2
                        out += [f"v_accvgpr_read_b32 {e0}, {src[2 * j]}", f"v_accvgpr_read_b32 {e1}, {src[2 * j + 1]}",
                                f"v_cvt_pk_bf16_f32 {Qf(qb, s)[2 * hf + j]}, {e0}, {e1}"]
            for qb in range(NQB):
                for j in range(2):
                    out.append(f"v_permlane16_swap_b32 {Qf(qb, s)[j]}, {Qf(qb, s)[2 + j]}")
            return out

        def modulate(s, ks):
            out = []
            k = 0
            for qb in range(NQB):
                for j in range(4):
                    r = Hf(s, ks, qb)[j]
                    e0, e1 = E[k % NE], E[(k + 1) % NE]
                    k += 2
                    out += [f"v_fma_mix_f32 {e0}, {r}, {CSC(ks)[2 * j]}, {CSH(ks)[2 * j]} op_sel:[0,0,0] op_sel_hi:[1,0,0]",
                            f"v_fma_mix_f32 {e1}, {r}, {CSC(ks)[2 * j + 1]}, {CSH(ks)[2 * j + 1]} op_sel:[1,0,0] op_sel_hi:[1,0,0]",
                            f"v_cvt_pk_bf16_f32 {r}, {e0}, {e1}"]
            return out

        def tab_reads(s, ks):
            return [Aux(f"ds_read_b128 {(CSC if w else CSH)(ks).sub(4 * e4, 4)}, {vTab} offset:{w * D * 4 + ((2 * s + ks) * 32 + 16 * e4) * 4}")
                    for w in range(2) for e4 in range(2)]

        hwait = lambda s: (lambda: f"s_waitcnt vmcnt({st.vmwait([('h', s)])})")
        late_aux = []
        for s in range(10):
            first = len(items)
            for db in range(8):
                frs = []
                for ks in range(2):
                    g = st.guard_wait([("W", s)]) if (ks == 0 and db == 0) else None
                    frs.append(tr_frag(WSLOT[s], ks, db, g))
                    frs[-1].nat = len(items) + ks * NQB
                order = [(qb, ks) for qb in range(NQB) for ks in range(2)] if chain else \
                        [(qb, ks) for ks in range(2) for qb in range(NQB)]
                for qb, ks in order:
                    c = "0" if (s == 0 and ks == 0) else str(qacc(qb, db))
                    items.append(Item(f"{MFMA16} {qacc(qb, db)}, {{A}}, {Hf(s, ks, qb)}, {c}", frs[ks]))
            ops = []
            if s == 0:
                ops += w_tile(2) + h_loads(3)
            if s + 3 < 10:
                ops += w_tile(s + 3)
            else:
                ops += kvtile(*[("K", 0), ("K", 1), ("V", 0)][s - 7])
            if s + 4 < 10:
                ops += h_loads(s + 4)
            vms.append((first + 1, first + nst - 1, ops))
            if s < 9:
                if s > 0:
                    items[first].need += late_aux
                rd = tab_reads(s + 1, 1)
                for x, g in zip(rd, (2, 3, 6, 7)):
                    items[first + g].aux.append(x)
                items[first + 32].need += rd
                groups.append((first + (16 if s == 0 else 0), first + 31, modulate(s + 1, 0)))
                groups.append((first + 32, first + 62, modulate(s + 1, 1)))
                if s + 2 < 10:
                    late_aux = tab_reads(s + 2, 0)
                    for x, g in zip(late_aux, (34, 35, 38, 39)):
                        items[first + g].aux.append(x)
                    scal.append((hwait(s + 2), first + 60, first + 62))
            if s == 9:
                q4 = nst // 4
                for cs_ in range(3):
                    groups.append((first + (cs_ + 1) * q4 + 5, min(first + (cs_ + 2) * q4 + 4, first + nst - 1), conv(cs_)))
        items[-1].block += conv(3) + [
            f"s_mov_b32 s{s_koff}, {4 * SLOT}", f"s_mov_b32 s{s_voff}, {2 * SLOT}",
            f"s_mov_b32 s{s_koff2}, {4 * SLOT + 8192}", f"s_mov_b32 s{s_voff2}, {2 * SLOT + 8192}",
            f"s_mov_b32 s{s_cnt}, 8"]
        head_aux = tab_reads(0, 0) + tab_reads(0, 1)
        head_aux2 = tab_reads(1, 0)
        head_block = modulate(0, 0) + modulate(0, 1)

        def qk(unit, kslot, guard=None, first=False, phantom=False):
            par = unit % 2
            for kb in range(2):
                frs = []
                for s in range(4):
                    frs.append(k_frag(kslot, unit % 2, kb, s, guard if (s == 0 and kb == 0) else None))
                    frs[-1].nat = len(items) + s * NQB
                order = [(qb, s) for qb in range(NQB) for s in range(4)] if chain else \
                        [(qb, s) for s in range(4) for qb in range(NQB)]
                for qb, s in order:
                    c = ("0" if first else str(negm(qb))) if s == 0 else str(Sb(par, qb, kb))
                    items.append(Item(f"{MFMA16} {Sb(par, qb, kb)}, {{A}}, {Qf(qb, s)}, {c}", frs[s], phantom))

        def pv(unit, vslot):
            par = unit % 2
            for db in range(8):
                fr = tr_frag(vslot, unit % 2, db)
                if "pv32" in abl:
                    for qh in range(2):
                        o = O.sub((qh * 4 + db % 4) * 16, 16)
                        items.append(Item(f"v_mfma_f32_32x32x16_bf16 {o}, {{A}}, {Pb(par, 2 * qh + db // 4)}, {o}", fr))
                        items.append(Item(None, fr))
                        items[-1].cont = True
                    continue
                for qb in range(NQB):
                    c = "0" if unit == 0 else str(Ob(qb, db))
                    items.append(Item(f"{MFMA16} {Ob(qb, db)}, {{A}}, {Pb(par, qb)}, {c}", fr))

        def add_sm(g0, par, tag, post):
            comp, (cvts, br), post2 = sm_ops(par, tag)
            g1 = len(items) - 1
            if "pv32" in abl:
                sw = lambda x: [f"v_permlane16_swap_b32 {Pb(par, 2 * x)[j]}, {Pb(par, 2 * x + 1)[j]}" for j in range(4)]
                k = len(comp) * 5 // 8
                comp = comp[:k] + sw(0) + comp[k:]
                groups.append((g0, g1 - 3, post + comp))
                items[g1 - 2].valu += cvts
                items[g1 - 1].sc += br
                items[g1].valu += sw(1)
                return post2
            groups.append((g0, g1 - 2, post + comp))
            items[g1 - 1].valu += cvts[:2]
            items[g1].sc += br
            items[g1].valu += cvts[2:]
            return post2

        g0 = len(items)
        qk(0, 0, st.guard_wait([("K", 0)]), first=True)
        groups.append((g0, len(items) - 1, [f"v_mov_b32 {lsum[qb]}, 0" for qb in range(NQB)]))
        vms.append((g0 + 1, len(items) - 1, kvtile("K", 2) + kvtile("V", 1)))
        g0 = len(items)
        qk(1, 0, first=True)
        vms.append((g0 + 1, g0 + 4 * NQB, kvtile("K", 3)))
        rm = [rowmax(tmp[qb], E[qb], Sq(0, qb)) for qb in range(NQB)]
        init = [rm[qb][i] for i in range(len(rm[0])) for qb in range(NQB)]
        for qb in range(NQB):
            init += [f"v_sub_f32 {Sq(0, qb)[i]}, {Sq(0, qb)[i]}, {tmp[qb]}" for i in range(8)]
        for qb in range(NQB):
            init += [f"v_sub_f32 {negm(qb)[i]}, 0, {tmp[qb]}" for i in range(4)]
        groups.append((g0 + 5, len(items) - 1, init))
        sj = []
        for u in range(NSJ):
            for i in range(4):
                sj.append(VmOp(f"buffer_load_dwordx4 {vSj}, s[{68 + 4 * u}:{71 + 4 * u}], s{s_t0} offen lds", "sj",
                               [f"s_add_u32 m0, s{s_sjl}, {8 * SLOT + u * 4096 + i * 1024}",
                                f"s_mov_b32 s{s_t0}, {i * 8 * D * 2}"]))
        vms.append((g0 + 4 * NQB + 2, len(items) - 1, sj))
        blk = [f"v_add_u32 {vWhi[i]}, s{s_sjl}, {vWhi[i]}" for i in range(4)] + sm_compute(0)
        for qb in range(NQB):
            blk += [f"v_sub_f32 {Sq(1, qb)[i]}, {Sq(1, qb)[i]}, {tmp[qb]}" for i in range(8)]
        items[-1].block += blk
        post = [f"v_add_f32 {lsum[qb]}, {lsum[qb]}, {ts[qb]}" for qb in range(NQB)]
        marks = []
        nper = 32 * NQB
        for T in range(nbodies):
            last = last_special and T == nbodies - 1
            marks.append(len(items))
            b0 = len(items)
            if T == 0:
                guard = st.guard_wait([("K", 1), ("V", 0)])
            else:
                guard = lambda: f"s_waitcnt vmcnt({2 * 16 // NW})"
            ks_, vs_ = (T + 1) % 4, 4 + T % 4
            tag = ("t" if last else "z" if T == 0 else "b") + str(T % 4)
            g0 = len(items)
            qk(2 * T + 2, ks_, guard, phantom=last)
            pv(2 * T, vs_)
            post = add_sm(g0, 1, tag + "a", post)
            g0 = len(items)
            qk(2 * T + 3, ks_, phantom=last)
            last_k_use = len(items) - 1
            pv(2 * T + 1, vs_)
            if last:
                groups.append((g0, len(items) - 1, post))
                junk = Q.sub(Q.n - 4, 4)
                pf = []
                for i in range(5):
                    pf.append(VmOp(f"buffer_load_dwordx4 {junk}, {vHo}, {sr(sW, 4)}, s{s_t0} offen", "pf",
                                   [f"s_add_u32 s{s_t0}, s{s_voff}, {i * 1024}"]))
                p0 = b0 + 8 * NQB
                if sj_wo:
                    vms.append((p0 + 1, p0 + 8 * NQB - 4, pf))
                else:
                    pfo = [VmOp(f"buffer_load_dwordx4 {junk}, {vHo}, {sr(sK, 4)}, s{s_t0} offen", "pf",
                                [f"s_add_u32 s{s_t0}, s{s_koff}, {i * 1024}"]) for i in range(10)]
                    vms.append((p0 + 1, p0 + 8 * NQB - 4, pfo))
                    vms.append((p0 + 16 * NQB + 1, p0 + 24 * NQB - 2, pf))
            else:
                post = add_sm(g0, 0, tag + "b", post)
                assert last_k_use < b0 + nper - LA - 2
                dm = dma_tile("K", T % 4, ("x", T)) + dma_tile("V", 4 + (T + 2) % 4, ("x", T))
                upd = [f"s_add_u32 s{s_koff}, s{s_koff}, {SLOT}", f"s_add_u32 s{s_voff}, s{s_voff}, {SLOT}"]
                if NW == 4:
                    upd += [f"s_add_u32 s{s_koff2}, s{s_koff2}, {SLOT}", f"s_add_u32 s{s_voff2}, s{s_voff2}, {SLOT}"]
                vms.append((b0 + 2, b0 + nper - LA - 3, dm))
                scal += [(u, b0 + nper - LA + 1, b0 + nper - 2) for u in upd]
        marks.append(len(items))
        for g in (0, 3 * nst, 7 * nst, 10 * nst - 2, marks[0] - 1):
            items[g].block.append("; STAMP")
        st.layout(items, marks[-2] if last_special else None)
        st.head.aux += head_aux
        st.head.need += head_aux
        st.head.block += head_block
        for x in head_aux2[:2]:
            items[0].aux.append(x)
        for x in head_aux2[2:]:
            items[1].aux.insert(0, x)
        items[16].need += head_aux2
        items[14].sc.append(hwait(1))
        gb = marks[0] - LA
        assert "s_barrier" in items[gb].sc
        items[gb].sc.insert(items[gb].sc.index("s_barrier"), "s_waitcnt lgkmcnt(0)")
        for g0, g1, ops in vms:
            st.place_vm(items, g0, g1, ops)
        for l, lo, hi in scal:
            st.place_scalar(items, l, lo, hi)
        return items, groups, marks

    head_lines = list(a.lines)
    vm0 = list(st.vm.ops)
    items, groups, marks = build(10, False)
    segs = st.emit(items, groups, marks)
    print("estimated cycles: prologue", sum(st.est[:marks[0]]), "body", sum(st.est[marks[1]:marks[2]]))
    L = a.lines
    pre = L[:segs[0]]
    body = [L[segs[i]:segs[i + 1]] for i in range(9)]
    for i in range(1, 5):
        assert body[i] == body[i + 4], f"loop body {i} is not periodic"
    a.lines = list(head_lines)
    st.vm.ops = list(vm0)
    items, groups, marks = build(4, True)
    segs2 = st.emit(items, groups, marks)
    L2 = a.lines
    assert L2[:segs2[3]] == L[:segs[3]]
    tail = L2[segs2[3]:segs2[4]]

    def stamp():
        if timing != "series":
            return
        a(f"""
        s_memtime s[{s_tm+4}:{s_tm+5}]
        s_memrealtime s[{s_tm+6}:{s_tm+7}]
        s_waitcnt lgkmcnt(0)
        s_sub_u32 s{s_tm+4}, s{s_tm+4}, s{s_tm}
        s_sub_u32 s{s_tm+6}, s{s_tm+6}, s{s_tm+2}
        v_mov_b32 {t2}, s{s_tm+4}
        v_mov_b32 {t3}, s{s_tm+6}
        s_lshl_b32 s{s_t0}, s2, 7
        s_lshl_b32 s{s_t1}, s{s_cnt}, 3
        s_add_u32 s{s_t0}, s{s_t0}, s{s_t1}
        v_mov_b32 {t4}, s{s_t0}
        buffer_store_dword {t2}, {t4}, s[52:55], 0 offen
        buffer_store_dword {t3}, {t4}, s[52:55], 0 offen offset:4
        """)

    def drop(pref):
        return [[l for l in b if not l.strip().startswith(pref)] for b in body]
    if "nosm" in abl:
        body = drop(("v_exp", "v_add_f32", "v_cvt_pk", "v_max", "v_cmp", "s_cbranch_vcc"))
    if "nods" in abl:
        body = drop(("ds_read", "s_waitcnt lgkm"))
    if "nodma" in abl:
        body = drop(("buffer_load", "s_add_u32 m0"))
    if "nobar" in abl:
        body = drop(("s_barrier",))
    if "nobr" in abl:
        body = drop(("s_cbranch_vcc",))
    if "nowait" in abl:
        body = drop(("s_waitcnt lgkm",))
    if "nomfma" in abl:
        body = drop(("v_mfma", "s_cbranch_vcc"))

    a.lines = list(pre) + body[0]
    a.label(f"{name}_loop")
    stamp()
    a(f"""
    s_cmp_eq_u32 s{s_cnt}, 7
    s_cbranch_scc1 {name}_sidejob
    {name}_sideret:
    """)
    a.extend(body[1] + body[2])
    a(f"""
    s_sub_u32 s{s_cnt}, s{s_cnt}, 1
    s_cmp_eq_u32 s{s_cnt}, 0
    s_cbranch_scc1 {name}_tail
    """)
    a.extend(body[3] + body[4])
    a(f"s_branch {name}_loop")
    a.label(f"{name}_tail")
    stamp()
    a(f"""
    s_mov_b32 s{sK}, s56
    s_mov_b32 s{sK+1}, s57
    s_mov_b32 s{sK+2}, {H * DH * D * 2}
    s_lshr_b32 s{s_koff}, s{s_head}, 3
    s_lshl_b32 s{s_koff}, s{s_koff}, 5
    s_lshr_b32 s{s_t0}, s2, 3
    s_add_u32 s{s_koff}, s{s_koff}, s{s_t0}
    s_lshl_b32 s{s_koff}, s{s_koff}, 2
    s_add_u32 s{s_koff}, s{s_koff}, s{s_wave}
    s_mul_i32 s{s_koff}, s{s_koff}, 10240
    s_and_b32 s{s_t0}, s2, 1
    s_cmp_eq_u32 s{s_t0}, 0
    s_cselect_b32 s{sW}, s60, s62
    s_cselect_b32 s{sW+1}, s61, s63
    s_mov_b32 s{sW+2}, {D * F * 2}
    s_lshr_b32 s{s_voff}, s2, 1
    s_lshl_b32 s{s_voff}, s{s_voff}, 2
    s_add_u32 s{s_voff}, s{s_voff}, s{s_wave}
    s_mul_i32 s{s_voff}, s{s_voff}, 5120
    s_lshr_b32 s{s_t0}, s2, 3
    s_lshl_b32 s{s_t0}, s{s_t0}, 12
    s_add_u32 s{s_t0}, s{s_t0}, s{s_wb}
    v_add_u32 {t3}, s{s_t0}, {vHo}
    v_min_u32 {t3}, {"64" if timing else "down_kernel_end-oproj_kernel-16"}, {t3}
    """)
    if tlbw:
        a(f"""
        s_load_dwordx2 s[68:69], s[0:1], {KA_OUT}
        v_lshlrev_b32 {t4}, 20, v0
        v_lshlrev_b32 {t5}, 16, v0
        s_mov_b32 s82, {WS_END - WS_MOD}
        s_mov_b32 s70, {S * D * 2}
        s_mov_b32 s71, 0x20000
        buffer_load_dword {Q[Q.n - 5]}, {t4}, s[80:83], 0 offen
        s_waitcnt lgkmcnt(0)
        buffer_load_dword {Q[Q.n - 5]}, {t5}, s[68:71], 0 offen
        """)
    from small import code_prefetch_addr
    if not timing:
        code_prefetch_addr(a, "oproj_kernel", 58, tmp.sub(1, 2), t3)
        a(f"global_load_dwordx4 {Q.sub(Q.n - 4, 4)}, {tmp.sub(1, 2)}, off")
    a.extend(tail)
    a.lines.append("; STAMP")
    a(f"""
    s_lshr_b32 s{s_t1}, s{s_tb}, 2
    s_lshl_b32 s{s_t1}, s{s_t1}, 19
    s_and_b32 s{s_t0}, s{s_tb}, 3
    s_lshl_b32 s{s_t0}, s{s_t0}, 10
    s_add_u32 s{s_t1}, s{s_t1}, s{s_t0}
    s_lshl_b32 s{s_t0}, s{s_head}, 14
    s_add_u32 s{s_t1}, s{s_t1}, s{s_t0}
    """)
    for qb in range(NQB):
        for l in xlane("v_add_f32", lsum[qb], tmp[qb]):
            a(l)
    for qb in range(NQB):
        a(f"v_rcp_f32 {lsum[qb]}, {lsum[qb]}")
    RL = ACCQ.sub(0, 8)
    for qb in range(NQB):
        a(f"v_mov_b32 {RL[2 * qb]}, {lsum[qb]}")
        a(f"v_mov_b32 {RL[2 * qb + 1]}, {lsum[qb]}")
    k = 0
    for i in range(4):
        a(f"s_add_u32 s{s_t0}, s{s_t1}, {i * 4096}")
        for qb in range(NQB):
            dst = Q.sub(4 * (k % 8), 4)
            T = ACCQ.sub(8 + 8 * (k % 4), 8)
            k += 1
            for j in range(8):
                a(f"v_accvgpr_read_b32 {T[j]}, {Ob(qb, 2 * i + j // 4)[j % 4]}")
            for j in range(4):
                a(f"v_pk_mul_f32 {T.sub(2 * j, 2)}, {T.sub(2 * j, 2)}, {RL.sub(2 * qb, 2)}")
            for j in range(4):
                a(f"v_cvt_pk_bf16_f32 {dst[j]}, {T[2 * j]}, {T[2 * j + 1]}")
            a(f"buffer_store_dwordx4 {dst}, {vHo}, {sr(sO, 4)}, s{s_t0} offen offset:{qb * 1024}{' sc1' if osc else ''}")
    if timing:
        timing_tail(a, s_tm, s_wave, EQ.sub(0, 2), t2)
    a.label(f"{name}_end")
    a("s_endpgm")
    a.label(f"{name}_sidejob")
    a("s_waitcnt lgkmcnt(4)")
    for u in range(NSJ):
        for j in range(4):
            for e4 in range(2):
                a(f"ds_read_b64_tr_b16 {SJ.sub(16 * u + 4 * j + 2 * e4, 2)}, {vWhi[j]} offset:{u * 4096 + e4 * 2048}")
        a("s_waitcnt lgkmcnt(0)")
        for j in range(4):
            a(f"buffer_store_dwordx4 {SJ.sub(16 * u + 4 * j, 4)}, {vHo}, s[76:79], s{s_sjd + u} offen offset:{j * 1024}")
    a(f"s_branch {name}_sideret")
    a.label(f"{name}_hotend")
    for tag, r in rare_blocks.items():
        for l in r:
            a(l)
    if acc:
        return a.lines, 256 + aa.p, 256, 64 * NW
    return a.lines, va.p, (va.p + 3) // 4 * 4, 64 * NW
```

```python
from asmlib import Asm, Alloc, Reg, sr, VmTracker
from stream import *
from layout import *
from small import srd, relayout_body
from attn16 import timing_head, timing_tail, tr_addr_setup, tr_dma_col


def gen_gemmn(name, NKS, x_off, w_off, res_ka, res_off, out_ka, out_off, gate_idx, PD=6, timing=False):
    a = Asm()
    steps = (NKS + 3) // 4
    va = Alloc(1, 256)
    t = va.get(7)
    vX = va.get(4)
    vW = va.get(2)
    vR = va.get(1)
    vG = va.get(1)
    vL = va.get(4)
    RES = va.get(10, 2)
    ring = va.get(36 * PD, 4)
    aa = Alloc(0, 256, acc=True)
    ACC = aa.get(80, 4)
    G = aa.get(20, 4)
    acc = lambda tl, j: ACC.sub((tl * 5 + j) * 4, 4)
    Xf = lambda i, tl: ring.sub((i % PD) * 36 + tl * 4, 4)
    Wf = lambda i, j: ring.sub((i % PD) * 36 + 16 + j * 4, 4)
    sX, sW, sR, sG, sO = 8, 12, 16, 20, 24
    s_wave, s_tb, s_nb, s_t0, s_t1, s_xo, s_wo = range(28, 35)
    a(f"""
    s_cmp_ge_u32 s2, 256
    s_cbranch_scc1 {name}_end
    s_load_dwordx2 s[4:5], s[0:1], {KA_WS}
    s_load_dwordx2 s[6:7], s[0:1], {res_ka}
    s_load_dwordx2 s[36:37], s[0:1], {out_ka}
    """)
    if timing:
        timing_head(a, 44)
    a(f"""
    v_lshrrev_b32 {t[0]}, 6, v0
    v_and_b32 v0, 63, v0
    v_readfirstlane_b32 s{s_wave}, {t[0]}
    s_and_b32 s{s_tb}, s2, 1
    s_lshl_b32 s{s_tb}, s{s_tb}, 4
    s_bfe_u32 s{s_t0}, s2, 0x10001
    s_lshl_b32 s{s_t0}, s{s_t0}, 3
    s_add_u32 s{s_tb}, s{s_tb}, s{s_t0}
    s_bfe_u32 s{s_t0}, s2, 0x30003
    s_add_u32 s{s_tb}, s{s_tb}, s{s_t0}
    s_bfe_u32 s{s_nb}, s2, 0x10002
    s_lshl_b32 s{s_nb}, s{s_nb}, 2
    s_lshr_b32 s{s_t0}, s2, 6
    s_add_u32 s{s_nb}, s{s_nb}, s{s_t0}
    v_lshlrev_b32 {vW[0]}, 4, v0
    v_add_u32 {vW[1]}, 4096, {vW[0]}
    """)
    for tl in range(4):
        a(f"""
        v_add_u32 {t[1]}, {tl}, {t[0]}
        v_and_b32 {t[1]}, 3, {t[1]}
        v_lshl_add_u32 {vX[tl]}, {t[1]}, 10, {vW[0]}
        v_mul_u32_u24 {t[1]}, {15 * 1024}, {t[1]}
        v_add_u32 {vL[tl]}, {t[1]}, {vW[0]}
        """)
    a(f"""
    s_mul_i32 s{s_t0}, s{s_tb}, {NKS * 4096}
    s_mul_i32 s{s_t1}, s{s_nb}, {NKS * 5120}
    s_lshl_b32 s{s_xo}, s{s_wave}, 12
    s_mul_i32 s{s_wo}, s{s_wave}, 5120
    s_waitcnt lgkmcnt(0)
    """)
    srd(a, sX, 4, off_lines_reg=s_t0, off_imm=x_off, size=NKS * 4096)
    srd(a, sW, 4, off_lines_reg=s_t1, off_imm=w_off, size=NKS * 5120)
    vm = VmTracker()

    def loads(i):
        out = []
        for j in range(5):
            out.append(f"buffer_load_dwordx4 {Wf(i, j)}, {vW[j // 4]}, {sr(sW, 4)}, s{s_wo} offen offset:{(j % 4) * 1024}")
        for tl in range(4):
            out.append(f"buffer_load_dwordx4 {Xf(i, tl)}, {vX[tl]}, {sr(sX, 4)}, s{s_xo} offen")
        return out
    adv = [f"s_add_u32 s{s_xo}, s{s_xo}, {4 * 4096}", f"s_add_u32 s{s_wo}, s{s_wo}, {4 * 5120}"]
    for i in range(min(PD - 1, steps)):
        for l in loads(i):
            a(l)
            vm.issue(i)
        for l in adv:
            a(l)
        if i == 0:
            a(f"""
            v_and_b32 {t[1]}, 15, v0
            v_lshl_add_u32 {t[1]}, {t[0]}, 4, {t[1]}
            v_mul_u32_u24 {t[1]}, {D * 2}, {t[1]}
            v_lshrrev_b32 {t[2]}, 4, v0
            v_mul_u32_u24 {t[2]}, 40, {t[2]}
            v_add_u32 {vR}, {t[1]}, {t[2]}
            v_lshlrev_b32 {vG}, 1, {t[2]}
            s_mul_i32 s{s_t0}, s{s_tb}, {64 * D * 2}
            s_mul_i32 s{s_t1}, s{s_nb}, 160
            s_add_u32 s{s_t0}, s{s_t0}, s{s_t1}
            s_sub_u32 s38, {64 * D * 2}, s{s_t1}
            """)
            srd(a, sR, 6, off_lines_reg=s_t0, off_imm=res_off, size_reg=38)
            srd(a, sO, 36, off_lines_reg=s_t0, off_imm=out_off, size_reg=38)
            a(f"s_mul_i32 s{s_t1}, s{s_nb}, 320")
            srd(a, sG, 4, off_lines_reg=s_t1, off_imm=WS_MOD + gate_idx * D * 4, size=320)
    for i in range(steps):
        n = vm.count_after(lambda tg: tg == i)
        if i == 0:
            a.lines.append("; STAMP issued")
        a(f"s_waitcnt vmcnt({n})")
        if i == 0 or i == steps // 2:
            a.lines.append("; STAMP data")
        pend = []
        if i + PD - 1 < steps:
            pend = [(l, i + PD - 1) for l in loads(i + PD - 1)]
        elif i + PD - 1 == steps:
            pend = [(f"buffer_load_dwordx2 {RES.sub(2 * j, 2)}, {vR}, {sr(sR, 4)}, 0 offen offset:{8 * j}", "e") for j in range(5)]
            pend += [(f"buffer_load_dwordx4 {G.sub(4 * j, 4)}, {vG}, {sr(sG, 4)}, 0 offen offset:{16 * j}", "e") for j in range(5)]
        k = 0
        for j in range(5):
            for tl in range(4):
                c = "0" if i == 0 else str(acc(tl, j))
                a(f"{MFMA16} {acc(tl, j)}, {Wf(i, j)}, {Xf(i, tl)}, {c}")
                if k % 2 == 0 and pend:
                    l, tg = pend.pop(0)
                    a(l)
                    vm.issue(tg)
                k += 1
        assert not pend
        if i + PD - 1 < steps:
            for l in adv:
                a(l)
    for tl in range(1, 4):
        for j in range(5):
            a(f"ds_write_b128 {vL[tl]}, {acc(tl, j)} offset:{((tl - 1) * 5 + j) * 1024}")
    V = ring.sub(0, 20)
    Pt = ring.sub(20, 60)
    for i in range(20):
        a(f"v_accvgpr_read_b32 {V[i]}, {ACC[i]}")
    a("s_waitcnt lgkmcnt(0)")
    a("s_barrier")
    for s in range(3):
        for j in range(5):
            a(f"ds_read_b128 {Pt.sub((s * 5 + j) * 4, 4)}, {vL[0]} offset:{(s * 5 + j) * 1024}")
    Gv = ring.sub(80, 20)
    a("s_waitcnt vmcnt(0)")
    for i in range(20):
        a(f"v_accvgpr_read_b32 {Gv[i]}, {G[i]}")
    for s in range(3):
        a(f"s_waitcnt lgkmcnt({10 - 5 * s})")
        for i in range(20):
            a(f"v_add_f32 {V[i]}, {V[i]}, {Pt[s * 20 + i]}")
    for j in range(5):
        for p in range(2):
            r = RES[2 * j + p]
            i0 = 4 * j + 2 * p
            a(f"v_lshlrev_b32 {t[1]}, 16, {r}")
            a(f"v_and_b32 {t[2]}, 0xffff0000, {r}")
            a(f"v_fmac_f32 {t[1]}, {V[i0]}, {Gv[i0]}")
            a(f"v_fmac_f32 {t[2]}, {V[i0 + 1]}, {Gv[i0 + 1]}")
            a(f"v_cvt_pk_bf16_f32 {r}, {t[1]}, {t[2]}")
        a(f"buffer_store_dwordx2 {RES.sub(2 * j, 2)}, {vR}, {sr(sO, 4)}, 0 offen offset:{8 * j}")
    if timing:
        timing_tail(a, 44, s_wave, ring.sub(0, 2), t[3])
    a.label(f"{name}_end")
    a("s_endpgm")
    return (name, a.lines, 256 + aa.p, 256, 256, 256, 61440)


def gen_gateup(name, la_frags=7, timing=False):
    NQB, NW, SLOT = 4, 4, 16384
    a = Asm()
    va = Alloc(1, 256)
    aa = Alloc(0, 256, acc=True)
    t = va.get(7)
    vA = [va.get(4) for _ in range(3)]
    vWd, vHo = va.get(1), va.get(1)
    ACC = va.get(128, 4)
    OUT = va.get(32, 4)
    Hr = aa.get(128, 4)
    FR = aa.get(64, 4)
    acc = lambda qb, db: ACC.sub((qb * 8 + db) * 4, 4)
    Hf = lambda stage, ks, qb: Hr.sub((((stage % 4) * 2 + ks) * NQB + qb) * 4, 4)
    sG, sU, sH, sO = 8, 12, 16, 20
    s_wave, s_wb, s_fb, s_tb, s_t0, s_t1 = range(28, 34)
    st = Stream(a, FR, 16, la_frags * NQB, 4)
    RS = F * 2
    a(f"""
    s_cmp_ge_u32 s2, 256
    s_cbranch_scc1 {name}_end
    s_load_dwordx4 s[4:7], s[0:1], {KA_WG}
    s_load_dwordx2 s[24:25], s[0:1], {KA_WS}
    """)
    if timing:
        timing_head(a, 44)
    a(f"""
    v_lshrrev_b32 {t[0]}, 6, v0
    v_and_b32 v0, 63, v0
    v_readfirstlane_b32 s{s_wave}, {t[0]}
    s_and_b32 s{s_tb}, s2, 1
    s_lshl_b32 s{s_tb}, s{s_tb}, 2
    s_bfe_u32 s{s_t0}, s2, 0x20003
    s_add_u32 s{s_tb}, s{s_tb}, s{s_t0}
    s_bfe_u32 s{s_fb}, s2, 0x20001
    s_mul_i32 s{s_fb}, s{s_fb}, 7
    s_lshr_b32 s{s_t0}, s2, 5
    s_add_u32 s{s_fb}, s{s_fb}, s{s_t0}
    s_cmp_eq_u32 s{s_t0}, 7
    s_cbranch_scc1 {name}_fin
    s_cmp_ge_u32 s{s_fb}, 27
    s_cbranch_scc1 {name}_fin
    """)
    tr_dma_col(a, t[3], [t[1], t[2]])
    a(f"""
    s_lshl_b32 s{s_tb}, s{s_tb}, 2
    s_add_u32 s{s_tb}, s{s_tb}, s{s_wave}
    s_lshl_b32 s{s_wb}, s{s_wave}, 10
    v_lshrrev_b32 {t[1]}, 3, v0
    v_lshl_add_u32 {t[1]}, {t[0]}, 3, {t[1]}
    v_mul_u32_u24 {t[1]}, {RS}, {t[1]}
    v_add_u32 {vWd}, {t[1]}, {t[3]}
    v_lshlrev_b32 {vHo}, 4, v0
    s_lshl_b32 s{s_t0}, s{s_fb}, 7
    s_sub_u32 s34, {D * RS}, s{s_t0}
    s_mul_i32 s{s_t1}, s{s_tb}, {20 * 4096}
    s_waitcnt lgkmcnt(0)
    """)
    srd(a, sG, 4, off_lines_reg=s_t0, size_reg=34)
    srd(a, sU, 6, off_lines_reg=s_t0, size_reg=34)
    srd(a, sH, 24, off_lines_reg=s_t1, off_imm=WS_H2, size=20 * 4096)

    def w_tile(s):
        ops = []
        for rg in range(2):
            for half in range(2):
                n = rg * NW + half * 8
                pre = [f"s_add_u32 m0, s{s_wb}, {s * SLOT + n * 1024}",
                       f"s_mov_b32 s{s_t0}, {(s * 64 + rg * 32) * RS}"]
                ops.append(VmOp(f"buffer_load_dwordx4 {vWd}, {sr(sU if half else sG, 4)}, s{s_t0} offen lds", ("W", s), pre))
        return ops

    def h_loads(stage):
        ops = []
        for ks in range(2):
            for qb in range(NQB):
                pre = [f"s_mov_b32 s{s_t1}, {(stage * 2 + ks) * 4096}"] if qb == 0 else []
                ops.append(VmOp(f"buffer_load_dwordx4 {Hf(stage, ks, qb)}, {vHo}, {sr(sH, 4)}, s{s_t1} offen offset:{qb * 1024}",
                                ("h", stage), pre))
        return ops
    for s in range(2):
        for op in w_tile(s) + h_loads(s):
            st.emit_vm(op)
    tr_addr_setup(a, vA[0], [t[1], t[2], t[3]])
    for i in range(4):
        a(f"v_add_u32 {vA[1][i]}, 0x10000, {vA[0][i]}")
        a(f"v_add_u32 {vA[2][i]}, 0x20000, {vA[0][i]}")
    a(f"""
    s_mul_i32 s{s_t0}, s{s_tb}, {54 * 4096}
    s_lshl_b32 s34, s{s_fb}, 13
    s_add_u32 s{s_t0}, s{s_t0}, s34
    """)
    srd(a, sO, 24, off_lines_reg=s_t0, off_imm=WS_ACT, size=8192)

    def tr_frag(slot, u, db, guard=None):
        base = slot * SLOT
        ar, rel = vA[base >> 16], base & 0xffff
        return Frag([("ds_read_b64_tr_b16", 2 * e4, 2, ar[db % 4], rel + (db // 4) * 8192 + (32 * u + 16 * e4) * 128)
                     for e4 in range(2)], guard)
    items, vms = [], []
    for s in range(10):
        first = len(items)
        for db in (0, 4, 1, 5, 2, 6, 3, 7):
            frs = []
            for ks in range(2):
                g = st.guard_wait([("W", s), ("h", s)]) if (ks == 0 and db == 0) else None
                frs.append(tr_frag(s, ks, db, g))
                frs[-1].nat = len(items) + ks * NQB
            for qb in range(NQB):
                for ks in range(2):
                    c = "0" if (s == 0 and ks == 0) else str(acc(qb, db))
                    items.append(Item(f"{MFMA16} {acc(qb, db)}, {{A}}, {Hf(s, ks, qb)}, {c}", frs[ks]))
        ops = []
        if s == 0:
            ops += w_tile(2) + h_loads(2)
        if s + 3 < 10:
            ops += w_tile(s + 3) + h_loads(s + 3)
        if ops:
            vms.append((first + 1, first + 63, ops))
    st.layout(items)
    for g0, g1, ops in vms:
        st.place_vm(items, g0, g1, ops)
    for g in (0, 64, 192, 320, 639):
        items[g].block.append("; STAMP")
    a.lines.append("; STAMP")

    def act_ops(db):
        out = []
        for qb in range(NQB):
            dst = OUT.sub(((db // 2) * 4 + qb) * 4, 4)
            gt, up = acc(qb, db), acc(qb, 4 + db)
            out += [f"v_max_f32 {gt[r]}, 0, {gt[r]}" for r in range(4)]
            out += [f"v_mul_f32 {gt[r]}, {gt[r]}, {up[r]}" for r in range(4)]
            out += [f"v_cvt_pk_bf16_f32 {dst[2 * (db % 2) + j]}, {gt[2 * j]}, {gt[2 * j + 1]}" for j in range(2)]
        return out
    l0 = len(items) - 64
    groups = [(l0 + 16 * (db + 1) + 5, min(l0 + 16 * (db + 2) + 4, len(items) - 1), act_ops(db)[:24 if db < 2 else 20])
              for db in range(3)]
    st.emit(items, groups)
    for l in act_ops(0)[24:] + act_ops(1)[24:]:
        a(l)
    for i in range(2):
        a(f"s_mov_b32 s{s_t0}, {i * 4096}")
        if i == 1:
            for l in act_ops(2)[20:] + act_ops(3):
                a(l)
        for qb in range(NQB):
            dst = OUT.sub((i * 4 + qb) * 4, 4)
            a(f"buffer_store_dwordx4 {dst}, {vHo}, {sr(sO, 4)}, s{s_t0} offen offset:{qb * 1024} sc1")
    a.label(f"{name}_fin")
    a.label(f"{name}_end")
    a("s_endpgm")
    return (name, a.lines, 256 + aa.p, 256, 256, 256, 163840)


def gen_oproj(name, la_frags=8, NRING=6, XD=4, timing=False, sc1=True):
    NT, NB, NST = 2, 10, 16
    SL = 64 * 320
    a = Asm()
    va = Alloc(1, 256)
    t = va.get(7)
    vA = [va.get(2) for _ in range(2)]
    vWd = va.get(5)
    vHo = va.get(1)
    ACC = va.get(80, 4)
    Xr = va.get(XD * 16, 4)
    NFR = 12
    FR = va.get(4 * NFR, 4)
    acc = lambda tb, j: ACC.sub((tb * NB + j) * 4, 4)
    Xf = lambda stage, ks, tb: Xr.sub((((stage % XD) * 2 + ks) * NT + tb) * 4, 4)
    sW, sX, sO = 8, 12, 16
    s_wave, s_wb, s_hg, s_tb, s_nb, s_t0, s_t1 = range(28, 35)
    st = Stream(a, FR, NFR, la_frags * NT, 2)
    a(f"""
    s_cmp_ge_u32 s2, 256
    s_cbranch_scc1 {name}_end
    s_load_dwordx2 s[4:5], s[0:1], {KA_WO}
    s_load_dwordx2 s[6:7], s[0:1], {KA_WS}
    v_lshrrev_b32 {t[0]}, 6, v0
    v_readfirstlane_b32 s{s_wave}, {t[0]}
    s_bfe_u32 s{s_hg}, s2, 0x20001
    s_and_b32 s{s_tb}, s2, 1
    s_lshl_b32 s{s_tb}, s{s_tb}, 3
    s_bfe_u32 s{s_t0}, s2, 0x30003
    s_add_u32 s{s_tb}, s{s_tb}, s{s_t0}
    s_lshr_b32 s{s_nb}, s2, 6
    """)
    for i in range(5):
        a(f"""
        v_add_u32 {t[1]}, {256 * i}, v0
        v_mul_u32_u24 {t[2]}, 3277, {t[1]}
        v_lshrrev_b32 {t[2]}, 16, {t[2]}
        v_mul_u32_u24 {t[3]}, 20, {t[2]}
        v_sub_u32 {t[3]}, {t[1]}, {t[3]}
        v_bfe_u32 {t[4]}, {t[2]}, 2, 1
        v_lshlrev_b32 {t[4]}, 1, {t[4]}
        v_xor_b32 {t[3]}, {t[3]}, {t[4]}
        v_mul_u32_u24 {t[2]}, {D * 2}, {t[2]}
        v_lshl_add_u32 {vWd[i]}, {t[3]}, 4, {t[2]}
        """)
    assert all((p * 3277) >> 16 == p // 20 for p in range(1280))
    a(f"""
    v_and_b32 v0, 63, v0
    v_lshlrev_b32 {vHo}, 4, v0
    s_lshl_b32 s{s_wb}, s{s_wave}, 10
    s_mul_i32 s{s_t0}, s{s_hg}, {1024 * D * 2}
    s_mul_i32 s{s_t1}, s{s_nb}, 320
    s_add_u32 s{s_t0}, s{s_t0}, s{s_t1}
    s_sub_u32 s36, {1024 * D * 2}, s{s_t1}
    s_lshl_b32 s37, s{s_tb}, 1
    s_lshr_b32 s38, s{s_wave}, 1
    s_add_u32 s37, s37, s38
    s_and_b32 s38, s{s_wave}, 1
    s_lshl_b32 s38, s38, 11
    s_lshl_b32 s39, s37, 19
    s_lshl_b32 s40, s{s_hg}, 17
    s_add_u32 s39, s39, s40
    s_add_u32 s39, s39, s38
    s_sub_u32 s40, {32 * 4096}, s38
    s_waitcnt lgkmcnt(0)
    """)
    srd(a, sW, 4, off_lines_reg=s_t0, size_reg=36)
    srd(a, sX, 6, off_lines_reg=39, off_imm=WS_O, size_reg=40)

    def w_tile(s):
        ops = []
        for i in range(5):
            pre = [f"s_add_u32 m0, s{s_wb}, {(s % NRING) * SL + i * 4096}"]
            if i == 0:
                pre.append(f"s_mov_b32 s{s_t0}, {s * 64 * D * 2}")
            ops.append(VmOp(f"buffer_load_dwordx4 {vWd[i]}, {sr(sW, 4)}, s{s_t0} offen lds", ("W", s), pre))
        return ops

    def x_loads(s):
        ops = []
        for ks in range(2):
            for tb in range(NT):
                pre = [f"s_mov_b32 s{s_t1}, {(s * 2 + ks) * 4096}"] if tb == 0 else []
                ops.append(VmOp(f"buffer_load_dwordx4 {Xf(s, ks, tb)}, {vHo}, {sr(sX, 4)}, s{s_t1} offen offset:{tb * 1024}",
                                ("x", s), pre))
        return ops
    PF = XD - 1
    for s in range(PF):
        for op in w_tile(s) + x_loads(s):
            st.emit_vm(op)
    a(f"""
    v_lshrrev_b32 {t[1]}, 2, v0
    v_mul_u32_u24 {t[1]}, 320, {t[1]}
    v_and_b32 {t[2]}, 3, v0
    v_lshl_add_u32 {t[1]}, {t[2]}, 3, {t[1]}
    v_bfe_u32 {t[2]}, v0, 4, 1
    v_lshlrev_b32 {t[2]}, 5, {t[2]}
    v_add_u32 {vA[0][0]}, {t[1]}, {t[2]}
    v_xor_b32 {t[2]}, 32, {t[2]}
    v_add_u32 {vA[0][1]}, {t[1]}, {t[2]}
    v_add_u32 {vA[1][0]}, {3 * SL}, {vA[0][0]}
    v_add_u32 {vA[1][1]}, {3 * SL}, {vA[0][1]}
    s_mul_i32 s39, s37, {20 * 4096}
    s_mul_i32 s40, s{s_hg}, {PSTRIDE}
    s_add_u32 s39, s39, s40
    s_mul_i32 s40, s{s_nb}, {5 * 4096}
    s_add_u32 s39, s39, s40
    s_add_u32 s39, s39, s38
    s_sub_u32 s40, {5 * 4096}, s38
    """)
    srd(a, sO, 6, off_lines_reg=39, off_imm=WS_PART, size_reg=40)

    def tr_frag(s, ks, j, guard=None):
        slot = s % NRING
        ar, rel = vA[slot // 3], (slot % 3) * SL
        return Frag([("ds_read_b64_tr_b16", 2 * e4, 2, ar[j % 2], rel + (32 * ks + 16 * e4) * 320 + (j // 2) * 64)
                     for e4 in range(2)], guard)
    items, vms = [], []
    nst = 2 * NB * NT
    for s in range(NST):
        first = len(items)
        for ks in range(2):
            for j in range(NB):
                g = st.guard_wait([("W", s), ("x", s)]) if (ks == 0 and j == 0) else None
                fr = tr_frag(s, ks, j, g)
                for tb in range(NT):
                    c = "0" if (s == 0 and ks == 0) else str(acc(tb, j))
                    items.append(Item(f"{MFMA16} {acc(tb, j)}, {{A}}, {Xf(s, ks, tb)}, {c}", fr))
        if s + PF < NST:
            assert NRING >= PF + 2
            vms.append((first + 1, first + nst - 1, w_tile(s + PF) + x_loads(s + PF)))
    st.layout(items)
    for g0, g1, ops in vms:
        st.place_vm(items, g0, g1, ops)
    for g in (0, nst * 4, nst * 8, len(items) - 1):
        items[g].block.append("; STAMP")
    a.lines.append("; STAMP")
    st.emit(items, [])
    print(name, "estimated cycles", sum(st.est))
    k = 0
    for i in range(5):
        a(f"s_mov_b32 s{s_t0}, {i * 4096}")
        for tb in range(NT):
            dst = Xr.sub(4 * k, 4)
            k += 1
            for hf in range(2):
                src = acc(tb, 2 * i + hf)
                for j in range(2):
                    a(f"v_cvt_pk_bf16_f32 {dst[2 * hf + j]}, {src[2 * j]}, {src[2 * j + 1]}")
            a(f"buffer_store_dwordx4 {dst}, {vHo}, {sr(sO, 4)}, s{s_t0} offen offset:{tb * 1024}{' sc1' if sc1 else ''}")
    a.label(f"{name}_end")
    a("s_endpgm")
    return (name, a.lines, va.p, (va.p + 3) // 4 * 4, 256, 256, NRING * SL)


def gen_gemm_lds(name, kind, la_frags=None, NRING=None, PF=None, sc1=True):
    if kind == "oproj":
        NT, NB, KSS, NST, NKS = 2, 10, 2, 16, 32
        la_frags, NRING, PF = la_frags or 8, NRING or 6, PF or 3
    else:
        NT, NB, KSS, NST, NKS = 1, 5, 4, 14, 54
        la_frags, NRING, PF = la_frags or 10, NRING or 7, PF or 5
    SL = 20480
    XD = PF + 1
    a = Asm()
    va = Alloc(1, 256)
    t = va.get(7)
    vA = va.get(3)
    vWd = va.get(5)
    vHo = va.get(1)
    vR, vG = va.get(1), va.get(1)
    ACC = va.get(NT * NB * 4, 4)
    Xr = va.get(XD * 16, 4)
    NFR = 16 if kind == "oproj" else 15
    FR = va.get(4 * NFR, 4)
    if kind == "down":
        RES = va.get(10, 2)
        G = va.get(20, 4)
    acc = lambda tb, j: ACC.sub((tb * NB + j) * 4, 4)
    Xf = lambda stage, ks, tb: Xr.sub((((stage % XD) * KSS + ks) * NT + tb) * 4, 4)
    sW, sX, sO, sR, sG = 8, 12, 16, 20, 24
    s_wave, s_wb, s_hg, s_tb, s_nb, s_t0, s_t1 = range(28, 35)
    st = Stream(a, FR, NFR, la_frags * NT, 4 if kind == "oproj" else 5)
    a(f"""
    s_cmp_ge_u32 s2, 256
    s_cbranch_scc1 {name}_end
    s_load_dwordx2 s[6:7], s[0:1], {KA_WS}
    s_load_dwordx2 s[4:5], s[0:1], {KA_OUT}
    v_lshrrev_b32 {t[0]}, 6, v0
    v_and_b32 v0, 63, v0
    v_readfirstlane_b32 s{s_wave}, {t[0]}
    v_lshlrev_b32 {vHo}, 4, v0
    """)
    magic = (65536 + NB - 1) // NB
    assert all((p * magic) >> 16 == p // NB for p in range(20))
    for i in range(5):
        a(f"""
        v_add_u32 {t[1]}, {4 * i}, {t[0]}
        v_mul_u32_u24 {t[2]}, {magic}, {t[1]}
        v_lshrrev_b32 {t[2]}, 16, {t[2]}
        v_mul_u32_u24 {t[2]}, {40 - NB}, {t[2]}
        v_add_u32 {t[1]}, {t[1]}, {t[2]}
        v_lshl_add_u32 {vWd[i]}, {t[1]}, 10, {vHo}
        """)
    if kind == "oproj":
        a(f"""
        s_bfe_u32 s{s_hg}, s2, 0x20001
        s_and_b32 s{s_tb}, s2, 1
        s_lshl_b32 s{s_tb}, s{s_tb}, 3
        s_bfe_u32 s{s_t0}, s2, 0x30003
        s_add_u32 s{s_tb}, s{s_tb}, s{s_t0}
        s_lshr_b32 s{s_nb}, s2, 6
        s_mul_i32 s{s_t0}, s{s_hg}, {32 * 40960}
        s_mul_i32 s{s_t1}, s{s_nb}, {NB * 1024}
        s_add_u32 s{s_t0}, s{s_t0}, s{s_t1}
        s_sub_u32 s36, {32 * 40960}, s{s_t1}
        s_lshl_b32 s37, s{s_tb}, 1
        s_lshr_b32 s38, s{s_wave}, 1
        s_add_u32 s37, s37, s38
        s_and_b32 s38, s{s_wave}, 1
        s_lshl_b32 s38, s38, 11
        s_lshl_b32 s39, s37, 19
        s_lshl_b32 s40, s{s_hg}, 17
        s_add_u32 s39, s39, s40
        s_add_u32 s39, s39, s38
        s_sub_u32 s40, {32 * 4096}, s38
        """)
        w_off, x_off = WS_WOF, WS_O
    else:
        a(f"""
        s_and_b32 s{s_tb}, s2, 1
        s_lshl_b32 s{s_tb}, s{s_tb}, 4
        s_bfe_u32 s{s_t0}, s2, 0x10001
        s_lshl_b32 s{s_t0}, s{s_t0}, 3
        s_add_u32 s{s_tb}, s{s_tb}, s{s_t0}
        s_bfe_u32 s{s_t0}, s2, 0x30003
        s_add_u32 s{s_tb}, s{s_tb}, s{s_t0}
        s_bfe_u32 s{s_nb}, s2, 0x10002
        s_lshl_b32 s{s_nb}, s{s_nb}, 2
        s_lshr_b32 s{s_t0}, s2, 6
        s_add_u32 s{s_nb}, s{s_nb}, s{s_t0}
        s_mul_i32 s{s_t0}, s{s_nb}, {NB * 1024}
        s_sub_u32 s36, {54 * 40960}, s{s_t0}
        s_lshl_b32 s38, s{s_wave}, 10
        s_mul_i32 s39, s{s_tb}, {54 * 4096}
        s_add_u32 s39, s39, s38
        s_sub_u32 s40, {54 * 4096}, s38
        """)
        w_off, x_off = WS_WDF, WS_ACT
    a(f"""
    s_lshl_b32 s{s_wb}, s{s_wave}, 10
    s_waitcnt lgkmcnt(0)
    """)
    srd(a, sW, 6, off_lines_reg=s_t0, off_imm=w_off, size_reg=36)
    srd(a, sX, 6, off_lines_reg=39, off_imm=x_off, size_reg=40)

    def w_tile(s):
        ops = []
        for i in range(5):
            pre = [f"s_add_u32 m0, s{s_wb}, {(s % NRING) * SL + i * 4096}"]
            if i == 0:
                pre.append(f"s_mov_b32 s{s_t0}, {s * KSS * 40960}")
            ops.append(VmOp(f"buffer_load_dwordx4 {vWd[i]}, {sr(sW, 4)}, s{s_t0} offen lds", ("W", s), pre))
        return ops

    def x_loads(s):
        ops = []
        for ks in range(KSS):
            for tb in range(NT):
                pre = [f"s_mov_b32 s{s_t1}, {(s * KSS + ks) * 4096}"] if tb == 0 else []
                ops.append(VmOp(f"buffer_load_dwordx4 {Xf(s, ks, tb)}, {vHo}, {sr(sX, 4)}, s{s_t1} offen offset:{tb * 1024}",
                                ("x", s), pre))
        return ops
    for s in range(PF):
        for op in w_tile(s) + x_loads(s):
            st.emit_vm(op)
    for i in range(3):
        a(f"v_add_u32 {vA[i]}, {3 * SL * i}, {vHo}")
    if kind == "oproj":
        a(f"""
        s_mul_i32 s39, s37, {20 * 4096}
        s_mul_i32 s40, s{s_hg}, {PSTRIDE}
        s_add_u32 s39, s39, s40
        s_mul_i32 s40, s{s_nb}, {5 * 4096}
        s_add_u32 s39, s39, s40
        s_add_u32 s39, s39, s38
        s_sub_u32 s40, {5 * 4096}, s38
        """)
        srd(a, sO, 6, off_lines_reg=39, off_imm=WS_PART, size_reg=40)
    else:
        a(f"""
        v_and_b32 {t[1]}, 15, v0
        v_lshl_add_u32 {t[1]}, {t[0]}, 4, {t[1]}
        v_mul_u32_u24 {t[1]}, {D * 2}, {t[1]}
        v_lshrrev_b32 {t[2]}, 4, v0
        v_lshl_add_u32 {vR}, {t[2]}, 3, {t[1]}
        v_lshlrev_b32 {vG}, 4, {t[2]}
        s_mul_i32 s39, s{s_tb}, {64 * D * 2}
        s_mul_i32 s40, s{s_nb}, 160
        s_add_u32 s39, s39, s40
        s_sub_u32 s38, {64 * D * 2}, s40
        """)
        srd(a, sR, 6, off_lines_reg=39, off_imm=WS_X1, size_reg=38)
        srd(a, sO, 4, off_lines_reg=39, size_reg=38)
        a(f"s_mul_i32 s40, s{s_nb}, 320")
        srd(a, sG, 6, off_lines_reg=40, off_imm=WS_MOD + 5 * D * 4, size=320)

    def w_frag(s, ks, j, guard=None):
        slot = s % NRING
        return Frag([("ds_read_b128", 0, 4, vA[slot // 3], (slot % 3) * SL + (ks * NB + j) * 1024)], guard)
    items, vms = [], []
    nst = KSS * NB * NT
    for s in range(NST):
        first = len(items)
        nks = min(KSS, NKS - s * KSS)
        for j in range(NB):
            frs = []
            for ks in range(nks):
                g = st.guard_wait([("W", s), ("x", s)]) if (ks == 0 and j == 0) else None
                frs.append(w_frag(s, ks, j, g))
                frs[-1].nat = len(items) + ks * NT
            for tb in range(NT):
                for ks in range(nks):
                    c = "0" if (s == 0 and ks == 0) else str(acc(tb, j))
                    items.append(Item(f"{MFMA16} {acc(tb, j)}, {{A}}, {Xf(s, ks, tb)}, {c}", frs[ks]))
        if s + PF < NST:
            assert NRING >= PF + 2
            vms.append((first + 1, len(items) - 1, w_tile(s + PF) + x_loads(s + PF)))
        elif s + PF == NST and kind == "down":
            ep = [VmOp(f"buffer_load_dwordx2 {RES.sub(2 * j, 2)}, {vR}, {sr(sR, 4)}, 0 offen offset:{32 * j}", "e") for j in range(5)]
            ep += [VmOp(f"buffer_load_dwordx4 {G.sub(4 * j, 4)}, {vG}, {sr(sG, 4)}, 0 offen offset:{64 * j}", "e") for j in range(5)]
            vms.append((first + 1, len(items) - 1, ep))
    st.layout(items)
    for g0, g1, ops in vms:
        st.place_vm(items, g0, g1, ops)
    for g in (0, nst * (NST // 4), nst * (NST // 2), len(items) - 1):
        items[g].block.append("; STAMP")
    a.lines.append("; STAMP")
    st.emit(items, [])
    print(name, "estimated cycles", sum(st.est))
    if kind == "oproj":
        k = 0
        for i in range(5):
            a(f"s_mov_b32 s{s_t0}, {i * 4096}")
            for tb in range(NT):
                dst = Xr.sub(4 * k, 4)
                k += 1
                for hf in range(2):
                    src = acc(tb, 2 * i + hf)
                    for j in range(2):
                        a(f"v_cvt_pk_bf16_f32 {dst[2 * hf + j]}, {src[2 * j]}, {src[2 * j + 1]}")
                a(f"buffer_store_dwordx4 {dst}, {vHo}, {sr(sO, 4)}, s{s_t0} offen offset:{tb * 1024}{' sc1' if sc1 else ''}")
    else:
        a("s_waitcnt vmcnt(0)")
        for j in range(5):
            for p in range(2):
                r = RES[2 * j + p]
                i0 = 4 * j + 2 * p
                a(f"v_lshlrev_b32 {t[1 + 2 * p]}, 16, {r}")
                a(f"v_and_b32 {t[2 + 2 * p]}, 0xffff0000, {r}")
                a(f"v_fmac_f32 {t[1 + 2 * p]}, {ACC[i0]}, {G[i0]}")
                a(f"v_fmac_f32 {t[2 + 2 * p]}, {ACC[i0 + 1]}, {G[i0 + 1]}")
                a(f"v_cvt_pk_bf16_f32 {r}, {t[1 + 2 * p]}, {t[2 + 2 * p]}")
            a(f"buffer_store_dwordx2 {RES.sub(2 * j, 2)}, {vR}, {sr(sO, 4)}, 0 offen offset:{32 * j}")
    a.label(f"{name}_end")
    a("s_endpgm")
    return (name, a.lines, va.p, (va.p + 3) // 4 * 4, 256, 256, NRING * SL)
```

```python
from asmlib import Asm, Alloc, Reg, sr
from stream import f32hex
from layout import *


def srd(a, dst, base, off_lines_reg=None, off_imm=0, size=None, size_reg=None):
    if off_lines_reg is not None:
        a(f"s_add_u32 s{dst}, s{base}, s{off_lines_reg}")
        a(f"s_addc_u32 s{dst+1}, s{base+1}, 0")
        if off_imm:
            a(f"s_add_u32 s{dst}, s{dst}, {off_imm}")
            a(f"s_addc_u32 s{dst+1}, s{dst+1}, 0")
    else:
        a(f"s_add_u32 s{dst}, s{base}, {off_imm}")
        a(f"s_addc_u32 s{dst+1}, s{base+1}, 0")
    a(f"s_mov_b32 s{dst+2}, {size if size_reg is None else 's%d' % size_reg}")
    a(f"s_mov_b32 s{dst+3}, 0x20000")


_uid = [0]


def code_prefetch_addr(a, label, s_tmp, vaddr, voff):
    _uid[0] += 1
    here = f"cpf_here{_uid[0]}"
    a(f"s_getpc_b64 s[{s_tmp}:{s_tmp+1}]")
    a.label(here)
    if label is not None:
        a(f"s_add_u32 s{s_tmp}, s{s_tmp}, {label}-{here}")
        a(f"s_addc_u32 s{s_tmp+1}, s{s_tmp+1}, 0")
    a(f"v_mov_b32 {vaddr[1]}, s{s_tmp+1}")
    a(f"v_add_co_u32 {vaddr[0]}, vcc, s{s_tmp}, {voff}")
    a(f"v_addc_co_u32 {vaddr[1]}, vcc, 0, {vaddr[1]}, vcc")


def round_bf16(a, v, tmp):
    a(f"v_cvt_pk_bf16_f32 {v}, {v}, {v}")
    a(f"v_and_b32 {v}, 0xffff0000, {v}")


def mod_body(a, name, wg, selfpf=False):
    a(f"""
    s_load_dwordx4 s[4:7], s[0:1], {KA_C}
    s_load_dwordx2 s[16:17], s[0:1], {KA_WS}
    v_and_b32 v1, 3, v0
    v_lshrrev_b32 v2, 2, v0
    v_lshlrev_b32 v3, 1, v2
    v_mul_u32_u24 v4, {6 * D * 2}, v2
    v_lshl_add_u32 v4, v1, 4, v4
    s_lshl_b32 s20, s{wg}, 6
    s_mov_b32 s14, {D * 6 * D * 2}
    s_mov_b32 s15, 0x20000
    """)
    if selfpf:
        a("v_lshlrev_b32 v9, 3, v0\nv_min_u32 v9, " + f"{name}_end-{name}-128, v9")
        code_prefetch_addr(a, None, 56, Reg(10, 2), "v9")
        a("global_load_dword v68, v[10:11], off")
    a("s_waitcnt lgkmcnt(0)\ns_mov_b32 s12, s6\ns_mov_b32 s13, s7")
    W = Reg(24, 16)
    C = Reg(40, 4)
    ACC = Reg(12, 8)
    for i in range(4):
        a(f"s_add_u32 s21, s20, {160 * i * 6 * D * 2}")
        a(f"buffer_load_dwordx4 {W.sub(4 * i, 4)}, v4, s[12:15], s21 offen")
    srd(a, 8, 4, size=D * 2)
    for i in range(4):
        a(f"buffer_load_ushort {C[i]}, v3, s[8:11], 0 offen offset:{320 * i}")
    a(f"""
    v_lshrrev_b32 v5, 6, v0
    v_lshlrev_b32 v5, 7, v5
    v_lshl_add_u32 v5, v1, 5, v5
    v_bfe_u32 v6, v0, 4, 2
    v_lshl_add_u32 v5, v6, 2, v5
    v_and_b32 v7, 31, v0
    v_lshlrev_b32 v7, 2, v7
    s_sub_u32 s21, s{wg}, 20
    s_cmp_lt_u32 s21, 20
    s_cselect_b32 s22, 1.0, 0
    s_sub_u32 s21, s{wg}, 80
    s_cmp_lt_u32 s21, 20
    s_cselect_b32 s22, 1.0, s22
    s_cmp_lt_u32 s{wg}, 40
    s_cselect_b32 s23, {f32hex(QSCALE)}, 1.0
    s_lshl_b32 s20, s{wg}, 7
    """)
    srd(a, 8 + 16, 16, off_imm=WS_MOD, size=3840 * 4)
    a("; STAMP")
    a("s_waitcnt vmcnt(0)")
    a("; STAMP")
    T = Reg(44, 4)
    for op in range(7):
        for i in range(4):
            a([f"v_lshlrev_b32 {C[i]}, 16, {C[i]}",
               f"v_mul_f32 {T[i]}, {f32hex(-1.4426950408889634)}, {C[i]}",
               f"v_exp_f32 {T[i]}, {T[i]}",
               f"v_add_f32 {T[i]}, 1.0, {T[i]}",
               f"v_rcp_f32 {T[i]}, {T[i]}",
               f"v_mul_f32 {C[i]}, {C[i]}, {T[i]}",
               f"v_cvt_pk_bf16_f32 {C[i]}, {C[i]}, {C[i]}"][op])
    for i in range(4):
        a(f"v_and_b32 {C[i]}, 0xffff0000, {C[i]}")
    for i in range(4):
        for j in range(4):
            w = W[4 * i + j]
            a(f"v_lshlrev_b32 {T[0]}, 16, {w}")
            a(f"v_and_b32 {T[1]}, 0xffff0000, {w}")
            if i == 0:
                a(f"v_mul_f32 {ACC[2 * j]}, {T[0]}, {C[i]}")
                a(f"v_mul_f32 {ACC[2 * j + 1]}, {T[1]}, {C[i]}")
            else:
                a(f"v_fmac_f32 {ACC[2 * j]}, {T[0]}, {C[i]}")
                a(f"v_fmac_f32 {ACC[2 * j + 1]}, {T[1]}, {C[i]}")
    for i in range(4):
        a(f"v_permlane16_swap_b32 {ACC[2 * i]}, {ACC[2 * i + 1]}")
    for i in range(4):
        a(f"v_add_f32 {ACC[2 * i]}, {ACC[2 * i]}, {ACC[2 * i + 1]}")
    for i in range(2):
        a(f"v_permlane32_swap_b32 {ACC[4 * i]}, {ACC[4 * i + 2]}")
    for i in range(2):
        a(f"v_add_f32 {ACC[4 * i]}, {ACC[4 * i]}, {ACC[4 * i + 2]}")
    for sh in (4, 8):
        for i in range(2):
            a(f"v_add_f32_dpp {ACC[4 * i]}, {ACC[4 * i]}, {ACC[4 * i]} row_ror:{sh} row_mask:0xf bank_mask:0xf")
    a(f"""
    ds_write_b32 v5, {ACC[0]}
    ds_write_b32 v5, {ACC[4]} offset:16
    s_waitcnt lgkmcnt(0)
    s_barrier
    v_cmp_gt_u32 vcc, 32, v0
    s_and_saveexec_b64 s[30:31], vcc
    s_cbranch_execz {name}_modend
    """)
    for i in range(10):
        a(f"ds_read_b32 {W[i]}, v7 offset:{128 * i}")
    a("s_waitcnt lgkmcnt(0)")
    for i in range(5):
        a(f"v_add_f32 {W[i]}, {W[i]}, {W[5 + i]}")
    a(f"v_add_f32 {W[0]}, {W[0]}, {W[1]}\nv_add_f32 {W[2]}, {W[2]}, {W[3]}\nv_add_f32 {W[0]}, {W[0]}, {W[4]}\nv_add_f32 {W[0]}, {W[0]}, {W[2]}")
    round_bf16(a, W[0], None)
    a(f"v_add_f32 {W[0]}, s22, {W[0]}")
    round_bf16(a, W[0], None)
    a(f"""
    v_mul_f32 {W[0]}, s23, {W[0]}
    buffer_store_dword {W[0]}, v7, s[24:27], s20 offen
    {name}_modend:
    ; STAMP
    """)


def gen_mod(name, wq_half=False):
    a = Asm()
    a(f"""
    s_cmp_ge_u32 s2, 256
    s_cbranch_scc1 {name}_end
    s_cmp_ge_u32 s2, 120
    s_cbranch_scc1 {name}_pf
    v_lshlrev_b32 v9, 4, v0
    """)
    code_prefetch_addr(a, None, 56, Reg(10, 2), "v9")
    a("global_load_dwordx4 v[68:71], v[10:11], off")
    mod_body(a, name, 2)
    a(f"""
    s_branch {name}_fin
    {name}_pf:
    s_load_dwordx2 s[44:45], s[0:1], {KA_X}
    s_load_dwordx2 s[46:47], s[0:1], {KA_WQ}
    v_lshlrev_b32 v6, 4, v0
    s_lshr_b32 s42, s2, 3
    s_sub_u32 s42, s42, 15
    s_lshl_b32 s43, s42, 12
    v_add_u32 v9, s43, v6
    v_min_u32 v9, attn_kernel_hotend-ln1_kernel-16, v9
    """)
    code_prefetch_addr(a, "ln1_kernel", 56, Reg(10, 2), "v9")
    a("global_load_dwordx4 v[12:15], v[10:11], off")
    a(f"""
    s_and_b32 s40, s2, 1
    s_mul_i32 s41, s40, {320 * 8192}
    s_lshl_b32 s40, s40, 7
    s_bfe_u32 s43, s2, 0x20001
    s_add_u32 s40, s40, s43
    s_lshl_b32 s43, s43, 11
    s_add_u32 s41, s41, s43
    s_mul_i32 s43, s42, {20 * 8192}
    s_add_u32 s41, s41, s43
    s_lshl_b32 s43, s42, 3
    s_add_u32 s40, s40, s43
    s_mul_i32 s40, s40, {8 * D * 2}
    s_cmp_ge_u32 s42, 16
    s_cbranch_scc1 {name}_fin
    s_waitcnt lgkmcnt(0)
    """)
    srd(a, 48, 44, size=S * D * 2)
    for g in range(2):
        for i in range(3):
            a(f"s_add_u32 s43, s40, {4096 * i + g * 4 * 8 * D * 2}")
            a(f"buffer_load_dwordx4 v[12:15], v6, s[48:51], s43 offen")
    if wq_half:
        a(f"""
        v_and_b32 v7, 127, v0
        v_lshlrev_b32 v7, 4, v7
        v_lshrrev_b32 v8, 7, v0
        v_lshl_add_u32 v7, v8, 13, v7
        """)
        srd(a, 52, 46, size=D * H * DH * 2)
        for i in range(10):
            a(f"s_add_u32 s43, s41, {2 * 8192 * i}")
            a(f"buffer_load_dwordx4 v[12:15], v7, s[52:55], s43 offen")
    a.label(f"{name}_fin")
    a.label(f"{name}_end")
    a("s_endpgm")
    return (name, a.lines, 72, 72, 256, 256, 8192)


def ln_body(a, t8, which, prefetch=None):
    X = Reg(12, 4)
    Xf = Reg(16, 8)
    SC = Reg(24, 8)
    SH = Reg(32, 8)
    PT = Reg(40, 16)
    ST = Reg(40, 20)
    dst_off, shift_idx, scale_idx = (WS_H, 0, 1) if which == 1 else (WS_H2, 3, 4)
    a(f"""
    s_load_dwordx2 s[4:5], s[0:1], {KA_X}
    s_load_dwordx2 s[6:7], s[0:1], {KA_WS}
    v_and_b32 v1, 7, v0
    v_bfe_u32 v2, v0, 3, 2
    v_lshrrev_b32 v3, 5, v0
    v_lshlrev_b32 v4, 2, v2
    v_lshl_add_u32 v4, v3, 5, v4
    v_mul_u32_u24 v5, {D * 2}, v1
    v_lshl_add_u32 v5, v4, 1, v5
    v_lshlrev_b32 v6, 2, v4
    v_lshlrev_b32 v7, 4, v1
    v_lshl_add_u32 v7, v2, 8, v7
    v_lshl_add_u32 v7, v3, 12, v7
    s_mul_i32 s20, s{t8}, {8 * D * 2}
    s_lshr_b32 s36, s{t8}, 3
    s_mul_i32 s36, s36, {20 * 4096}
    s_bfe_u32 s21, s{t8}, 0x20001
    s_lshl_b32 s21, s21, 10
    s_and_b32 s22, s{t8}, 1
    s_lshl_b32 s22, s22, 7
    s_add_u32 s21, s21, s22
    s_add_u32 s36, s36, s21
    s_sub_u32 s23, {20 * 4096}, s21
    s_waitcnt lgkmcnt(0)
    """)
    if which == 2:
        a(f"s_add_u32 s37, s23, {3 * PSTRIDE}")
        srd(a, 24, 6, off_lines_reg=36, off_imm=WS_PART, size_reg=37)
        for sp in range(4):
            a(f"s_mov_b32 s21, {sp * PSTRIDE}")
            a(f"buffer_load_dwordx4 {PT.sub(sp * 4, 4)}, v7, s[24:27], s21 offen")
    srd(a, 8, 4, off_lines_reg=20, size=8 * D * 2)
    for e4 in range(2):
        a(f"buffer_load_dwordx2 {X.sub(2 * e4, 2)}, v5, s[8:11], 0 offen offset:{32 * e4}")
    if which == 2:
        srd(a, 12, 6, off_imm=WS_MOD, size=3840 * 4)
        a(f"s_mov_b32 s21, {2 * D * 4}")
        for e4 in range(2):
            a(f"buffer_load_dwordx4 {Xf.sub(4 * e4, 4)}, v6, s[12:15], s21 offen offset:{64 * e4}")
        a(f"s_mov_b32 s21, {scale_idx * D * 4}")
        a(f"s_mov_b32 s22, {shift_idx * D * 4}")
        for e4 in range(2):
            a(f"buffer_load_dwordx4 {SC.sub(4 * e4, 4)}, v6, s[12:15], s21 offen offset:{64 * e4}")
            a(f"buffer_load_dwordx4 {SH.sub(4 * e4, 4)}, v6, s[12:15], s22 offen offset:{64 * e4}")
    srd(a, 16, 6, off_lines_reg=36, off_imm=dst_off, size_reg=23)
    a(f"""
    v_lshrrev_b32 v2, 6, v0
    v_lshlrev_b32 v2, 6, v2
    v_lshl_add_u32 v2, v1, 3, v2
    v_lshlrev_b32 v3, 3, v1
    """)
    npf = prefetch(a) if prefetch else 0
    a("; STAMP")
    if which == 2:
        srd(a, 28, 6, off_lines_reg=20, off_imm=WS_X1, size=8 * D * 2)
        a(f"s_waitcnt vmcnt({8 + npf})")
        a("; STAMP")
        for i in range(4):
            a(f"v_lshlrev_b32 v8, 16, {PT[i]}")
            a(f"v_and_b32 v9, 0xffff0000, {PT[i]}")
            for sp in range(1, 4):
                a(f"v_lshlrev_b32 v10, 16, {PT[sp * 4 + i]}")
                a(f"v_and_b32 v11, 0xffff0000, {PT[sp * 4 + i]}")
                d0, d1 = (PT[i], PT[4 + i]) if sp == 3 else ("v8", "v9")
                a(f"v_add_f32 {d0}, v8, v10")
                a(f"v_add_f32 {d1}, v9, v11")
        a(f"s_waitcnt vmcnt({4 + npf})")
        for i in range(4):
            a(f"v_lshlrev_b32 v8, 16, {X[i]}")
            a(f"v_and_b32 v9, 0xffff0000, {X[i]}")
            a(f"v_fmac_f32 v8, {Xf[2 * i]}, {PT[i]}")
            a(f"v_fmac_f32 v9, {Xf[2 * i + 1]}, {PT[4 + i]}")
            a(f"v_cvt_pk_bf16_f32 {X[i]}, v8, v9")
        for e4 in range(2):
            a(f"buffer_store_dwordx2 {X.sub(2 * e4, 2)}, v5, s[28:31], 0 offen offset:{32 * e4}")
    else:
        a(f"s_waitcnt vmcnt({npf})")
        a("; STAMP")
    for i in range(4):
        a(f"v_lshlrev_b32 {Xf[2 * i]}, 16, {X[i]}")
        a(f"v_and_b32 {Xf[2 * i + 1]}, 0xffff0000, {X[i]}")

    def reduce(v, t):
        a(f"""
        v_add_f32_dpp {v}, {v}, {v} row_ror:8 row_mask:0xf bank_mask:0xf
        v_mov_b32 {t}, {v}
        v_permlane16_swap_b32 {v}, {t}
        v_add_f32 {v}, {v}, {t}
        v_mov_b32 {t}, {v}
        v_permlane32_swap_b32 {v}, {t}
        v_add_f32 {v}, {v}, {t}
        """)
    a(f"v_add_f32 v8, {Xf[0]}, {Xf[1]}")
    a(f"v_add_f32 v9, {Xf[2]}, {Xf[3]}")
    a(f"v_add_f32 v10, {Xf[4]}, {Xf[5]}")
    a(f"v_add_f32 v11, {Xf[6]}, {Xf[7]}")
    a("v_add_f32 v8, v8, v9\nv_add_f32 v10, v10, v11\nv_add_f32 v8, v8, v10")
    reduce("v8", "v9")
    a(f"v_mul_f32 v8, {f32hex(1.0 / 64)}, v8")
    a(f"v_sub_f32 v10, {Xf[0]}, v8")
    a("v_mul_f32 v9, v10, v10")
    for i in range(1, 8):
        a(f"v_sub_f32 v10, {Xf[i]}, v8")
        a("v_fmac_f32 v9, v10, v10")
    reduce("v9", "v10")
    a("""
    ds_write_b64 v2, v[8:9]
    s_waitcnt lgkmcnt(0)
    s_barrier
    """)
    for w in range(10):
        a(f"ds_read_b64 {ST.sub(2 * w, 2)}, v3 offset:{64 * w}")
    a("s_waitcnt lgkmcnt(0)")
    a(f"v_add_f32 v8, {ST[0]}, {ST[2]}")
    a(f"v_add_f32 v9, {ST[1]}, {ST[3]}")
    for w in range(2, 10):
        a(f"v_add_f32 v8, v8, {ST[2 * w]}")
        a(f"v_add_f32 v9, v9, {ST[2 * w + 1]}")
    a(f"v_mul_f32 v8, {f32hex(0.1)}, v8")
    a(f"v_sub_f32 v10, {ST[0]}, v8")
    a("v_mul_f32 v11, v10, v10")
    for w in range(1, 10):
        a(f"v_sub_f32 v10, {ST[2 * w]}, v8")
        a("v_fmac_f32 v11, v10, v10")
    a(f"v_fmac_f32 v9, {f32hex(64.0)}, v11")
    a(f"v_mov_b32 v10, {f32hex(1e-5)}")
    a(f"v_fmac_f32 v10, {f32hex(1.0 / D)}, v9")
    a("v_rsq_f32 v9, v10")
    for i in range(8):
        a(f"v_sub_f32 {Xf[i]}, {Xf[i]}, v8")
    for i in range(8):
        a(f"v_mul_f32 {Xf[i]}, {Xf[i]}, v9")
    if which == 2:
        a(f"s_waitcnt vmcnt({2 + npf})")
        for j in range(8):
            a(f"v_fma_f32 {Xf[j]}, {Xf[j]}, {SC[j]}, {SH[j]}")
    for j in range(4):
        a(f"v_cvt_pk_{'bf16' if which == 2 else 'f16'}_f32 {ST[j]}, {Xf[2 * j]}, {Xf[2 * j + 1]}")
    a(f"buffer_store_dwordx4 {ST.sub(0, 4)}, v7, s[16:19], 0 offen sc1")
    a("; STAMP")


def gen_ln(name, which, wq=2, kv=True, wgu=True):
    a = Asm()
    NX = 120 if which == 1 else 0
    a(f"""
    s_cmp_ge_u32 s2, {256 + NX}
    s_cbranch_scc1 {name}_end
    """)
    if NX:
        a(f"""
        s_cmp_ge_u32 s2, {NX}
        s_cbranch_scc1 {name}_ln
        """)
        mod_body(a, name, 2, selfpf=True)
        a(f"""
        s_branch {name}_fin
        {name}_ln:
        s_sub_u32 s2, s2, {NX}
        """)
    a(f"""
    s_and_b32 s3, s2, 1
    s_lshl_b32 s3, s3, 7
    s_lshr_b32 s40, s2, 1
    s_add_u32 s3, s3, s40
    """)
    if which == 2:
        a(f"s_load_dwordx4 s[44:47], s[0:1], {KA_WG}")
    else:
        a(f"s_load_dwordx4 s[44:47], s[0:1], {KA_K}")
        a(f"s_load_dwordx2 s[60:61], s[0:1], {KA_WQ}")

    def pf2(a):
        if not wgu:
            return 0
        a(f"""
        v_and_b32 v60, 63, v0
        v_lshlrev_b32 v60, 4, v60
        v_lshrrev_b32 v61, 6, v0
        v_mul_u32_u24 v61, {2 * F * 2}, v61
        v_add_u32 v60, v60, v61
        s_lshr_b32 s40, s2, 3
        s_mul_i32 s40, s40, {20 * F * 2}
        s_bfe_u32 s41, s2, 0x20001
        s_mul_i32 s41, s41, 896
        s_add_u32 s40, s40, s41
        s_add_u32 s41, s40, {F * 2}
        """)
        srd(a, 48, 44, size=D * F * 2)
        srd(a, 52, 46, size=D * F * 2)
        for sd in (48, 52):
            for so in (40, 41):
                a(f"buffer_load_dwordx4 v[64:67], v60, s[{sd}:{sd+3}], s{so} offen")
        return 4

    def pf1(a):
        a(f"""
        s_lshr_b32 s40, s2, 3
        s_mul_i32 s40, s40, 1280
        v_lshlrev_b32 v62, 1, v0
        v_and_b32 v62, 0xffc, v62
        v_add_u32 v62, s40, v62
        v_min_u32 v62, attn_kernel_hotend-attn_kernel-4, v62
        """)
        code_prefetch_addr(a, "attn_kernel", 62, Reg(60, 2), "v62")
        a("global_load_dword v64, v[60:61], off")
        n = 1
        if wq:
            a(f"""
            v_and_b32 v61, 63, v0
            v_lshlrev_b32 v61, 4, v61
            v_lshrrev_b32 v60, 6, v0
            v_lshl_add_u32 v61, v60, 13, v61
            s_and_b32 s42, s2, 1
            s_mul_i32 s43, s42, {320 * 8192}
            s_xor_b32 s42, s42, 1
            s_mul_i32 s42, s42, {320 * 8192}
            s_lshr_b32 s41, s2, 3
            s_mul_i32 s40, s41, {10 * 8192}
            s_bfe_u32 s41, s2, 0x20001
            s_lshl_b32 s41, s41, 11
            s_add_u32 s40, s40, s41
            s_add_u32 s42, s42, s40
            s_add_u32 s43, s43, s40
            """)
            srd(a, 56, 60, size=D * H * DH * 2)
            for so in ([43, 42] if wq == 2 else [42]):
                a(f"buffer_load_dwordx4 v[64:67], v61, s[56:59], s{so} offen")
                a(f"buffer_load_dwordx4 v[64:67], v61, s[56:59], s{so} offen offset:1024")
                n += 2
        if kv:
            a(f"""
            v_lshlrev_b32 v60, 4, v0
            s_bfe_u32 s40, s2, 0x20001
            s_lshl_b32 s40, s40, 3
            s_bfe_u32 s41, s2, 0x30003
            s_add_u32 s40, s40, s41
            s_lshl_b32 s40, s40, 19
            s_lshr_b32 s41, s2, 6
            s_mul_i32 s41, s41, 10240
            s_add_u32 s40, s40, s41
            """)
            srd(a, 48, 44, size=H * S * DH * 2)
            srd(a, 52, 46, size=H * S * DH * 2)
            for sd in (48, 52):
                a(f"buffer_load_dwordx4 v[64:67], v60, s[{sd}:{sd+3}], s40 offen")
            n += 2
        return n
    ln_body(a, 3, which, pf2 if which == 2 else pf1)
    if NX:
        a.label(f"{name}_fin")
    a.label(f"{name}_end")
    a("s_endpgm")
    return (name, a.lines, 72, 72, 640, 256 + NX, 2048)


def relayout_body(a, name, wg, pf=None):
    a(f"""
    s_load_dwordx2 s[4:5], s[0:1], {KA_WO}
    s_load_dwordx2 s[6:7], s[0:1], {KA_WD}
    s_load_dwordx2 s[16:17], s[0:1], {KA_WS}
    v_lshrrev_b32 v1, 6, v0
    v_and_b32 v0, 63, v0
    v_readfirstlane_b32 s28, v1
    v_lshlrev_b32 v2, 4, v0
    v_lshrrev_b32 v3, 2, v0
    v_mul_u32_u24 v3, {D * 2}, v3
    v_and_b32 v4, 3, v0
    v_mul_u32_u24 v4, 40, v4
    v_add_u32 v3, v3, v4
    v_mul_u32_u24 v4, 320, v1
    v_add_u32 v3, v3, v4
    s_cmp_lt_u32 s{wg}, 128
    s_cselect_b32 s20, 0, 128
    s_sub_u32 s20, s{wg}, s20
    s_waitcnt lgkmcnt(0)
    s_cmp_lt_u32 s{wg}, 128
    s_cselect_b32 s4, s4, s6
    s_cselect_b32 s5, s5, s7
    s_cselect_b32 s24, 128, 54
    s_mov_b32 s25, {WS_WDF}
    s_cselect_b32 s25, {WS_WOF}, s25
    s_mul_i32 s21, s20, {32 * D * 2}
    """)
    srd(a, 8, 4, off_lines_reg=21, size=32 * D * 2)
    a(f"s_mul_i32 s22, s28, 10240")
    for i in range(10):
        a(f"s_add_u32 s23, s22, {1024 * i}")
        a(f"s_mov_b32 m0, s23")
        a(f"buffer_load_dwordx4 v2, s[8:11], s23 offen lds")
    npf = pf(a) if pf else 0
    a(f"""
    s_mul_i32 s26, s24, {8 * 5120}
    """)
    srd(a, 12, 16, off_lines_reg=25, size_reg=26)
    a(f"""
    s_mul_i32 s27, s24, 5120
    s_lshl_b32 s22, s28, 1
    s_mul_i32 s22, s22, s27
    s_mul_i32 s21, s20, 5120
    s_add_u32 s22, s22, s21
    s_waitcnt vmcnt({npf})
    s_barrier
    """)
    Fq = Reg(8, 40)
    for nbl in range(2):
        for j in range(5):
            f = Fq.sub((nbl * 5 + j) * 4, 4)
            for e4 in range(2):
                a(f"ds_read_b64_tr_b16 {f.sub(2 * e4, 2)}, v3 offset:{e4 * 16 * D * 2 + (nbl * 80 + 4 * j) * 2}")
        a("s_waitcnt lgkmcnt(0)")
        for j in range(5):
            f = Fq.sub((nbl * 5 + j) * 4, 4)
            a(f"s_add_u32 s23, s22, {1024 * j}")
            a(f"buffer_store_dwordx4 {f}, v2, s[12:15], s23 offen")
        a(f"s_add_u32 s22, s22, s27")


def gen_relayout(name):
    a = Asm()
    a(f"s_cmp_ge_u32 s2, 182\ns_cbranch_scc1 {name}_end")
    relayout_body(a, name, 2)
    a.label(f"{name}_end")
    a("s_endpgm")
    return (name, a.lines, 48, 48, 256, 182, 40960)
```

```python
import struct
from asmlib import VmTracker, Ins

MFMA16 = "v_mfma_f32_16x16x32_bf16"


def f32hex(x):
    return "0x%08x" % struct.unpack("<I", struct.pack("<f", x))[0]


class Frag:
    def __init__(self, reads, guard=None):
        self.reads = reads
        self.guard = guard
        self.buf = None
        self.last_ds = None
        self.seq = None
        self.nat = None


class VmOp:
    def __init__(self, line, tag, pre=()):
        self.line, self.tag, self.pre = line, tag, list(pre)


class Aux:
    def __init__(self, line):
        self.line, self.idx = line, None


class Item:
    def __init__(self, fmt, frag=None, phantom=False):
        self.fmt = fmt
        self.frag = frag
        self.phantom = phantom
        self.sc = []
        self.vm = []
        self.ds = []
        self.valu = []
        self.block = []
        self.aux = []
        self.cont = False
        self.need = []


def cost_of(t):
    op = t.split()[0]
    if op.startswith(("v_exp", "v_rcp", "v_rsq")):
        return 8
    if op.endswith(":"):
        return 0
    if op.startswith("buffer_"):
        return 8
    return 4


def pack(items, g0, g1, ops, fixed, cap, window=14):
    gaps = [g for g in range(g0, g1 + 1) if not items[g].phantom]
    ins = [Ins(o) for o in ops]
    n = len(ops)
    deps = [[] for _ in range(n)]
    for j in range(n):
        for i in range(max(0, j - 64), j):
            if (ins[i].dst & (ins[j].src | ins[j].dst)) or (ins[i].src & ins[j].dst):
                deps[j].append(i)
    base = [max((16 if items[g].cont else cap) - fixed[g], 0) for g in gaps]
    tot = sum(cost_of(o) for o in ops)
    extra = max(0, (tot - sum(base) + 3) // 4)
    issued = [None] * n
    left = list(range(n))
    given = 0
    for gi, g in enumerate(gaps):
        r = base[gi]
        want = (extra * (gi + 1) + len(gaps) - 1) // len(gaps)
        rem_cost = sum(cost_of(ops[k]) for k in left)
        rem_base = sum(base[gi:])
        need_extra = max(0, (rem_cost - rem_base + 3) // 4)
        rem_gaps = len(gaps) - gi
        add = (need_extra + rem_gaps - 1) // rem_gaps if (given < want or need_extra >= rem_gaps) else 0
        r += 4 * add
        given += add
        pos = 0
        last = gi == len(gaps) - 1
        while left and (r > 0 or last):
            cand = []
            for k in left[:window]:
                ok = all(issued[d] is not None for d in deps[k])
                if ok:
                    for d in deps[k]:
                        if cost_of(ops[d]) == 8 and (ins[d].dst & ins[k].src) and issued[d] == (gi, pos - 1):
                            ok = False
                if ok:
                    cand.append(k)
            fit = [k for k in cand if cost_of(ops[k]) <= r]
            if fit:
                k = fit[0]
                if r >= 8 and cost_of(ops[k]) == 4:
                    plains = [x for x in fit if cost_of(ops[x]) == 4]
                    trans = [x for x in fit if cost_of(ops[x]) == 8]
                    if trans and r == 8 and len(plains) < 2:
                        k = trans[0]
            elif last and cand:
                k = cand[0]
            elif last:
                k = left[0]
            elif cand and need_extra > add:
                k = cand[0]
                given += 1
            else:
                break
            issued[k] = (gi, pos)
            pos += 1
            left.remove(k)
            items[g].valu.append(ops[k])
            r -= cost_of(ops[k])
    assert not left


class Stream:
    def __init__(self, a, FR, nfr, la, wait_group=1, cap=8):
        self.a, self.FR, self.nfr, self.la, self.wait_group, self.cap = a, FR, nfr, la, wait_group, cap
        self.vm = VmTracker()
        self.rstep = 1

    def emit_vm(self, op, with_pre=True):
        if with_pre:
            for l in op.pre:
                self.a(l)
        self.a(op.line)
        self.vm.issue(op.tag)

    def vmwait(self, tags):
        n = min(self.vm.count_after(lambda t, tag=tag: t == tag) for tag in tags)
        return min(n, 63)

    def guard_wait(self, tags, extra=""):
        return lambda: f"s_waitcnt vmcnt({self.vmwait(tags)}){extra}"

    def layout(self, items, stop_reads_at=None):
        self.firstuse, self.lastuse, self.order = {}, {}, []
        for i, it in enumerate(items):
            if it.frag is None:
                continue
            if id(it.frag) not in self.firstuse:
                self.firstuse[id(it.frag)] = i
                it.frag.seq = len(self.order)
                self.order.append(it.frag)
            self.lastuse[id(it.frag)] = i
        self.head = Item(None, phantom=True)
        self.skipped = set()
        at = lambda p: self.head if p < 0 else items[p]
        for i, it in enumerate(items):
            fr = it.frag
            if fr is None or self.firstuse[id(fr)] != i:
                continue
            pos = (i if fr.nat is None else fr.nat) - self.la
            if it.phantom and pos >= stop_reads_at:
                self.skipped.add(id(fr))
                continue
            if fr.guard:
                at(pos - 1 - (1 if at(pos - 1).cont else 0)).sc.append(fr.guard)
                at(pos).sc.append("s_barrier")
            for k in range(len(fr.reads)):
                at(pos + k * self.rstep if pos >= 0 else pos).ds.append((fr, k))
        for i, it in enumerate(items):
            fr = it.frag
            if fr is None or self.firstuse[id(fr)] != i or id(fr) in self.skipped:
                continue
            if it.phantom and i - 1 >= stop_reads_at:
                continue
            if fr.seq % self.wait_group == 0 or (i > 0 and items[i - 1].phantom and not it.phantom):
                p = i - 1
                if at(p).cont:
                    p -= 1
                elif at(p).sc and i >= 2 and not at(p - 1).sc and not at(p).phantom and not at(p - 1).phantom:
                    p -= 1
                at(p).sc.append(("lgkm", fr))

    def place_scalar(self, items, line, lo, hi):
        for g in range(hi, lo - 1, -1):
            if not items[g].sc and not items[g].phantom and not items[g].cont:
                items[g].sc.append(line)
                return g
        items[hi].sc.append(line)
        return hi

    def place_vm(self, items, g0, g1, ops):
        prev = g0 - 1
        for i, op in enumerate(ops):
            g = max(g0 + i * (g1 - g0 + 1) // len(ops), prev + 1 + len(op.pre))
            g2 = g
            while g2 <= min(g + 3, g1) and (items[g2].ds or items[g2].vm or items[g2].aux or items[g2].cont):
                g2 += 1
            if g2 <= min(g + 3, g1):
                g = g2
            g = min(g, g1)
            if items[g].cont:
                g -= 1
            items[g].vm.append(op)
            lo = prev + 1 if prev >= g0 else max(g0 - 1, 0)
            hi = g - 1
            if hi < lo:
                op.inline_pre = True
            else:
                op.inline_pre = False
                for l in op.pre:
                    self.place_scalar(items, l, lo, hi)
            prev = g

    def fixed_cost(self, it):
        nsc = len([s for s in it.sc if not (isinstance(s, str) and s.endswith(":"))])
        c = 4 * len(it.ds) + 4 * len(it.aux) + 8 * len(it.vm) + 4 * max(0, nsc - 1)
        c += sum(4 * len(op.pre) for op in it.vm if op.inline_pre)
        c += sum(4 for s in it.sc if isinstance(s, str) and s.startswith(("s_barrier", "s_cbranch")))
        c += sum(cost_of(l) for l in it.valu)
        return c

    def emit(self, items, groups, marks=()):
        a = self.a
        wg = self.wait_group
        fixed = [self.fixed_cost(it) for it in items]
        for g0, g1, ops in groups:
            pack(items, g0, g1, ops, fixed, self.cap)
            for g in range(g0, g1 + 1):
                fixed[g] = self.fixed_cost(items[g])
        self.est = [max(self.cap, fixed[g]) + 8 for g in range(len(items))]
        for g in range(len(items)):
            if items[g].cont:
                self.est[g] = max(32, 8 + fixed[g - 1] + fixed[g]) - 16
                self.est[g - 1] = 16
        segs = []
        nds, nfr = [0], [0]
        bufowner = [None] * self.nfr
        covered = [-1]

        def gap(it, i):
            late = []
            for s in it.sc:
                if isinstance(s, tuple):
                    fr = s[1]
                    if fr.last_ds is None or any(f is fr for f, _ in it.ds):
                        late.append(fr)
                        continue
                    lgkm(fr)
                else:
                    a(s() if callable(s) else s)
            for op in it.vm:
                self.emit_vm(op, with_pre=op.inline_pre)
            for x in it.aux:
                a(x.line)
                x.idx = nds[0]
                nds[0] += 1
            for fr, k in it.ds:
                if k == 0:
                    b = nfr[0] % self.nfr
                    nfr[0] += 1
                    prev = bufowner[b]
                    assert prev is None or self.lastuse[id(prev)] <= i, "fragment ring too small"
                    bufowner[b] = fr
                    fr.buf = self.FR.sub(4 * b, 4)
                op, sub, nr, ar, off = fr.reads[k]
                assert 0 <= off < 65536, off
                a(f"{op} {fr.buf.sub(sub, nr)}, {ar} offset:{off}")
                if k == len(fr.reads) - 1:
                    fr.last_ds = nds[0]
                nds[0] += 1
            if it is self.head:
                for fr in late:
                    lgkm(fr)
                late = []
            for x in it.need:
                assert x.idx is not None and x.idx <= covered[0], "aux read not covered by a wait"
            for l in it.valu + it.block:
                a(l() if callable(l) else l)
            for fr in late:
                lgkm(fr)

        def lgkm(fr):
            tgt = fr.last_ds
            s = fr.seq
            for s2 in range(s + 1, min((s // wg + 1) * wg, len(self.order))):
                f2 = self.order[s2]
                if id(f2) in self.skipped:
                    continue
                assert f2.last_ds is not None, "wait group member not issued yet"
                tgt = max(tgt, f2.last_ds)
            w = nds[0] - 1 - tgt
            assert w <= 15, w
            a(f"s_waitcnt lgkmcnt({w})")
            covered[0] = max(covered[0], tgt)

        gap(self.head, -1)
        for i, it in enumerate(items):
            if i in marks:
                segs.append(len(a.lines))
            if not it.phantom and not it.cont:
                a(it.fmt.replace("{A}", str(it.frag.buf)) if it.frag is not None else it.fmt)
            gap(it, i)
        segs.append(len(a.lines))
        return segs
```

```python
import sys
from full import *
emit(pipeline(mapA=False), "vB")
p = pipeline()
def edit(p, name, f):
    return [(k[0], [x for x in (f(l) for l in k[1]) if x is not None]) + k[2:] if k[0] == name else k for k in p]
emit(edit(p, "attn_kernel", lambda l: None if "v_fma_mix" in l else l), "vC")
```
